```python
import torch

def _softmax(x, axis=-1):
    return torch.softmax(x, dim=axis)
def _gelu(x):
    return torch.nn.functional.gelu(x, approximate="tanh")
def _silu(x):
    return torch.nn.functional.silu(x)
def _sigmoid(x):
    return torch.sigmoid(x)
def _layernorm(x, axis=-1, eps=1e-5):
    m = x.mean(dim=axis, keepdim=True)
    v = x.var(dim=axis, keepdim=True, unbiased=False)
    return (x - m) / torch.sqrt(v + eps)
def _scatter_add(tgt, idx, src, axis=0):
    return tgt.clone().index_add_(axis, idx, src)
def _segment_sum(src, seg, n):
    out = torch.zeros((n,) + src.shape[1:], dtype=src.dtype)
    return out.index_add_(0, seg, src)
def _pad(x, pw):
    flat = tuple(v for pair in reversed(pw) for v in pair)
    return torch.nn.functional.pad(x, flat)

kernel_name = 'gated_mix__sliding_block_cached__mixer_channel_mlp__decode'

def setup_inputs():

    _w = (lambda a: (lambda t: t.to(torch.bfloat16) if t.is_floating_point() else t)(torch.as_tensor(a)))
    def _A_setup():
        B, Sq, D = 8, 1, 448
        Hq, Hkv, Sk, Dh = 16, 8, 4096, 256
        assert Hq % Hkv == 0, (Hq, Hkv)
        return {
            "x": _w((lambda *s: torch.randn(*s, dtype=torch.bfloat16) * 0.05)(B, Sq, D)),
            "k_cache": _w((lambda *s: torch.randn(*s, dtype=torch.bfloat16) * 6.4)(B, Hkv, Sk, Dh)),
            "v_cache": _w((lambda *s: torch.randn(*s, dtype=torch.bfloat16) * 0.4)(B, Hkv, Sk, Dh)),
            "wq": _w((lambda *s: torch.randn(*s, dtype=torch.bfloat16) * 6.4)(D, Hq * Dh) * (D ** -0.5)),
            "wo": _w((lambda *s: torch.randn(*s, dtype=torch.bfloat16) * 0.4)(Hq * Dh, D) * ((Hq * Dh) ** -0.5)),
        }
    _A_in = _A_setup()

    def _B_setup():
        B, S, D, F = 8, 1, 448, 1792
        return {
            "x": _w((lambda *s: torch.randn(*s, dtype=torch.bfloat16) * 0.05)(B, S, D)),
            "w1": _w((lambda *s: torch.randn(*s, dtype=torch.bfloat16) * 0.8)(D, F) * (D ** -0.5)),
            "b1": _w((lambda *s: torch.randn(*s, dtype=torch.bfloat16) * 0.8)(F)),
            "w2": _w((lambda *s: torch.randn(*s, dtype=torch.bfloat16) * 0.05)(F, D) * (F ** -0.5)),
            "b2": _w((lambda *s: torch.randn(*s, dtype=torch.bfloat16) * 0.05)(D)),
        }
    _B_in = _B_setup()

    return {
        "A_x": _A_in["x"],
        "A_k_cache": _A_in["k_cache"],
        "A_v_cache": _A_in["v_cache"],
        "A_wq": _A_in["wq"],
        "A_wo": _A_in["wo"],
        "B_x": _B_in["x"],
        "B_w1": _B_in["w1"],
        "B_b1": _B_in["b1"],
        "B_w2": _B_in["w2"],
        "B_b2": _B_in["b2"],
        "gate_w": _w((lambda *s: torch.randn(*s, dtype=torch.bfloat16) * 0.05)(448) * 16.0),
    }

def reference(A_x, A_k_cache, A_v_cache, A_wq, A_wo, B_x, B_w1, B_b1, B_w2, B_b2, gate_w):
    def _A_ref(x, k_cache, v_cache, wq, wo):
        B, Sq, D = x.shape
        Hq, Dh = 16, 256
        Hkv, Sk = k_cache.shape[1], k_cache.shape[2]
        W = min(4096, max(256, Sk // 4))
        rep = Hq // Hkv
        q = (lambda x, *d: x.permute(*d))((x @ wq).reshape(B, Sq, Hq, Dh), 0, 2, 1, 3)
        k = (lambda x, n, axis: torch.repeat_interleave(x, n, dim=axis))(k_cache[:, :, Sk - W:, :], rep, axis=1)
        v = (lambda x, n, axis: torch.repeat_interleave(x, n, dim=axis))(v_cache[:, :, Sk - W:, :], rep, axis=1)
        scores = torch.einsum("bhqd,bhkd->bhqk", q, k) * (Dh ** -0.5)
        p = _softmax(scores, axis=-1)
        o = torch.einsum("bhqk,bhkd->bhqd", p, v)
        return (lambda x, *d: x.permute(*d))(o, 0, 2, 1, 3).reshape(B, Sq, Hq * Dh) @ wo

    def _B_ref(x, w1, b1, w2, b2):
        y = _layernorm(x, axis=-1)
        h = _gelu(torch.einsum("bsd,df->bsf", y, w1) + b1)
        return torch.einsum("bsf,fd->bsd", h, w2) + b2

    x = A_x
    g = _sigmoid((x * gate_w).sum(-1, keepdims=True))
    a = _A_ref(x, A_k_cache, A_v_cache, A_wq, A_wo)
    b = _B_ref(x, B_w1, B_b1, B_w2, B_b2)
    return g * a + (1 - g) * b
```

```python
import re

_reg_re = re.compile(r'^(v|s|a)(\d+)$')
_rng_re = re.compile(r'^(v|s|a)\[(\d+):(\d+)\]$')

def regs_of(tok):
    tok = tok.strip()
    if tok.startswith('-'): tok = tok[1:]
    if tok.startswith('abs(') and tok.endswith(')'): tok = tok[4:-1]
    if tok.startswith('|') and tok.endswith('|'): tok = tok[1:-1]
    m = _reg_re.match(tok)
    if m: return {(m.group(1), int(m.group(2)))}
    m = _rng_re.match(tok)
    if m: return {(m.group(1), i) for i in range(int(m.group(2)), int(m.group(3)) + 1)}
    if tok in ('vcc', 'vcc_lo', 'vcc_hi'): return {('s', 'vcc')}
    if tok == 'm0': return {('s', 'm0')}
    if tok in ('exec', 'exec_lo', 'exec_hi'): return {('s', 'exec')}
    return set()

TRANS = ('v_exp_f32', 'v_log_f32', 'v_rcp_f32', 'v_rsq_f32', 'v_sqrt_f32', 'v_sin_f32', 'v_cos_f32')

class Ins:
    def __init__(self, text):
        self.text = text
        t = text.split(';')[0].strip()
        self.is_label = t.endswith(':')
        self.mn = ''
        self.ops = []
        self.mods = ''
        if self.is_label or not t or t.startswith('.'):
            self.kind = 'none'; return
        parts = t.split(None, 1)
        self.mn = parts[0]
        rest = parts[1] if len(parts) > 1 else ''
        toks = [x.strip() for x in rest.split(',')] if rest else []
        ops = []
        for k, x in enumerate(toks):
            sub = x.split()
            if not sub: continue
            ops.append(sub[0])
            if len(sub) > 1: self.mods += ' ' + ' '.join(sub[1:])
        self.ops = ops
        mn = self.mn
        self.w = set(); self.r = set()
        self.dpp = ('_dpp' in mn) or ('row_' in self.mods) or ('quad_perm' in t)
        R = lambda i: regs_of(ops[i]) if i < len(ops) else set()
        if mn.startswith('v_mfma') or mn.startswith('v_smfmac'):
            self.kind = 'mfma'
            self.w = R(0); self.a = R(1) | R(2); self.c = R(3); self.r = self.a | self.c
        elif mn.startswith('v_'):
            self.kind = 'valu'
            if mn.startswith('v_cmp'):
                self.w = R(0); self.r = R(1) | R(2)
            elif mn.startswith('v_permlane') and 'swap' in mn:
                self.w = R(0) | R(1); self.r = R(0) | R(1)
            elif mn.startswith('v_readfirstlane') or mn.startswith('v_readlane'):
                self.w = R(0); self.r = R(1) | R(2)
            else:
                self.w = R(0)
                for i in range(1, len(ops)): self.r |= R(i)
                if mn.startswith('v_fmac') or mn.startswith('v_dot2c') or mn.startswith('v_writelane') or self.dpp:
                    self.r |= R(0)
                if mn.startswith('v_cndmask') and len(ops) == 3: self.r |= {('s', 'vcc')}
                if mn.startswith('v_add_co') or mn.startswith('v_sub_co'):
                    self.w |= R(1)
            self.trans = mn.replace('_e32', '').replace('_e64', '') in TRANS
        elif mn.startswith('ds_'):
            self.kind = 'ds'
            if mn.startswith('ds_read') or mn.startswith('ds_bpermute') or mn.startswith('ds_swizzle') or '_rtn' in mn:
                self.w = R(0)
                for i in range(1, len(ops)): self.r |= R(i)
            else:
                for i in range(len(ops)): self.r |= R(i)
        elif mn.startswith('buffer_') or mn.startswith('global_'):
            self.kind = 'vmem'
            self.lds = ' lds' in (' ' + self.mods + ' ') or self.mods.strip().endswith('lds') or 'load_lds' in mn
            if 'load' in mn and not self.lds:
                self.w = R(0)
                for i in range(1, len(ops)): self.r |= R(i)
                self.data = set()
            elif 'load' in mn:
                for i in range(len(ops)): self.r |= R(i)
                self.data = set()
            else:
                for i in range(len(ops)): self.r |= R(i)
                if mn.startswith('buffer_'): self.data = R(0)
                else: self.data = R(1)
            self.wide = ('x3' in mn) or ('x4' in mn)
        elif mn.startswith('s_'):
            self.kind = 'salu'
            if mn in ('s_nop', 's_waitcnt', 's_barrier', 's_endpgm', 's_branch', 's_sleep', 's_setprio') or mn.startswith('s_cbranch') or mn.startswith('s_cmp'):
                if mn.startswith('s_cmp'):
                    self.r = R(0) | R(1)
            else:
                self.w = R(0)
                for i in range(1, len(ops)): self.r |= R(i)
                if 'saveexec' in mn: self.w |= {('s', 'exec')}
        else:
            self.kind = 'none'
    def states(self):
        if self.kind == 'none': return 0
        if self.mn == 's_nop': return int(self.ops[0], 0) + 1
        return 1

def need(prev, cur):
    n = 0
    pk, ck = prev.kind, cur.kind
    if pk == 'valu':
        vw = {x for x in prev.w if x[0] in 'va'}
        sw = {x for x in prev.w if x[0] == 's'}
        if ck == 'mfma' and vw & cur.r: n = max(n, 2)
        if ck == 'valu':
            if cur.dpp and vw & cur.r: n = max(n, 2)
            if cur.mn.startswith('v_permlane') and vw & cur.r: n = max(n, 2)
            if (cur.mn.startswith('v_readfirstlane') or cur.mn.startswith('v_readlane')) and vw & cur.r: n = max(n, 1)
            if prev.trans and not cur.trans and vw & cur.r: n = max(n, 1)
            if sw & cur.r: n = max(n, 2)
            if cur.mn.startswith('v_readlane') or cur.mn.startswith('v_writelane'):
                if sw & cur.r: n = max(n, 4)
        if ck == 'vmem' and sw & cur.r: n = max(n, 5)
        if ck == 'salu' and sw & cur.r: n = max(n, 2)
    if pk == 'mfma':
        if ck == 'mfma':
            if prev.w & cur.a: n = max(n, 8)
            if prev.w & cur.c and prev.w != cur.c: n = max(n, 6)
            if prev.w & cur.w and prev.w != cur.c: n = max(n, 6)
        elif ck == 'valu':
            if prev.w & (cur.r | cur.w): n = max(n, 8)
            if prev.c & cur.w: n = max(n, 3)
        elif ck in ('ds', 'vmem'):
            if prev.w & (cur.r | cur.w): n = max(n, 8)
    if pk == 'salu':
        if ('s', 'm0') in prev.w and ck == 'vmem' and cur.lds: n = max(n, 1)
    if pk == 'vmem' and prev.wide and prev.data:
        if ck == 'valu' and prev.data & cur.w: n = max(n, 2)
        elif ck in ('ds', 'vmem') and prev.data & cur.w: n = max(n, 1)
    return n

class Emitter:
    def __init__(self):
        self.lines = []
    def I(self, text):
        for ln in text.split('\n'):
            ln = ln.strip()
            if ln: self.lines.append(ln)
    def C(self, text):
        self.lines.append('; ' + text)
    def L(self, name):
        self.lines.append(name + ':')
    def finalize(self, window=24):
        out = []
        seq = []
        hists = [()]
        pending = {}
        label_pos = {}
        self.ninserted = 0
        def trim(h):
            d = 0; k = len(h)
            while k > 0 and d < 20:
                k -= 1; d += h[k].states()
            return h[k:]
        def dedupe(hs):
            seen = {};
            for h in hs:
                key = tuple(id(x) for x in h)
                seen.setdefault(key, h)
            return list(seen.values())
        def required(hist, ins):
            req = 0; dist = 0
            for p in reversed(hist):
                r = need(p, ins)
                if r > dist: req = max(req, r - dist)
                dist += p.states()
                if dist >= 20: break
            return req
        state = {'h': hists}
        def push(ins, text):
            out.append(text); seq.append(ins)
            state['h'] = dedupe([trim(h + (ins,)) for h in state['h']])
        def nops(n):
            while n > 0:
                k = min(n, 16)
                push(Ins('s_nop %d' % (k - 1)), 's_nop %d' % (k - 1)); n -= k; self.ninserted += 1
        for ln in self.lines:
            if ln.startswith(';') or ln.startswith('.'):
                out.append(ln); seq.append(None); continue
            ins = Ins(ln)
            if ins.is_label:
                name = ln[:-1]
                out.append(ln); seq.append(None)
                label_pos[name] = len(seq)
                state['h'] = dedupe(state['h'] + pending.pop(name, []))
                continue
            if ins.kind == 'none':
                out.append(ln); seq.append(None); continue
            req = max([required(h, ins) for h in state['h']] + [0])
            nops(req)
            if ins.mn.startswith('s_cbranch') or ins.mn == 's_branch':
                tgt = ins.ops[0]
                if tgt in label_pos:
                    head = [x for x in seq[label_pos[tgt]:] if x is not None][:window]
                    worst = 0
                    for h in state['h']:
                        hh = tuple(h) + (ins,)
                        for x in head:
                            worst = max(worst, required(hh, x)); hh = hh + (x,)
                    nops(worst)
                    push(ins, ln)
                else:
                    push(ins, ln)
                    pending.setdefault(tgt, []).extend(state['h'])
            else:
                push(ins, ln)
            if ins.mn in ('s_endpgm', 's_branch'):
                state['h'] = [()]
        return '\n'.join(('    ' + l if not l.endswith(':') and not l.startswith('.') else l) for l in out) + '\n'
```

```python
import sys, struct
from emit import Emitter

NAME = "gated_mix__sliding_block_cached__mixer_channel_mlp__decode_kernel"

WO   = 0
WQT  = 114688
W1T  = WQT + 14336
W2T  = W1T + 14336
QL   = W2T + 7168
PL   = QL + 1024
YL   = PL
OA   = WQT
HL   = WQT + 2048
FLG  = 158848
F_Q, F_Y, F_S, F_P, F_WO, F_T1, F_T2, F_X, F_SP = [FLG + 4 * i for i in range(9)]
XL = WO + 107520
LDS_SIZE = 159744
EPOCH = 0
QBUF = 4096
HBUF = QBUF + 131072
MBUF = 196608
SBUF = 0x70000
PBUF = 0x100000
STAMP = 0x200000
WS_RANGE = 0x400000
OOB = 0x7FFF0000

def f2u(x): return struct.unpack('<I', struct.pack('<f', x))[0]

class Cfg:
    wk = 16
    wv = 12
    nt_kv = " nt"
    nt_w = " nt"
    nt_wo = " nt"
    stamps = False
    qpos = 44
    sched = None
    pat = "VWVWVWVWVWVWVWVW" + "WVWVWVWVWVWVWVWVWVWVWVWVWVWVWVWVWWWW"
    maxpoll = 20000
    t1 = 32
    t2 = 72
    backoff = 4

def default_sched(cfg):
    s = [('K', n // 8, n % 8) for n in range(32)]
    v = [('V', T, j) for T in range(4) for j in range(8)]
    w = [('W', i) for i in range(28)]
    vi = wi = 0
    for c in cfg.pat:
        if c == 'W' and wi < 28: s.append(w[wi]); wi += 1
        elif c == 'V' and vi < 32: s.append(v[vi]); vi += 1
    while wi < 28: s.append(w[wi]); wi += 1
    while vi < 32: s.append(v[vi]); vi += 1
    return s

def gen(cfg):
    e = Emitter(); I = e.I; L = e.L; C = e.C
    nst = [0]
    def STAMP_(i):
        if cfg.stamps: I("s_memrealtime s[%d:%d]" % (70 + 2 * i, 71 + 2 * i))
    def stamps_out():
        if not cfg.stamps: return
        I("s_waitcnt vmcnt(0) lgkmcnt(0)")
        I("s_lshl_b32 s8, s2, 3\ns_add_u32 s8, s8, s3\ns_lshl_b32 s8, s8, 7\ns_add_u32 s8, s8, %d" % STAMP)
        I("v_mov_b32 v1, 0")
        I("s_mov_b64 exec, 1")
        for k in range(8):
            for q in range(4): I("v_mov_b32 v%d, s%d" % (4 + q, 70 + 4 * k + q))
            I("buffer_store_dwordx4 v[4:7], v1, s[60:63], s8 offen offset:%d" % (16 * k))
            I("s_nop 1")
        I("s_waitcnt vmcnt(0)")
    uid = [0]
    def lab(p):
        uid[0] += 1
        return "L_%s_%d" % (p, uid[0])
    def srd(n, lo, hi, nrec):
        I("s_mov_b32 s%d, s%d\ns_mov_b32 s%d, s%d\ns_mov_b32 s%d, %s\ns_mov_b32 s%d, 0x20000" % (n, lo, n + 1, hi, n + 2, nrec, n + 3))
    def srd_add(n, lo, hi, off_sgpr, nrec):
        I("s_add_u32 s%d, s%d, %s\ns_addc_u32 s%d, s%d, 0\ns_mov_b32 s%d, %s\ns_mov_b32 s%d, 0x20000" % (n, lo, off_sgpr, n + 1, hi, n + 2, nrec, n + 3))
    def wait_flag(addr_v, off, val, tmpv, cmp="ge"):
        lp = lab("fl"); dn = lab("fld")
        I("s_mov_b32 s45, 0x100000")
        L(lp)
        I("ds_read_b32 v%d, v%d offset:%d" % (tmpv, addr_v, off))
        I("s_waitcnt lgkmcnt(0)")
        I("v_readfirstlane_b32 s46, v%d" % tmpv)
        I("s_cmp_ge_u32 s46, %d" % val)
        I("s_cbranch_scc1 %s" % dn)
        I("s_sub_u32 s45, s45, 1")
        I("s_cmp_lg_u32 s45, 0")
        I("s_cbranch_scc1 %s" % lp)
        L(dn)
    def set_flag_add(addr_v, off, onev):
        I("ds_add_u32 v%d, v%d offset:%d" % (addr_v, onev, off))
    def check_tags(tags, vmin, vmax, lanemask=None):
        t = list(tags)
        if len(t) % 2 == 1: t.append(t[-1])
        I("v_min_u32 v%d, v%d, v%d" % (vmin, t[0], t[1]))
        I("v_max_u32 v%d, v%d, v%d" % (vmax, t[0], t[1]))
        for k in range(2, len(t), 2):
            I("v_min3_u32 v%d, v%d, v%d, v%d" % (vmin, vmin, t[k], t[k + 1]))
            I("v_max3_u32 v%d, v%d, v%d, v%d" % (vmax, vmax, t[k], t[k + 1]))
        I("v_cmp_ne_u32 vcc, s44, v%d" % vmin)
        I("v_cmp_ne_u32 s[46:47], s44, v%d" % vmax)
        I("s_or_b64 vcc, vcc, s[46:47]")
        if lanemask: I("s_and_b64 vcc, vcc, %s" % lanemask)
        I("s_cmp_eq_u64 vcc, 0")
    def poll(issue, tags, vmin, vmax, lanemask=None, backoff=cfg.backoff, after_first=None):
        lp = lab("pl"); dn = lab("pld")
        I("s_mov_b32 s45, %d" % cfg.maxpoll)
        if after_first:
            issue(); after_first()
            I("s_branch %s_w" % lp)
        L(lp)
        issue()
        if after_first: L(lp + "_w")
        I("s_waitcnt vmcnt(0)")
        check_tags(tags, vmin, vmax, lanemask)
        I("s_cbranch_scc1 %s" % dn)
        if backoff: I("s_sleep %d" % backoff)
        I("s_sub_u32 s45, s45, 1")
        I("s_cmp_lg_u32 s45, 0")
        I("s_cbranch_scc1 %s" % lp)
        L(dn)
    def rnd_pair(dst_lo, dst_hi, a, b, tmp):
        I("v_cvt_pk_bf16_f32 v%d, v%d, v%d" % (tmp, a, b))
        I("v_lshlrev_b32 v%d, 16, v%d" % (dst_lo, tmp))
        I("v_and_b32 v%d, 0xffff0000, v%d" % (dst_hi, tmp))
    def wave_reduce(op, v, t):
        for mod in ("quad_perm:[1,0,3,2]", "quad_perm:[2,3,0,1]", "row_half_mirror", "row_mirror"):
            I("%s_dpp v%d, v%d, v%d %s row_mask:0xf bank_mask:0xf" % (op, v, v, v, mod))
        for sw in ("v_permlane16_swap_b32", "v_permlane32_swap_b32"):
            I("v_mov_b32 v%d, v%d" % (t, v))
            I("%s v%d, v%d" % (sw, v, t))
            I("%s v%d, v%d, v%d" % (op, v, v, t))

    I("s_cmp_ge_u32 s2, 256")
    I("s_cbranch_scc1 L_end")
    I("s_load_dwordx16 s[16:31], s[0:1], 0")
    I("s_load_dwordx8 s[32:39], s[0:1], 64")
    I("s_load_dwordx4 s[40:43], s[0:1], 96")
    if cfg.stamps:
        for k in range(70, 102): I("s_mov_b32 s%d, 0" % k)
    STAMP_(0)
    I("v_lshrrev_b32 v1, 6, v0")
    I("v_and_b32 v0, 63, v0")
    I("v_readfirstlane_b32 s3, v1")
    I("s_lshr_b32 s4, s2, 5")
    I("s_bfe_u32 s5, s2, 0x30002")
    I("s_and_b32 s6, s2, 3")
    I("s_and_b32 s7, s2, 31")
    I("s_and_b32 s8, s2, 7")
    I("s_lshr_b32 s9, s2, 3")
    I("v_and_b32 v2, 15, v0")
    I("v_lshrrev_b32 v3, 4, v0")
    I("v_mov_b32 v4, %d" % FLG)
    I("v_mov_b32 v5, 1")
    I("s_waitcnt lgkmcnt(0)")
    STAMP_(14)
    I("s_load_dword s44, s[42:43], %d" % EPOCH)
    srd(60, 42, 43, hex(WS_RANGE))
    I("s_cmp_ge_u32 s3, 4")
    I("s_cbranch_scc1 L_service")
    FO = lambda f: f - FLG

    C("bulk waves")
    KR = 64; VB = 192; QA = 32; PF = 16; SACC = 224
    vreg = {0: VB, 1: KR, 2: KR + 32, 3: KR + 64}
    TMP = KR + 96
    I("s_lshl_b32 s10, s4, 3\ns_add_u32 s10, s10, s5")
    I("s_lshl_b32 s11, s10, 21\ns_add_u32 s11, s11, %d" % (3072 * 512))
    I("s_lshl_b32 s12, s3, 15\ns_lshl_b32 s13, s6, 13\ns_add_u32 s12, s12, s13")
    I("s_sub_u32 s14, %d, s12" % 524288)
    I("s_add_u32 s12, s12, s11")
    srd_add(48, 18, 19, "s12", "s14")
    I("s_lshl_b32 s12, s3, 15\ns_lshl_b32 s13, s6, 7\ns_add_u32 s12, s12, s13")
    I("s_sub_u32 s14, %d, s12" % 524288)
    I("s_add_u32 s12, s12, s11")
    srd_add(52, 20, 21, "s12", "s14")
    I("s_lshr_b32 s12, s3, 1\ns_lshl_b32 s13, s5, 1\ns_add_u32 s12, s12, s13\ns_lshl_b32 s12, s12, 8")
    I("s_lshl_b32 s13, s6, 6\ns_add_u32 s12, s12, s13\ns_mul_i32 s12, s12, 896")
    I("s_and_b32 s13, s3, 1\ns_mul_i32 s13, s13, 28672\ns_add_u32 s12, s12, s13")
    srd_add(56, 24, 25, "s12", "28672")
    I("s_mov_b32 s64, 0\ns_mov_b32 s65, 0x20000\ns_mov_b32 s66, 0x40000\ns_mov_b32 s67, 0x60000")
    I("v_bfe_u32 v6, v0, 2, 2\nv_lshlrev_b32 v6, 11, v6\nv_lshl_add_u32 v6, v3, 6, v6\nv_and_b32 v7, 3, v0\nv_lshl_add_u32 v6, v7, 4, v6")
    I("v_lshrrev_b32 v7, 3, v0\nv_lshlrev_b32 v7, 12, v7\nv_and_b32 v8, 7, v0\nv_lshl_add_u32 v7, v8, 4, v7")
    I("v_lshlrev_b32 v8, 4, v0")
    I("v_lshlrev_b32 v9, 11, v3\nv_lshl_add_u32 v9, v2, 3, v9")
    I("s_lshl_b32 s15, s10, 13\ns_lshl_b32 s12, s3, 9\ns_add_u32 s15, s15, s12\ns_lshl_b32 s12, s6, 7\ns_add_u32 s15, s15, s12\ns_add_u32 s15, s15, %d" % SBUF)
    I("v_bfe_u32 v10, v0, 2, 1\nv_lshlrev_b32 v10, 9, v10\nv_lshl_add_u32 v10, v3, 6, v10\nv_and_b32 v11, 3, v0\nv_lshl_add_u32 v10, v11, 4, v10\nv_add_u32 v10, %d, v10" % QL)
    I("v_bfe_u32 v11, v0, 1, 1\nv_lshlrev_b32 v11, 11, v11\nv_lshl_add_u32 v11, v3, 5, v11\nv_and_b32 v12, 1, v0\nv_lshl_add_u32 v11, v12, 4, v11")
    I("s_lshl_b32 s12, s3, 7\ns_add_u32 s12, s12, %d\nv_add_u32 v11, s12, v11" % PL)
    I("v_and_b32 v12, 7, v0\nv_lshlrev_b32 v12, 4, v12\ns_lshl_b32 s12, s3, 8\ns_add_u32 s12, s12, %d\nv_add_u32 v12, s12, v12" % OA)
    I("s_mul_i32 s13, s3, 28672")
    if WO: I("s_add_u32 s13, s13, %d" % WO)
    I("s_mov_b32 s68, 0x05040100\ns_mov_b32 s69, 0x07060302")
    I("s_mov_b32 s47, 0")
    I("s_mov_b32 s16, 0xffff0000\ns_mov_b32 s17, 0\ns_mov_b32 s18, 0\ns_mov_b32 s19, 0x0000ffff\ns_mov_b32 s20, 0\ns_mov_b32 s21, 0xffff0000")
    I("s_mov_b32 s22, 0x22222222\ns_mov_b32 s23, 0x22222222\ns_mov_b32 s24, 0x44444444\ns_mov_b32 s25, 0x44444444\ns_mov_b32 s26, 0x88888888\ns_mov_b32 s27, 0x88888888")
    I("s_barrier")
    STAMP_(1)
    sched = cfg.sched or default_sched(cfg)
    ops = []
    def outstanding_after(opid):
        return len(ops) - 1 - ops.index(opid)
    def wait_op(opid):
        n = outstanding_after(opid)
        I("s_waitcnt vmcnt(%d)" % min(n, 63))
    tag_ready = [False]
    def ensure_tag():
        if not tag_ready[0]:
            I("s_waitcnt lgkmcnt(0)")
            I("s_mul_i32 s44, s44, 1664525\ns_add_u32 s44, s44, 1013904223")
            I("v_mov_b32 v%d, s44" % (SACC + 5))
            tag_ready[0] = True
    DQ = QA + 8
    def score_tile(T):
        C("scores tile %d" % T)
        wait_op(('K', T, 7))
        for hf in range(2):
            for G in range(4):
                c = "0" if hf == 0 else "v[%d:%d]" % (DQ + 4 * G, DQ + 4 * G + 3)
                r = KR + 32 * T + 4 * (2 * G + hf)
                I("v_mfma_f32_16x16x32_bf16 v[%d:%d], v[%d:%d], v[%d:%d], %s" % (DQ + 4 * G, DQ + 4 * G + 3, QA + 4 * hf, QA + 4 * hf + 3, r, r + 3, c))
        t = QA + 24
        for G in range(4):
            I("v_mov_b32_dpp v%d, v%d quad_perm:[0,0,0,0] row_mask:0xf bank_mask:0xf" % (t + G, DQ + 4 * G))
        for c in range(1, 4):
            for G in range(4):
                I("v_add_f32_dpp v%d, v%d, v%d quad_perm:[%d,%d,%d,%d] row_mask:0xf bank_mask:0xf" % (t + G, DQ + 4 * G + c, t + G, c, c, c, c))
        I("v_cndmask_b32 v%d, v%d, v%d, s[22:23]" % (t, t, t + 1))
        I("v_cndmask_b32 v%d, v%d, v%d, s[24:25]" % (t, t, t + 2))
        I("v_cndmask_b32 v%d, v%d, v%d, s[26:27]" % (t, t, t + 3))
        I("v_mov_b32 v%d, v%d" % (t + 1, t))
        I("v_permlane16_swap_b32 v%d, v%d" % (t, t + 1))
        I("v_cvt_pk_bf16_f32 v%d, v%d, v%d" % (SACC + T, t, t + 1))
        if T == 3:
            I("v_cndmask_b32 v%d, v%d, v%d, s[16:17]" % (SACC + 4, SACC, SACC + 1))
            I("v_cndmask_b32 v%d, v%d, v%d, s[18:19]" % (SACC + 4, SACC + 4, SACC + 2))
            I("v_cndmask_b32 v%d, v%d, v%d, s[20:21]" % (SACC + 4, SACC + 4, SACC + 3))
            I("buffer_store_dwordx2 v[%d:%d], v9, s[60:63], s15 offen sc1" % (SACC + 4, SACC + 5))
            ops.append(('S', T))
    last_w = max(i for i, o in enumerate(sched) if o[0] == 'W')
    first_v = min(i for i, o in enumerate(sched) if o[0] == 'V')
    last_k = max(i for i, o in enumerate(sched) if o[0] == 'K')
    qpos = cfg.qpos
    tiles_done = 0
    scores_flagged = False
    wo_flagged = False
    for si, o in enumerate(sched):
        win = cfg.wk if si <= last_k else cfg.wv
        if len(ops) >= win:
            sk = None
            if scores_flagged:
                sk = lab("sk")
                I("s_cmp_lg_u32 s47, 0")
                I("s_cbranch_scc1 %s" % sk)
            I("s_waitcnt vmcnt(%d)" % (win - 1))
            if sk and si > cfg.t2:
                I("ds_read_b32 v13, v4 offset:%d" % FO(F_SP))
                I("s_waitcnt lgkmcnt(0)")
                I("v_readfirstlane_b32 s46, v13")
                I("s_lshr_b32 s47, s46, 7")
            if sk: L(sk)
        if si == cfg.t1:
            set_flag_add(4, FO(F_T1), 5); STAMP_(10)
        if si == qpos:
            C("wait q")
            STAMP_(2)
            ensure_tag()
            wait_flag(4, FO(F_Q), 1, 13)
            for hf in range(2):
                I("ds_read_b128 v[%d:%d], v10 offset:%d" % (QA + 4 * hf, QA + 4 * hf + 3, 256 * hf))
            I("s_waitcnt lgkmcnt(0)")
            STAMP_(3)
        if si >= qpos and tiles_done < 4:
            T = tiles_done
            score_tile(T); tiles_done += 1
            if tiles_done == 4:
                set_flag_add(4, FO(F_S), 5); scores_flagged = True
                STAMP_(4)
        if (not wo_flagged) and si > last_w and outstanding_after(('W', 27)) >= win - 1:
            C("wo landed")
            wait_op(('W', 27))
            set_flag_add(4, FO(F_WO), 5); wo_flagged = True
            STAMP_(5)
        if si == cfg.t2:
            set_flag_add(4, FO(F_T2), 5); STAMP_(11)
        if o[0] == 'K':
            _, T, t = o
            I("buffer_load_dwordx4 v[%d:%d], v6, s[48:51], s%d offen offset:%d%s" % (KR + 32 * T + 4 * t, KR + 32 * T + 4 * t + 3, 64 + T, 512 * (t // 2) + 256 * (t % 2), cfg.nt_kv))
            if si == last_k: STAMP_(12)
        elif o[0] == 'V':
            _, T, j = o
            if T >= 1: assert tiles_done > T - 1, "V tile overwrites K tile not yet consumed"
            r = vreg[T] + 4 * j
            I("buffer_load_dwordx4 v[%d:%d], v7, s[52:55], s%d offen offset:%d%s" % (r, r + 3, 64 + T, 512 * j, cfg.nt_kv))
        else:
            i = o[1]
            if i >= 21: assert si > qpos, "wo chunk overlays x before q flag"
            if i % 4 == 0:
                I("s_add_u32 m0, s13, %d" % (i * 1024))
                I("s_mov_b32 s14, %d" % (i * 1024))
            I("buffer_load_dwordx4 v8, s[56:59], s14 offen offset:%d%s lds" % ((i % 4) * 1024, cfg.nt_wo))
        ops.append(o)
    assert tiles_done == 4
    if not wo_flagged:
        wait_op(('W', 27)); set_flag_add(4, FO(F_WO), 5)
    STAMP_(6)
    C("wait p")
    wait_flag(4, FO(F_P), 128, 13)
    for T in range(4):
        I("ds_read_b128 v[%d:%d], v11 offset:%d" % (PF + 4 * T, PF + 4 * T + 3, 512 * T))
    STAMP_(7)
    for T in range(4):
        C("PV tile %d" % T)
        wait_op(('V', T, 7))
        if T == 0: I("s_waitcnt lgkmcnt(0)")
        R = vreg[T]
        for jp in range(8):
            sel = "s68" if jp % 2 == 0 else "s69"
            for i in range(4):
                I("v_perm_b32 v%d, v%d, v%d, %s" % (TMP + 4 * jp + i, R + 4 * (2 * i + 1) + jp // 2, R + 4 * (2 * i) + jp // 2, sel))
            if jp >= 1:
                q = jp - 1
                c = "0" if T == 0 else "v[%d:%d]" % (QA + 4 * q, QA + 4 * q + 3)
                I("v_mfma_f32_16x16x32_bf16 v[%d:%d], v[%d:%d], v[%d:%d], %s" % (QA + 4 * q, QA + 4 * q + 3, PF + 4 * T, PF + 4 * T + 3, TMP + 4 * q, TMP + 4 * q + 3, c))
        q = 7
        c = "0" if T == 0 else "v[%d:%d]" % (QA + 4 * q, QA + 4 * q + 3)
        I("v_mfma_f32_16x16x32_bf16 v[%d:%d], v[%d:%d], v[%d:%d], %s" % (QA + 4 * q, QA + 4 * q + 3, PF + 4 * T, PF + 4 * T + 3, TMP + 4 * q, TMP + 4 * q + 3, c))
    STAMP_(8)
    C("u-sum, pack, write OA")
    OS = 64
    for h in range(2):
        for jp in range(8):
            I("v_add_f32_dpp v%d, v%d, v%d row_ror:8 row_mask:0xf bank_mask:0xf" % (OS + 8 * h + jp, QA + 4 * jp + 2 * h + 1, QA + 4 * jp + 2 * h))
    for h in range(2):
        for q in range(4):
            I("v_cvt_pk_bf16_f32 v%d, v%d, v%d" % (OS + 16 + 4 * h + q, OS + 8 * h + 2 * q, OS + 8 * h + 2 * q + 1))
    I("s_mov_b64 exec, 0xff")
    I("ds_write_b128 v12, v[%d:%d]" % (OS + 16, OS + 19))
    I("ds_write_b128 v12, v[%d:%d] offset:128" % (OS + 20, OS + 23))
    I("s_mov_b64 exec, -1")
    I("s_waitcnt lgkmcnt(0)")
    I("s_barrier")
    STAMP_(9)
    stamps_out()
    I("s_endpgm")

    L("L_service")
    I("s_mov_b32 s14, 0x00ff00ff\ns_mov_b32 s15, 0x00ff00ff")
    I("v_cmp_gt_u32 vcc, 8, v2")
    I("v_lshrrev_b32 v6, 2, v2\nv_lshl_add_u32 v6, v3, 3, v6")
    I("v_and_b32 v7, 3, v2\nv_lshlrev_b32 v7, 3, v7")
    I("v_mul_u32_u24 v8, 896, v6\nv_add_u32 v8, v8, v7")
    I("v_lshl_add_u32 v6, v6, 5, v7")
    I("s_cmp_eq_u32 s3, 4\ns_cbranch_scc1 L_s0")
    I("s_cmp_eq_u32 s3, 5\ns_cbranch_scc1 L_s1")
    I("s_branch L_s23")

    XF = 64; AF = 128
    L("L_s0")
    C("S0: wq tile DMA, gate_w, b2")
    I("s_lshl_b32 s10, s8, 5\ns_add_u32 s10, s10, s9\ns_lshl_b32 s10, s10, 5")
    I("s_sub_u32 s11, %d, s10" % (448 * 8192))
    srd_add(48, 22, 23, "s10", "s11")
    I("v_lshrrev_b32 v9, 1, v0\nv_and_b32 v10, 1, v0\nv_lshlrev_b32 v10, 4, v10")
    I("v_lshl_add_u32 v11, v9, 13, v10")
    I("s_mov_b32 s12, 0\ns_mov_b32 m0, %d" % WQT)
    for i in range(14):
        I("buffer_load_dwordx4 v11, s[48:51], s12 offen%s lds" % cfg.nt_w)
        if i < 13: I("s_add_u32 m0, m0, 1024\ns_add_u32 s12, s12, 0x40000")
    STAMP_(15)
    I("v_mov_b32 v13, %d" % OOB)
    srd(52, 36, 37, "896")
    I("v_lshlrev_b32 v14, 4, v0\nv_cmp_gt_u32 vcc, 56, v0\nv_cndmask_b32 v14, v13, v14, vcc")
    I("buffer_load_dwordx4 v[36:39], v14, s[52:55], 0 offen")
    srd(56, 34, 35, "896")
    I("v_and_b32 v15, 7, v0\nv_lshlrev_b32 v15, 2, v15\ns_lshl_b32 s10, s7, 5")
    I("buffer_load_dword v40, v15, s[56:59], s10 offen")
    I("s_barrier")
    STAMP_(1)
    wait_flag(4, FO(F_X), 1, 26)
    I("v_and_b32 v12, 7, v2\nv_mul_u32_u24 v12, 896, v12\nv_lshl_add_u32 v12, v3, 4, v12\nv_add_u32 v12, %d, v12" % XL)
    for t in range(14):
        I("ds_read_b128 v[%d:%d], v12 offset:%d" % (XF + 4 * t, XF + 4 * t + 3, 64 * t))
    I("s_mul_i32 s10, s4, 896\ns_add_u32 s10, s10, %d" % XL)
    I("v_min_u32 v14, 55, v0\nv_lshlrev_b32 v14, 4, v14\nv_add_u32 v14, s10, v14")
    I("ds_read_b128 v[32:35], v14")
    I("s_waitcnt vmcnt(0)")
    STAMP_(2)
    I("v_add_u32 v15, %d, v6" % WQT)
    for t in range(14):
        I("ds_read_b64_tr_b16 v[%d:%d], v15 offset:%d" % (AF + 4 * t, AF + 4 * t + 1, 1024 * t))
        I("ds_read_b64_tr_b16 v[%d:%d], v15 offset:%d" % (AF + 4 * t + 2, AF + 4 * t + 3, 1024 * t + 128))
    I("s_waitcnt lgkmcnt(0)")
    I("s_mul_i32 s44, s44, 1664525\ns_add_u32 s44, s44, 1013904223")
    for t in range(14):
        c = "0" if t == 0 else "v[16:19]"
        I("v_mfma_f32_16x16x32_bf16 v[16:19], v[%d:%d], v[%d:%d], %s" % (AF + 4 * t, AF + 4 * t + 3, XF + 4 * t, XF + 4 * t + 3, c))
    I("v_lshlrev_b32 v14, 11, v2\nv_lshl_add_u32 v14, v3, 4, v14\nv_cmp_gt_u32 vcc, 8, v2\nv_cndmask_b32 v14, v13, v14, vcc")
    I("s_lshl_b32 s10, s8, 14\ns_lshl_b32 s11, s9, 6\ns_add_u32 s10, s10, s11\ns_add_u32 s10, s10, %d" % QBUF)
    I("v_mov_b32 v21, s44\nv_mov_b32 v23, s44")
    I("v_cvt_pk_bf16_f32 v20, v16, v17\nv_cvt_pk_bf16_f32 v22, v18, v19")
    I("buffer_store_dwordx4 v[20:23], v14, s[60:63], s10 offen sc1")
    STAMP_(3)
    C("gate (lanes >= 56 have gate_w = 0)")
    for q in range(4):
        I("v_lshlrev_b32 v%d, 16, v%d\nv_and_b32 v%d, 0xffff0000, v%d" % (24 + 2 * q, 32 + q, 25 + 2 * q, 32 + q))
        I("v_lshlrev_b32 v%d, 16, v%d\nv_and_b32 v%d, 0xffff0000, v%d" % (48 + 2 * q, 36 + q, 49 + 2 * q, 36 + q))
    for k in range(8): I("v_mul_f32 v%d, v%d, v%d" % (24 + k, 24 + k, 48 + k))
    for q in range(4): rnd_pair(24 + 2 * q, 25 + 2 * q, 24 + 2 * q, 25 + 2 * q, 32)
    I("v_add_f32 v24, v24, v25\nv_add_f32 v26, v26, v27\nv_add_f32 v28, v28, v29\nv_add_f32 v30, v30, v31")
    I("v_add_f32 v24, v24, v26\nv_add_f32 v28, v28, v30\nv_add_f32 v24, v24, v28")
    wave_reduce("v_add_f32", 24, 25)
    rnd_pair(24, 25, 24, 24, 26)
    I("v_mul_f32 v24, 0x%08x, v24" % f2u(-1.4426950408889634))
    I("v_exp_f32 v24, v24\nv_add_f32 v24, 1.0, v24\nv_rcp_f32 v24, v24")
    rnd_pair(41, 25, 24, 24, 26)
    I("v_sub_f32 v24, 1.0, v41")
    rnd_pair(42, 25, 24, 24, 26)
    STAMP_(4)
    C("q gather")
    wait_flag(4, FO(F_T1), 256, 26)
    I("s_lshl_b32 s10, s5, 3\ns_add_u32 s10, s10, s4\ns_lshl_b32 s10, s10, 11\ns_add_u32 s10, s10, %d" % QBUF)
    I("v_lshlrev_b32 v14, 4, v0")
    STAMP_(5)
    def iss():
        I("buffer_load_dwordx4 v[16:19], v14, s[60:63], s10 offen sc1")
        I("buffer_load_dwordx4 v[20:23], v14, s[60:63], s10 offen offset:1024 sc1")
    poll(iss, [17, 19, 21, 23], 26, 27)
    I("v_lshlrev_b32 v15, 3, v0\nv_add_u32 v15, %d, v15" % QL)
    I("ds_write2_b32 v15, v16, v18 offset0:0 offset1:1")
    I("ds_write2_b32 v15, v20, v22 offset0:128 offset1:129")
    I("s_cmp_lt_u32 s9, 18\ns_cbranch_scc1 L_s0_noy")
    wait_flag(4, FO(F_Y), 1, 26)
    L("L_s0_noy")
    set_flag_add(4, FO(F_Q), 5)
    STAMP_(6)
    C("MLP partial gather (owners)")
    I("s_cmp_ge_u32 s7, 28\ns_cbranch_scc1 L_s0_nomlp")
    wait_flag(4, FO(F_T2), 256, 26)
    I("s_mul_i32 s10, s4, 28\ns_add_u32 s10, s10, s7\ns_lshl_b32 s10, s10, 10\ns_add_u32 s10, s10, %d" % MBUF)
    I("v_lshlrev_b32 v14, 4, v0")
    def iss():
        I("buffer_load_dwordx4 v[16:19], v14, s[60:63], s10 offen sc1")
    poll(iss, [17, 19], 26, 27)
    def red8(v, t):
        I("v_add_f32_dpp v%d, v%d, v%d row_ror:8 row_mask:0xf bank_mask:0xf" % (v, v, v))
        for sw in ("v_permlane16_swap_b32", "v_permlane32_swap_b32"):
            I("v_mov_b32 v%d, v%d" % (t, v)); I("%s v%d, v%d" % (sw, v, t)); I("v_add_f32 v%d, v%d, v%d" % (v, v, t))
    red8(16, 24); red8(18, 25)
    rnd_pair(16, 18, 16, 18, 26)
    I("v_lshlrev_b32 v24, 16, v40\nv_and_b32 v25, 0xffff0000, v40")
    I("v_add_f32 v16, v16, v24\nv_add_f32 v18, v18, v25")
    rnd_pair(16, 18, 16, 18, 26)
    I("v_mul_f32 v16, v16, v42\nv_mul_f32 v18, v18, v42")
    rnd_pair(43, 44, 16, 18, 26)
    L("L_s0_nomlp")
    STAMP_(7)
    I("s_branch L_outproj")

    L("L_s1")
    I("s_cmp_ge_u32 s9, 28\ns_cbranch_scc1 L_s1_skip")
    C("M2: w2 tile")
    I("s_mul_i32 s10, s8, %d\ns_lshl_b32 s11, s9, 5\ns_add_u32 s10, s10, s11" % (224 * 896))
    I("s_sub_u32 s11, %d, s10" % (1792 * 896))
    srd_add(48, 32, 33, "s10", "s11")
    I("v_lshrrev_b32 v9, 1, v0\nv_and_b32 v10, 1, v0\nv_lshlrev_b32 v10, 4, v10")
    I("v_mul_u32_u24 v11, 896, v9\nv_add_u32 v11, v11, v10")
    I("s_mov_b32 s12, 0\ns_mov_b32 m0, %d" % W2T)
    for i in range(7):
        I("buffer_load_dwordx4 v11, s[48:51], s12 offen%s lds" % cfg.nt_w)
        if i < 6: I("s_add_u32 m0, m0, 1024\ns_add_u32 s12, s12, %d" % (32 * 896))
    L("L_s1_skip")
    I("s_barrier")
    STAMP_(1)
    I("s_cmp_ge_u32 s9, 28\ns_cbranch_scc1 L_s1_done")
    I("s_waitcnt vmcnt(0) lgkmcnt(0)")
    I("s_mul_i32 s44, s44, 1664525\ns_add_u32 s44, s44, 1013904223")
    I("v_add_u32 v15, %d, v6" % W2T)
    for t in range(7):
        I("ds_read_b64_tr_b16 v[%d:%d], v15 offset:%d" % (160 + 4 * t, 160 + 4 * t + 1, 1024 * t))
        I("ds_read_b64_tr_b16 v[%d:%d], v15 offset:%d" % (160 + 4 * t + 2, 160 + 4 * t + 3, 1024 * t + 128))
    STAMP_(2)
    wait_flag(4, FO(F_T1), 256, 26)
    STAMP_(3)
    I("v_mov_b32 v13, %d" % OOB)
    I("v_lshrrev_b32 v9, 3, v0\nv_and_b32 v10, 7, v0\nv_mul_u32_u24 v14, 7168, v9\nv_lshl_add_u32 v14, v10, 4, v14")
    I("s_mul_i32 s10, s8, 896\ns_add_u32 s10, s10, %d" % HBUF)
    def iss():
        for i in range(7):
            r = 64 + 4 * i
            I("buffer_load_dwordx4 v[%d:%d], v14, s[60:63], s10 offen offset:%d sc1" % (r, r + 3, 128 * i))
    tags = []
    for k in range(7): tags += [64 + 4 * k + 1, 64 + 4 * k + 3]
    poll(iss, tags, 26, 27)
    STAMP_(4)
    wait_flag(4, FO(F_Q), 1, 26)
    I("v_mul_u32_u24 v15, 464, v9\nv_lshl_add_u32 v15, v10, 3, v15\nv_add_u32 v15, %d, v15" % HL)
    for i in range(7):
        I("ds_write2_b32 v15, v%d, v%d offset0:%d offset1:%d" % (64 + 4 * i, 64 + 4 * i + 2, 16 * i, 16 * i + 1))
    I("v_and_b32 v15, 7, v2\nv_mul_u32_u24 v15, 464, v15\nv_lshl_add_u32 v15, v3, 4, v15\nv_add_u32 v15, %d, v15" % HL)
    I("s_waitcnt lgkmcnt(0)")
    for t in range(7):
        I("ds_read_b128 v[%d:%d], v15 offset:%d" % (128 + 4 * t, 128 + 4 * t + 3, 64 * t))
    I("s_waitcnt lgkmcnt(0)")
    for t in range(7):
        c = "0" if t == 0 else "v[16:19]"
        I("v_mfma_f32_16x16x32_bf16 v[16:19], v[%d:%d], v[%d:%d], %s" % (160 + 4 * t, 160 + 4 * t + 3, 128 + 4 * t, 128 + 4 * t + 3, c))
    I("v_mul_u32_u24 v14, 28672, v2\nv_lshl_add_u32 v14, v3, 5, v14\nv_cmp_gt_u32 vcc, 8, v2\nv_cndmask_b32 v14, v13, v14, vcc")
    I("s_lshl_b32 s10, s9, 10\ns_lshl_b32 s11, s8, 7\ns_add_u32 s10, s10, s11\ns_add_u32 s10, s10, %d" % MBUF)
    I("v_mov_b32 v21, s44\nv_mov_b32 v23, s44\nv_mov_b32 v25, s44\nv_mov_b32 v27, s44")
    I("v_mov_b32 v20, v16\nv_mov_b32 v22, v17\nv_mov_b32 v24, v18\nv_mov_b32 v26, v19")
    I("buffer_store_dwordx4 v[20:23], v14, s[60:63], s10 offen sc1")
    I("buffer_store_dwordx4 v[24:27], v14, s[60:63], s10 offen offset:16 sc1")
    STAMP_(5)
    I("s_branch L_outproj")
    L("L_s1_done")
    I("s_waitcnt lgkmcnt(0)")
    I("s_mul_i32 s44, s44, 1664525\ns_add_u32 s44, s44, 1013904223")
    I("s_branch L_outproj")

    L("L_s23")
    I("s_cmp_eq_u32 s3, 6\ns_cbranch_scc1 L_s2_pre")
    C("wave 7: x -> LDS")
    srd(48, 16, 17, "7168")
    I("v_lshlrev_b32 v9, 4, v0\ns_mov_b32 m0, %d\ns_mov_b32 s12, 0" % XL)
    for i in range(7):
        if i == 4: I("s_mov_b32 m0, %d\ns_mov_b32 s12, 4096" % (XL + 4096))
        I("buffer_load_dwordx4 v9, s[48:51], s12 offen offset:%d lds" % ((i % 4) * 1024))
    I("s_barrier")
    STAMP_(1)
    I("s_waitcnt vmcnt(0)")
    set_flag_add(4, FO(F_X), 5)
    STAMP_(2)
    I("s_waitcnt lgkmcnt(0)")
    I("s_mul_i32 s44, s44, 1664525\ns_add_u32 s44, s44, 1013904223")
    I("s_branch L_softmax")
    L("L_s2_pre")
    C("wave 6: zero flags, issue w1 tile")
    I("v_lshlrev_b32 v9, 2, v0\nv_add_u32 v9, %d, v9\nv_mov_b32 v10, 0" % FLG)
    I("s_mov_b64 exec, 0xffff\nds_write_b32 v9, v10\ns_mov_b64 exec, -1")
    I("s_cmp_lt_u32 s9, 18\ns_cbranch_scc1 L_s2_nom1")
    I("s_sub_u32 s10, s9, 18\ns_mul_i32 s11, s8, 14\ns_add_u32 s10, s10, s11")
    I("s_mov_b32 s69, s10")
    I("s_lshl_b32 s10, s10, 5\ns_sub_u32 s11, %d, s10" % (448 * 3584))
    srd_add(56, 28, 29, "s10", "s11")
    I("v_lshrrev_b32 v9, 1, v0\nv_and_b32 v10, 1, v0\nv_lshlrev_b32 v10, 4, v10")
    I("v_mul_u32_u24 v11, 3584, v9\nv_add_u32 v11, v11, v10")
    I("s_mov_b32 s12, 0\ns_mov_b32 m0, %d" % W1T)
    for i in range(14):
        I("buffer_load_dwordx4 v11, s[56:59], s12 offen%s lds" % cfg.nt_w)
        if i < 13: I("s_add_u32 m0, m0, 1024\ns_add_u32 s12, s12, %d" % (32 * 3584))
    srd(64, 30, 31, "3584")
    I("v_lshlrev_b32 v14, 3, v3")
    I("buffer_load_dwordx2 v[24:25], v14, s[64:67], s10 offen")
    L("L_s2_nom1")
    I("s_waitcnt lgkmcnt(0)")
    I("s_barrier")
    STAMP_(1)
    I("s_mul_i32 s44, s44, 1664525\ns_add_u32 s44, s44, 1013904223")
    I("s_cmp_lt_u32 s9, 18\ns_cbranch_scc1 L_softmax")
    C("LayerNorm (wave 6, M1 workgroups)")
    wait_flag(4, FO(F_X), 1, 26)
    I("v_lshrrev_b32 v9, 3, v0\nv_and_b32 v10, 7, v0\nv_lshlrev_b32 v10, 4, v10")
    I("v_mul_u32_u24 v11, 896, v9\nv_add_u32 v11, v11, v10\nv_add_u32 v11, %d, v11" % XL)
    for i in range(7):
        I("ds_read_b128 v[%d:%d], v11 offset:%d" % (64 + 4 * i, 64 + 4 * i + 3, 128 * i))
    I("v_mul_u32_u24 v12, 912, v9\nv_add_u32 v12, v12, v10\nv_add_u32 v12, %d, v12" % YL)
    I("s_waitcnt lgkmcnt(0)")
    set_flag_add(4, FO(F_Y), 5)
    F = 128
    for k in range(28):
        I("v_lshlrev_b32 v%d, 16, v%d\nv_and_b32 v%d, 0xffff0000, v%d" % (F + 2 * k, 64 + k, F + 2 * k + 1, 64 + k))
    I("v_pk_add_f32 v[16:17], v[%d:%d], v[%d:%d]" % (F, F + 1, F + 2, F + 3))
    for k in range(2, 28):
        I("v_pk_add_f32 v[16:17], v[16:17], v[%d:%d]" % (F + 2 * k, F + 2 * k + 1))
    I("v_add_f32 v16, v16, v17")
    def red_p(v):
        for mod in ("quad_perm:[1,0,3,2]", "quad_perm:[2,3,0,1]", "row_half_mirror"):
            I("v_add_f32_dpp v%d, v%d, v%d %s row_mask:0xf bank_mask:0xf" % (v, v, v, mod))
    red_p(16)
    I("v_mul_f32 v16, 0x%08x, v16" % f2u(1.0 / 448))
    rnd_pair(18, 19, 16, 16, 17)
    I("v_sub_f32 v20, v16, v18")
    I("v_sub_f32 v18, 0, v18\nv_mov_b32 v19, v18")
    for k in range(28):
        I("v_pk_add_f32 v[%d:%d], v[%d:%d], v[18:19]" % (F + 2 * k, F + 2 * k + 1, F + 2 * k, F + 2 * k + 1))
    I("v_pk_mul_f32 v[16:17], v[%d:%d], v[%d:%d]" % (F, F + 1, F, F + 1))
    for k in range(1, 28):
        I("v_pk_fma_f32 v[16:17], v[%d:%d], v[%d:%d], v[16:17]" % (F + 2 * k, F + 2 * k + 1, F + 2 * k, F + 2 * k + 1))
    I("v_add_f32 v16, v16, v17")
    red_p(16)
    I("v_mul_f32 v16, 0x%08x, v16" % f2u(1.0 / 448))
    I("v_fma_f32 v16, -v20, v20, v16\nv_max_f32 v16, 0, v16")
    rnd_pair(16, 17, 16, 16, 21)
    I("v_add_f32 v16, 0x%08x, v16" % f2u(1e-5))
    rnd_pair(16, 17, 16, 16, 21)
    I("v_sqrt_f32 v16, v16")
    rnd_pair(16, 17, 16, 16, 21)
    I("v_rcp_f32 v16, v16")
    I("v_mov_b32 v17, v16")
    for k in range(28):
        I("v_pk_mul_f32 v[%d:%d], v[%d:%d], v[16:17]" % (F + 2 * k, F + 2 * k + 1, F + 2 * k, F + 2 * k + 1))
    for k in range(28):
        I("v_cvt_pk_bf16_f32 v%d, v%d, v%d" % (64 + k, F + 2 * k, F + 2 * k + 1))
    for i in range(7):
        I("ds_write_b128 v12, v[%d:%d] offset:%d" % (64 + 4 * i, 64 + 4 * i + 3, 128 * i))
    STAMP_(2)
    C("M1: h tile")
    I("s_waitcnt vmcnt(0) lgkmcnt(0)")
    I("v_mov_b32 v13, %d" % OOB)
    I("v_and_b32 v15, 7, v2\nv_mul_u32_u24 v15, 912, v15\nv_lshl_add_u32 v15, v3, 4, v15\nv_add_u32 v15, %d, v15" % YL)
    for t in range(14):
        I("ds_read_b128 v[%d:%d], v15 offset:%d" % (XF + 4 * t, XF + 4 * t + 3, 64 * t))
    I("v_add_u32 v15, %d, v6" % W1T)
    for t in range(14):
        I("ds_read_b64_tr_b16 v[%d:%d], v15 offset:%d" % (AF + 4 * t, AF + 4 * t + 1, 1024 * t))
        I("ds_read_b64_tr_b16 v[%d:%d], v15 offset:%d" % (AF + 4 * t + 2, AF + 4 * t + 3, 1024 * t + 128))
    I("s_waitcnt lgkmcnt(0)")
    for t in range(14):
        c = "0" if t == 0 else "v[16:19]"
        I("v_mfma_f32_16x16x32_bf16 v[16:19], v[%d:%d], v[%d:%d], %s" % (AF + 4 * t, AF + 4 * t + 3, XF + 4 * t, XF + 4 * t + 3, c))
    rnd_pair(16, 17, 16, 17, 26)
    rnd_pair(18, 19, 18, 19, 27)
    I("v_lshlrev_b32 v28, 16, v24\nv_and_b32 v29, 0xffff0000, v24\nv_lshlrev_b32 v30, 16, v25\nv_and_b32 v31, 0xffff0000, v25")
    for r in range(4): I("v_add_f32 v%d, v%d, v%d" % (16 + r, 16 + r, 28 + r))
    rnd_pair(16, 17, 16, 17, 26)
    rnd_pair(18, 19, 18, 19, 27)
    k0 = -2.0 * 0.7978845608028654 * 1.4426950408889634
    k1 = k0 * 0.044715
    I("s_mov_b32 s10, 0x%08x\ns_mov_b32 s11, 0x%08x" % (f2u(k0), f2u(k1)))
    I("v_mov_b32 v32, s10")
    for r in range(4):
        I("v_mul_f32 v%d, v%d, v%d" % (28 + r, 16 + r, 16 + r))
        I("v_fma_f32 v%d, v%d, s11, v32" % (28 + r, 28 + r))
        I("v_mul_f32 v%d, v%d, v%d" % (28 + r, 28 + r, 16 + r))
    for r in range(4): I("v_exp_f32 v%d, v%d" % (28 + r, 28 + r))
    for r in range(4): I("v_add_f32 v%d, 1.0, v%d" % (28 + r, 28 + r))
    for r in range(4): I("v_rcp_f32 v%d, v%d" % (28 + r, 28 + r))
    for r in range(4): I("v_mul_f32 v%d, v%d, v%d" % (16 + r, 16 + r, 28 + r))
    I("v_mov_b32 v21, s44\nv_mov_b32 v23, s44")
    I("v_cvt_pk_bf16_f32 v20, v16, v17\nv_cvt_pk_bf16_f32 v22, v18, v19")
    I("v_mul_u32_u24 v14, 7168, v2\nv_lshl_add_u32 v14, v3, 4, v14\nv_cmp_gt_u32 vcc, 8, v2\nv_cndmask_b32 v14, v13, v14, vcc")
    I("s_lshl_b32 s10, s69, 6\ns_add_u32 s10, s10, %d" % HBUF)
    I("buffer_store_dwordx4 v[20:23], v14, s[60:63], s10 offen sc1")
    STAMP_(6)
    L("L_softmax")
    C("softmax for head (wave-6)")
    wait_flag(4, FO(F_T2), 256, 26)
    STAMP_(3)
    I("s_lshl_b32 s10, s4, 3\ns_add_u32 s10, s10, s5\ns_lshl_b32 s10, s10, 13\ns_add_u32 s10, s10, %d\ns_add_u32 s11, s10, 4096" % SBUF)
    I("v_lshlrev_b32 v14, 4, v0")
    def iss():
        for i in range(8):
            I("buffer_load_dwordx4 v[%d:%d], v14, s[60:63], s%d offen offset:%d sc1" % (64 + 4 * i, 64 + 4 * i + 3, 10 + i // 4, (i % 4) * 1024))
    tags = []
    for k in range(8): tags += [64 + 4 * k + 1, 64 + 4 * k + 3]
    poll(iss, tags, 26, 27, after_first=lambda: set_flag_add(4, FO(F_SP), 5))
    STAMP_(4)
    I("s_mov_b32 s12, 0x01000c0c\ns_cmp_eq_u32 s3, 6\ns_cselect_b32 s12, s12, 0x03020c0c")
    F = 128
    for i in range(8):
        I("v_perm_b32 v%d, v%d, v%d, s12" % (F + 2 * i, 64 + 4 * i, 64 + 4 * i))
        I("v_perm_b32 v%d, v%d, v%d, s12" % (F + 2 * i + 1, 64 + 4 * i + 2, 64 + 4 * i + 2))
    I("v_max3_f32 v16, v%d, v%d, v%d" % (F, F + 1, F + 2))
    for k in range(3, 15, 2): I("v_max3_f32 v16, v16, v%d, v%d" % (F + k, F + k + 1))
    I("v_max_f32 v16, v16, v%d" % (F + 15))
    wave_reduce("v_max_f32", 16, 17)
    cexp = 1.4426950408889634 / 16.0
    I("s_mov_b32 s13, 0x%08x" % f2u(cexp))
    I("v_mul_f32 v16, s13, v16\nv_sub_f32 v16, 0, v16")
    for k in range(16): I("v_fma_f32 v%d, v%d, s13, v16" % (F + k, F + k))
    for k in range(16): I("v_exp_f32 v%d, v%d" % (F + k, F + k))
    I("v_add_f32 v17, v%d, v%d" % (F, F + 1))
    I("v_add_f32 v18, v%d, v%d" % (F + 2, F + 3))
    for k in range(4, 16, 2):
        I("v_add_f32 v17, v17, v%d\nv_add_f32 v18, v18, v%d" % (F + k, F + k + 1))
    I("v_add_f32 v17, v17, v18")
    wave_reduce("v_add_f32", 17, 18)
    I("v_rcp_f32 v17, v17")
    for k in range(16): I("v_mul_f32 v%d, v%d, v17" % (F + k, F + k))
    for i in range(8): I("v_cvt_pk_bf16_f32 v%d, v%d, v%d" % (64 + i, F + 2 * i, F + 2 * i + 1))
    I("s_sub_u32 s12, s3, 6\ns_lshl_b32 s12, s12, 11\ns_add_u32 s12, s12, %d" % PL)
    I("v_lshlrev_b32 v15, 2, v0\nv_add_u32 v15, s12, v15")
    for i in range(8): I("ds_write_b32 v15, v%d offset:%d" % (64 + i, 256 * i))
    set_flag_add(4, FO(F_P), 5)
    STAMP_(5)

    L("L_outproj")
    BF = 128
    wait_flag(4, FO(F_WO), 256, 26)
    STAMP_(8)
    I("s_sub_u32 s12, s3, 4\ns_mul_i32 s13, s12, 224")
    if WO: I("s_add_u32 s13, s13, %d" % WO)
    I("v_add_u32 v8, s13, v8\nv_add_u32 v9, 57344, v8")
    for t in range(4):
        for i in range(7):
            a = 8 if t < 2 else 9
            off = (t % 2) * 28672 + i * 32
            r = BF + 4 * (t * 7 + i)
            I("ds_read_b64_tr_b16 v[%d:%d], v%d offset:%d" % (r, r + 1, a, off))
            I("ds_read_b64_tr_b16 v[%d:%d], v%d offset:%d" % (r + 2, r + 3, a, off + 3584))
    I("v_and_b32 v10, 3, v0\nv_lshlrev_b32 v10, 8, v10\nv_lshl_add_u32 v10, v3, 4, v10\nv_add_u32 v10, %d, v10" % OA)
    I("v_lshlrev_b32 v11, 12, v3\nv_lshl_add_u32 v11, v2, 3, v11")
    I("v_mov_b32 v13, %d\nv_cmp_gt_u32 vcc, 48, v0\nv_cndmask_b32 v12, v13, v11, vcc" % OOB)
    I("s_mul_i32 s10, s4, 28\ns_mul_i32 s11, s12, 7\ns_add_u32 s10, s10, s11\ns_lshl_b32 s10, s10, 12\ns_lshl_b32 s11, s7, 7\ns_add_u32 s10, s10, s11\ns_add_u32 s10, s10, %d" % PBUF)
    I("s_add_u32 s11, s10, 16384")
    I("s_mov_b32 s48, 0xffff0000\ns_mov_b32 s49, 0\ns_mov_b32 s50, 0\ns_mov_b32 s51, 0x0000ffff\ns_mov_b32 s52, 0\ns_mov_b32 s53, 0xffff0000")
    I("v_mov_b32 v33, s44\nv_mov_b32 v35, s44")
    I("s_waitcnt lgkmcnt(0)")
    STAMP_(9)
    I("s_barrier")
    STAMP_(10)
    for t in range(4):
        I("ds_read_b128 v[%d:%d], v10 offset:%d" % (16 + 4 * t, 16 + 4 * t + 3, 64 * t))
    D = 64
    for t in range(4):
        I("s_waitcnt lgkmcnt(%d)" % (3 - t))
        for i in range(7):
            r = BF + 4 * (t * 7 + i)
            c = "0" if t == 0 else "v[%d:%d]" % (D + 4 * i, D + 4 * i + 3)
            I("v_mfma_f32_16x16x32_bf16 v[%d:%d], v[%d:%d], v[%d:%d], %s" % (D + 4 * i, D + 4 * i + 3, 16 + 4 * t, 16 + 4 * t + 3, r, r + 3, c))
    for i in range(7):
        I("v_add_f32 v%d, v%d, v%d" % (D + 4 * i, D + 4 * i, D + 4 * i + 1))
        I("v_add_f32 v%d, v%d, v%d" % (D + 4 * i + 2, D + 4 * i + 2, D + 4 * i + 3))
    for i in range(7):
        I("v_add_f32 v%d, v%d, v%d" % (D + 4 * i, D + 4 * i, D + 4 * i + 2))
    I("v_cndmask_b32 v32, v%d, v%d, s[48:49]" % (D, D + 4))
    I("v_cndmask_b32 v34, v%d, v%d, s[48:49]" % (D + 16, D + 20))
    I("v_cndmask_b32 v32, v32, v%d, s[50:51]" % (D + 8))
    I("v_cndmask_b32 v34, v34, v%d, s[50:51]" % (D + 24))
    I("v_cndmask_b32 v32, v32, v%d, s[52:53]" % (D + 12))
    I("buffer_store_dwordx2 v[32:33], v11, s[60:63], s10 offen sc1")
    I("buffer_store_dwordx2 v[34:35], v12, s[60:63], s11 offen sc1")
    STAMP_(11)
    I("s_cmp_eq_u32 s3, 4\ns_cbranch_scc0 L_sdone")
    I("s_cmp_ge_u32 s7, 28\ns_cbranch_scc1 L_sdone")
    C("final gather")
    I("s_mul_i32 s10, s4, 28\ns_add_u32 s10, s10, s7\ns_lshl_b32 s10, s10, 12\ns_add_u32 s10, s10, %d" % PBUF)
    I("v_lshlrev_b32 v14, 4, v0")
    def iss():
        for i in range(4):
            I("buffer_load_dwordx4 v[%d:%d], v14, s[60:63], s10 offen offset:%d sc1" % (64 + 4 * i, 64 + 4 * i + 3, 1024 * i))
    poll(iss, [65, 67, 69, 71, 73, 75, 77, 79], 26, 27, backoff=0)
    STAMP_(12)
    I("v_add_f32 v16, v64, v68\nv_add_f32 v18, v66, v70\nv_add_f32 v17, v72, v76\nv_add_f32 v19, v74, v78")
    I("v_add_f32 v16, v16, v17\nv_add_f32 v18, v18, v19")
    red8(16, 24); red8(18, 25)
    rnd_pair(16, 18, 16, 18, 26)
    I("v_mul_f32 v16, v16, v41\nv_mul_f32 v18, v18, v41")
    rnd_pair(16, 18, 16, 18, 26)
    I("v_add_f32 v16, v16, v43\nv_add_f32 v18, v18, v44")
    I("v_cvt_pk_bf16_f32 v16, v16, v18")
    srd(48, 38, 39, "7168")
    I("v_lshlrev_b32 v14, 2, v0\nv_cmp_gt_u32 vcc, 8, v0\nv_cndmask_b32 v14, v13, v14, vcc")
    I("s_mul_i32 s10, s4, 896\ns_lshl_b32 s11, s7, 5\ns_add_u32 s10, s10, s11")
    I("buffer_store_dword v16, v14, s[48:51], s10 offen")
    C("epoch update by workgroup 0")
    I("s_cmp_eq_u32 s2, 0\ns_cbranch_scc0 L_sdone")
    I("v_mov_b32 v16, s44\nv_mov_b32 v14, %d\nv_cmp_eq_u32 vcc, 0, v0\nv_cndmask_b32 v14, v13, v14, vcc" % EPOCH)
    I("buffer_store_dword v16, v14, s[60:63], 0 offen sc1")
    L("L_sdone")
    STAMP_(13)
    stamps_out()
    L("L_end")
    I("s_endpgm")

    body = e.finalize()
    hdr = open('gated_mix__sliding_block_cached__mixer_channel_mlp__decode.s.ref').read().split('\n')
    head = [l for l in hdr if l.startswith(';') and '@launch' not in l and 'Override launch' not in l]
    txt = "\n".join(head) + "\n; @launch grid=(256,1,1) block=(512,1,1) lds=%d\n" % LDS_SIZE
    txt += '.amdgcn_target "amdgcn-amd-amdhsa--gfx950"\n.text\n.globl %s\n.p2align 8\n.type %s,@function\n%s:\n' % (NAME, NAME, NAME)
    txt += body
    txt += '.section .rodata,"a"\n.p2align 6\n.amdhsa_kernel %s\n' % NAME
    txt += "  .amdhsa_next_free_vgpr 256\n  .amdhsa_next_free_sgpr 102\n  .amdhsa_accum_offset 256\n  .amdhsa_group_segment_fixed_size 0\n  .amdhsa_kernarg_size 112\n  .amdhsa_user_sgpr_count 2\n  .amdhsa_user_sgpr_kernarg_segment_ptr 1\n  .amdhsa_system_sgpr_workgroup_id_x 1\n.end_amdhsa_kernel\n"
    return txt

if __name__ == "__main__":
    cfg = Cfg()
    out = sys.argv[1] if len(sys.argv) > 1 else "gated_mix__sliding_block_cached__mixer_channel_mlp__decode.s"
    for a in sys.argv[2:]:
        k, v = a.split("=")
        setattr(cfg, k, eval(v))
    open(out, "w").write(gen(cfg))
    print("written", out)
```

```python
import sys, struct
from emit import Emitter

NAME = "gated_mix__sliding_block_cached__mixer_channel_mlp__decode_kernel"

WOT  = 0
WQT  = 16384
W1T  = WQT + 14336
W2T  = WQT + 28672
XL   = W2T + 7168
YL   = XL + 7168
QL   = YL + 7296
PL   = QL + 1024
OA   = PL + 4096
HL   = OA + 2048
OG   = HL + 2176
SG   = OG + 2176
FLG  = SG + 4096
F_Q, F_Y, F_S, F_P, F_WO, F_T1, F_T2, F_X, F_SP, F_K, F_G = [FLG + 4 * i for i in range(11)]
LDS_SIZE = FLG + 64
EPOCH = 0
QBUF = 4096
HBUF = QBUF + 131072
SBUF = 0x30000
MBUF = 0xB0000
PBUF = 0x120000
OBUF = 0x200000
STAMP = 0x220000
WS_RANGE = 0x400000
OOB = 0x7FFF0000

def f2u(x): return struct.unpack('<I', struct.pack('<f', x))[0]

class Cfg:
    wk = 8
    wv = 8
    nt_kv = " nt"
    nt_w = " nt"
    nt_wo = " nt"
    stamps = False
    qpos = 40
    sched = None
    pat = 'VW' * 8 + 'WWV' * 10 + 'V' * 14
    maxpoll = 20000
    prio = 3
    wo_by = 'S0'
    tq_swap = True
    w2_win = 7
    wo_win = 6
    w2_trig = None
    wo_trig = None
    kflag_slot = 31
    pretouch = False
    tail_backoff = 0
    wo_rot = True
    s0_w = 'after_q'
    mapping = 'kx'
    s0_early_bar = False
    h_trig = 'F_T1'
    wk_pre = 2
    late_tiles = True
    t1 = 20
    t2 = 47
    backoff = 4

def default_sched(cfg):
    s = [('K', n // 8, n % 8) for n in range(32)]
    s += [('V', T, j) for T in range(4) for j in range(8)]
    return s

def gen(cfg):
    e = Emitter(); I = e.I; L = e.L; C = e.C
    nst = [0]
    def STAMP_(i):
        if cfg.stamps: I("s_memrealtime s[%d:%d]" % (70 + 2 * i, 71 + 2 * i))
    def stamps_out():
        if not cfg.stamps: return
        I("s_waitcnt vmcnt(0) lgkmcnt(0)")
        I("s_lshl_b32 s8, s2, 3\ns_add_u32 s8, s8, s3\ns_lshl_b32 s8, s8, 7\ns_add_u32 s8, s8, %d" % STAMP)
        I("v_mov_b32 v1, 0")
        I("s_mov_b64 exec, 1")
        for k in range(8):
            for q in range(4): I("v_mov_b32 v%d, s%d" % (4 + q, 70 + 4 * k + q))
            I("buffer_store_dwordx4 v[4:7], v1, s[60:63], s8 offen offset:%d" % (16 * k))
            I("s_nop 1")
        I("s_waitcnt vmcnt(0)")
    uid = [0]
    def lab(p):
        uid[0] += 1
        return "L_%s_%d" % (p, uid[0])
    def srd(n, lo, hi, nrec):
        I("s_mov_b32 s%d, s%d\ns_mov_b32 s%d, s%d\ns_mov_b32 s%d, %s\ns_mov_b32 s%d, 0x20000" % (n, lo, n + 1, hi, n + 2, nrec, n + 3))
    def srd_add(n, lo, hi, off_sgpr, nrec):
        I("s_add_u32 s%d, s%d, %s\ns_addc_u32 s%d, s%d, 0\ns_mov_b32 s%d, %s\ns_mov_b32 s%d, 0x20000" % (n, lo, off_sgpr, n + 1, hi, n + 2, nrec, n + 3))
    def wait_flag(addr_v, off, val, tmpv, cmp="ge"):
        lp = lab("fl"); dn = lab("fld")
        I("s_mov_b32 s45, 0x100000")
        L(lp)
        I("ds_read_b32 v%d, v%d offset:%d" % (tmpv, addr_v, off))
        I("s_waitcnt lgkmcnt(0)")
        I("v_readfirstlane_b32 s46, v%d" % tmpv)
        I("s_cmp_ge_u32 s46, %d" % val)
        I("s_cbranch_scc1 %s" % dn)
        I("s_sub_u32 s45, s45, 1")
        I("s_cmp_lg_u32 s45, 0")
        I("s_cbranch_scc1 %s" % lp)
        L(dn)
    def set_flag_add(addr_v, off, onev):
        I("ds_add_u32 v%d, v%d offset:%d" % (addr_v, onev, off))
    def check_tags(tags, vmin, vmax, lanemask=None):
        t = list(tags)
        if len(t) % 2 == 1: t.append(t[-1])
        I("v_min_u32 v%d, v%d, v%d" % (vmin, t[0], t[1]))
        I("v_max_u32 v%d, v%d, v%d" % (vmax, t[0], t[1]))
        for k in range(2, len(t), 2):
            I("v_min3_u32 v%d, v%d, v%d, v%d" % (vmin, vmin, t[k], t[k + 1]))
            I("v_max3_u32 v%d, v%d, v%d, v%d" % (vmax, vmax, t[k], t[k + 1]))
        I("v_cmp_ne_u32 vcc, s44, v%d" % vmin)
        I("v_cmp_ne_u32 s[46:47], s44, v%d" % vmax)
        I("s_or_b64 vcc, vcc, s[46:47]")
        if lanemask: I("s_and_b64 vcc, vcc, %s" % lanemask)
        I("s_cmp_eq_u64 vcc, 0")
    def poll(issue, tags, vmin, vmax, lanemask=None, backoff=cfg.backoff, after_first=None):
        lp = lab("pl"); dn = lab("pld")
        I("s_mov_b32 s45, %d" % cfg.maxpoll)
        if after_first:
            issue(); after_first()
            I("s_branch %s_w" % lp)
        L(lp)
        issue()
        if after_first: L(lp + "_w")
        I("s_waitcnt vmcnt(0)")
        check_tags(tags, vmin, vmax, lanemask)
        I("s_cbranch_scc1 %s" % dn)
        if backoff: I("s_sleep %d" % backoff)
        I("s_sub_u32 s45, s45, 1")
        I("s_cmp_lg_u32 s45, 0")
        I("s_cbranch_scc1 %s" % lp)
        L(dn)
    def rnd_pair(dst_lo, dst_hi, a, b, tmp):
        I("v_cvt_pk_bf16_f32 v%d, v%d, v%d" % (tmp, a, b))
        I("v_lshlrev_b32 v%d, 16, v%d" % (dst_lo, tmp))
        I("v_and_b32 v%d, 0xffff0000, v%d" % (dst_hi, tmp))
    def wave_reduce(op, v, t):
        for mod in ("quad_perm:[1,0,3,2]", "quad_perm:[2,3,0,1]", "row_half_mirror", "row_mirror"):
            I("%s_dpp v%d, v%d, v%d %s row_mask:0xf bank_mask:0xf" % (op, v, v, v, mod))
        for sw in ("v_permlane16_swap_b32", "v_permlane32_swap_b32"):
            I("v_mov_b32 v%d, v%d" % (t, v))
            I("%s v%d, v%d" % (sw, v, t))
            I("%s v%d, v%d, v%d" % (op, v, v, t))

    def tq_calc(dst):
        I("s_lshr_b32 %s, s9, 1" % dst)
        if cfg.tq_swap:
            I("s_and_b32 s46, %s, 6\ns_cmp_eq_u32 s46, 6\ns_cselect_b32 s46, 8, 0\ns_xor_b32 %s, %s, s46" % (dst, dst, dst))

    def wo_tile(skip):
        I("s_cmp_eq_u32 s4, 7\ns_cbranch_scc1 %s" % skip)
        I("s_lshl_b32 s10, s5, 9\ns_lshl_b32 s11, s6, 6\ns_add_u32 s10, s10, s11\ns_mul_i32 s10, s10, 896\ns_lshl_b32 s11, s4, 7\ns_add_u32 s10, s10, s11")
        I("s_sub_u32 s11, %d, s10" % (4096 * 896))
        srd_add(52, 24, 25, "s10", "s11")
        I("v_lshrrev_b32 v9, 3, v0\nv_mul_u32_u24 v9, 896, v9\nv_and_b32 v10, 7, v0\nv_lshl_add_u32 v9, v10, 4, v9")
        if cfg.wo_trig: wait_flag(4, FO(eval(cfg.wo_trig)), 256, 26)
        I("s_mov_b32 m0, %d\ns_mov_b32 s12, 0" % WOT)
        for i in range(16):
            if i >= cfg.wo_win: I("s_waitcnt vmcnt(%d)" % (cfg.wo_win - 1))
            I("buffer_load_dwordx4 v9, s[52:55], s12 offen%s lds" % cfg.nt_wo)
            if i < 15: I("s_add_u32 m0, m0, 1024\ns_add_u32 s12, s12, %d" % (8 * 896 if i != 7 else (256 - 56) * 896))
        I("s_waitcnt vmcnt(0)")

    I("s_cmp_ge_u32 s2, 256")
    I("s_cbranch_scc1 L_end")
    I("s_load_dwordx16 s[16:31], s[0:1], 0")
    I("s_load_dwordx8 s[32:39], s[0:1], 64")
    I("s_load_dwordx4 s[40:43], s[0:1], 96")
    if cfg.stamps:
        for k in range(70, 102): I("s_mov_b32 s%d, 0" % k)
    STAMP_(0)
    I("v_lshrrev_b32 v1, 6, v0")
    I("v_and_b32 v0, 63, v0")
    I("v_readfirstlane_b32 s3, v1")
    I("s_lshr_b32 s4, s2, 5")
    if cfg.mapping == "kx":
        I("s_and_b32 s5, s2, 7")
        I("s_bfe_u32 s6, s2, 0x20003")
    else:
        I("s_bfe_u32 s5, s2, 0x30002")
        I("s_and_b32 s6, s2, 3")
    I("s_and_b32 s7, s2, 31")
    I("s_and_b32 s8, s2, 7")
    I("s_lshr_b32 s9, s2, 3")
    I("v_and_b32 v2, 15, v0")
    I("v_lshrrev_b32 v3, 4, v0")
    I("v_mov_b32 v4, %d" % FLG)
    I("v_mov_b32 v5, 1")
    I("s_waitcnt lgkmcnt(0)")
    I("s_load_dword s44, s[42:43], %d" % EPOCH)
    srd(60, 42, 43, hex(WS_RANGE))
    I("s_cmp_ge_u32 s3, 4")
    I("s_cbranch_scc1 L_service")
    FO = lambda f: f - FLG

    C("bulk waves")
    KR = 64; VB = 192; QA = 32; PF = 16; SACC = 224
    vreg = {0: VB, 1: KR, 2: KR + 32, 3: KR + 64}
    TMP = KR + 96
    I("s_lshl_b32 s10, s4, 3\ns_add_u32 s10, s10, s5")
    I("s_lshl_b32 s11, s10, 21\ns_add_u32 s11, s11, %d" % (3072 * 512))
    I("s_lshl_b32 s12, s6, 15\ns_lshl_b32 s13, s3, 13\ns_add_u32 s12, s12, s13")
    I("s_sub_u32 s14, %d, s12" % 524288)
    I("s_add_u32 s12, s12, s11")
    srd_add(48, 18, 19, "s12", "s14")
    I("s_mov_b32 s64, 0\ns_mov_b32 s65, 0x20000\ns_mov_b32 s66, 0x40000\ns_mov_b32 s67, 0x60000")
    I("v_bfe_u32 v6, v0, 2, 2\nv_lshlrev_b32 v6, 11, v6\nv_lshl_add_u32 v6, v3, 6, v6\nv_and_b32 v7, 3, v0\nv_lshl_add_u32 v6, v7, 4, v6")
    def bulk_setup_b():
        I("s_lshl_b32 s12, s3, 15\ns_lshl_b32 s13, s6, 7\ns_add_u32 s12, s12, s13")
        I("s_sub_u32 s14, %d, s12" % 524288)
        I("s_add_u32 s12, s12, s11")
        srd_add(52, 20, 21, "s12", "s14")
        I("v_lshrrev_b32 v7, 3, v0\nv_lshlrev_b32 v7, 12, v7\nv_and_b32 v8, 7, v0\nv_lshl_add_u32 v7, v8, 4, v7")
        I("v_lshlrev_b32 v9, 11, v3\nv_lshl_add_u32 v9, v2, 3, v9")
        I("s_lshl_b32 s15, s10, 13\ns_lshl_b32 s12, s6, 9\ns_add_u32 s15, s15, s12\ns_lshl_b32 s12, s3, 7\ns_add_u32 s15, s15, s12\ns_add_u32 s15, s15, %d" % SBUF)
        I("v_bfe_u32 v10, v0, 2, 1\nv_lshlrev_b32 v10, 9, v10\nv_lshl_add_u32 v10, v3, 6, v10\nv_and_b32 v11, 3, v0\nv_lshl_add_u32 v10, v11, 4, v10\nv_add_u32 v10, %d, v10" % QL)
        I("v_bfe_u32 v11, v0, 1, 1\nv_lshlrev_b32 v11, 11, v11\nv_lshl_add_u32 v11, v3, 5, v11\nv_and_b32 v12, 1, v0\nv_lshl_add_u32 v11, v12, 4, v11")
        I("s_lshl_b32 s12, s3, 7\ns_add_u32 s12, s12, %d\nv_add_u32 v11, s12, v11" % PL)
        I("v_and_b32 v12, 7, v0\nv_lshlrev_b32 v12, 5, v12\ns_lshl_b32 s12, s3, 9\ns_add_u32 s12, s12, %d\nv_add_u32 v12, s12, v12" % OA)
        I("s_mov_b32 s68, 0x05040100\ns_mov_b32 s69, 0x07060302")
        I("s_mov_b32 s47, 0")
        I("s_mov_b32 s16, 0xffff0000\ns_mov_b32 s17, 0\ns_mov_b32 s18, 0\ns_mov_b32 s19, 0x0000ffff\ns_mov_b32 s20, 0\ns_mov_b32 s21, 0xffff0000")
        I("s_mov_b32 s22, 0x22222222\ns_mov_b32 s23, 0x22222222\ns_mov_b32 s24, 0x44444444\ns_mov_b32 s25, 0x44444444\ns_mov_b32 s26, 0x88888888\ns_mov_b32 s27, 0x88888888")
        I("s_barrier")
        STAMP_(1)
    sched = cfg.sched or default_sched(cfg)
    ops = []
    def outstanding_after(opid):
        return len(ops) - 1 - ops.index(opid)
    def wait_op(opid):
        n = outstanding_after(opid)
        I("s_waitcnt vmcnt(%d)" % min(n, 63))
    tag_ready = [False]
    def ensure_tag():
        if not tag_ready[0]:
            I("s_waitcnt lgkmcnt(0)")
            I("s_mul_i32 s44, s44, 1664525\ns_add_u32 s44, s44, 1013904223")
            I("v_mov_b32 v%d, s44" % (SACC + 5))
            tag_ready[0] = True
    DQ = QA + 8
    def score_tile(T):
        C("scores tile %d" % T)
        wait_op(('K', T, 7))
        for hf in range(2):
            for G in range(4):
                c = "0" if hf == 0 else "v[%d:%d]" % (DQ + 4 * G, DQ + 4 * G + 3)
                r = KR + 32 * T + 4 * (2 * G + hf)
                I("v_mfma_f32_16x16x32_bf16 v[%d:%d], v[%d:%d], v[%d:%d], %s" % (DQ + 4 * G, DQ + 4 * G + 3, QA + 4 * hf, QA + 4 * hf + 3, r, r + 3, c))
        t = QA + 24
        for G in range(4):
            I("v_mov_b32_dpp v%d, v%d quad_perm:[0,0,0,0] row_mask:0xf bank_mask:0xf" % (t + G, DQ + 4 * G))
        for c in range(1, 4):
            for G in range(4):
                I("v_add_f32_dpp v%d, v%d, v%d quad_perm:[%d,%d,%d,%d] row_mask:0xf bank_mask:0xf" % (t + G, DQ + 4 * G + c, t + G, c, c, c, c))
        I("v_cndmask_b32 v%d, v%d, v%d, s[22:23]" % (t, t, t + 1))
        I("v_cndmask_b32 v%d, v%d, v%d, s[24:25]" % (t, t, t + 2))
        I("v_cndmask_b32 v%d, v%d, v%d, s[26:27]" % (t, t, t + 3))
        I("v_mov_b32 v%d, v%d" % (t + 1, t))
        I("v_permlane16_swap_b32 v%d, v%d" % (t, t + 1))
        I("v_cvt_pk_bf16_f32 v%d, v%d, v%d" % (SACC + T, t, t + 1))
        if T == 3:
            I("v_cndmask_b32 v%d, v%d, v%d, s[16:17]" % (SACC + 4, SACC, SACC + 1))
            I("v_cndmask_b32 v%d, v%d, v%d, s[18:19]" % (SACC + 4, SACC + 4, SACC + 2))
            I("v_cndmask_b32 v%d, v%d, v%d, s[20:21]" % (SACC + 4, SACC + 4, SACC + 3))
            I("buffer_store_dwordx2 v[%d:%d], v9, s[60:63], s15 offen sc1" % (SACC + 4, SACC + 5))
            ops.append(('S', T))
    first_v = min(i for i, o in enumerate(sched) if o[0] == 'V')
    last_k = max(i for i, o in enumerate(sched) if o[0] == 'K')
    qpos = cfg.qpos
    tiles_done = 0
    scores_flagged = False
    wo_flagged = False
    for si, o in enumerate(sched):
        win = cfg.wk if si <= last_k else cfg.wv
        if si == cfg.wk_pre: bulk_setup_b()
        if len(ops) >= win and not (qpos < si <= qpos + 3):
            sk = None
            if scores_flagged:
                sk = lab("sk")
                I("s_cmp_lg_u32 s47, 0")
                I("s_cbranch_scc1 %s" % sk)
            I("s_waitcnt vmcnt(%d)" % (win - 1))
            if sk and si > cfg.t2:
                I("ds_read_b32 v13, v4 offset:%d" % FO(F_SP))
                I("s_waitcnt lgkmcnt(0)")
                I("v_readfirstlane_b32 s46, v13")
                I("s_lshr_b32 s47, s46, 6")
            if sk: L(sk)
        if si == cfg.t1:
            set_flag_add(4, FO(F_T1), 5); STAMP_(10)
        if si == qpos:
            C("wait q")
            STAMP_(2)
            ensure_tag()
            wait_flag(4, FO(F_Q), 1, 13)
            for hf in range(2):
                I("ds_read_b128 v[%d:%d], v10 offset:%d" % (QA + 4 * hf, QA + 4 * hf + 3, 256 * hf))
            I("s_waitcnt lgkmcnt(0)")
            STAMP_(3)
        if si >= qpos and tiles_done < 4:
            T = tiles_done
            score_tile(T); tiles_done += 1
            if tiles_done == 4:
                set_flag_add(4, FO(F_S), 5); scores_flagged = True
                STAMP_(4)
        if si == cfg.t2:
            set_flag_add(4, FO(F_T2), 5); STAMP_(11)
        if o[0] == 'K':
            _, T, t = o
            I("buffer_load_dwordx4 v[%d:%d], v6, s[48:51], s%d offen offset:%d%s" % (KR + 32 * T + 4 * t, KR + 32 * T + 4 * t + 3, 64 + T, 512 * (t // 2) + 256 * (t % 2), cfg.nt_kv))
            if si == cfg.kflag_slot:
                set_flag_add(4, FO(F_K), 5)
            if si == last_k: STAMP_(12)
        elif o[0] == 'V':
            _, T, j = o
            if T >= 1: assert tiles_done > T - 1, "V tile overwrites K tile not yet consumed"
            r = vreg[T] + 4 * j
            I("buffer_load_dwordx4 v[%d:%d], v7, s[52:55], s%d offen offset:%d%s" % (r, r + 3, 64 + T, 512 * j, cfg.nt_kv))
        else:
            i = o[1]
            if i >= 21: assert si > qpos, "wo chunk overlays x before q flag"
            if i % 4 == 0:
                I("s_add_u32 m0, s13, %d" % (i * 1024))
                I("s_mov_b32 s14, %d" % (i * 1024))
            I("buffer_load_dwordx4 v8, s[56:59], s14 offen offset:%d%s lds" % ((i % 4) * 1024, cfg.nt_wo))
        ops.append(o)
    assert tiles_done == 4
    STAMP_(6)
    dstT = {0: TMP, 1: VB, 2: KR, 3: KR + 32}
    def pv_perm(T):
        C("transpose V tile %d" % T)
        wait_op(('V', T, 7))
        R = vreg[T]; Dd = dstT[T]
        for jp in range(8):
            sel = "s68" if jp % 2 == 0 else "s69"
            for i in range(4):
                I("v_perm_b32 v%d, v%d, v%d, %s" % (Dd + 4 * jp + i, R + 4 * (2 * i + 1) + jp // 2, R + 4 * (2 * i) + jp // 2, sel))
    def pv_mfma(T):
        for q in range(8):
            c = "0" if T == 0 else "v[%d:%d]" % (QA + 4 * q, QA + 4 * q + 3)
            I("v_mfma_f32_16x16x32_bf16 v[%d:%d], v[%d:%d], v[%d:%d], %s" % (QA + 4 * q, QA + 4 * q + 3, PF + 4 * T, PF + 4 * T + 3, dstT[T] + 4 * q, dstT[T] + 4 * q + 3, c))
    for T in range(3): pv_perm(T)
    I("ds_read_b32 v13, v4 offset:%d" % FO(F_P))
    I("s_waitcnt lgkmcnt(0)")
    I("v_readfirstlane_b32 s46, v13")
    I("s_lshr_b32 s47, s46, 7")
    I("s_cmp_lg_u32 s47, 0")
    I("s_cbranch_scc1 L_p_early")
    pv_perm(3)
    C("wait p")
    wait_flag(4, FO(F_P), 128, 13)
    L("L_p_early")
    for T in range(4):
        I("ds_read_b128 v[%d:%d], v11 offset:%d" % (PF + 4 * T, PF + 4 * T + 3, 512 * T))
    STAMP_(7)
    for T in range(3):
        I("s_waitcnt lgkmcnt(%d)" % (3 - T))
        pv_mfma(T)
    I("s_cmp_lg_u32 s47, 0")
    I("s_cbranch_scc0 L_p_late")
    pv_perm(3)
    L("L_p_late")
    I("s_waitcnt lgkmcnt(0)")
    pv_mfma(3)
    STAMP_(8)
    C("u-sum, pack, write OA")
    OS = 64
    for h in range(2):
        for jp in range(8):
            I("v_add_f32_dpp v%d, v%d, v%d row_ror:8 row_mask:0xf bank_mask:0xf" % (OS + 8 * h + jp, QA + 4 * jp + 2 * h + 1, QA + 4 * jp + 2 * h))
    I("s_mov_b64 exec, 0xff")
    for h in range(2):
        I("ds_write_b128 v12, v[%d:%d] offset:%d" % (OS + 8 * h, OS + 8 * h + 3, 256 * h))
        I("ds_write_b128 v12, v[%d:%d] offset:%d" % (OS + 8 * h + 4, OS + 8 * h + 7, 256 * h + 16))
    I("s_mov_b64 exec, -1")
    I("s_waitcnt lgkmcnt(0)")
    I("s_barrier")
    STAMP_(9)
    stamps_out()
    I("s_endpgm")

    L("L_service")
    if cfg.prio: I("s_setprio %d" % cfg.prio)
    I("s_mov_b32 s14, 0x00ff00ff\ns_mov_b32 s15, 0x00ff00ff")
    I("v_cmp_gt_u32 vcc, 8, v2")
    I("v_lshrrev_b32 v6, 2, v2\nv_lshl_add_u32 v6, v3, 3, v6")
    I("v_and_b32 v7, 3, v2\nv_lshlrev_b32 v7, 3, v7")
    I("v_mul_u32_u24 v8, 896, v6\nv_add_u32 v8, v8, v7")
    I("v_lshl_add_u32 v6, v6, 5, v7")
    I("s_cmp_eq_u32 s3, 4\ns_cbranch_scc1 L_s0")
    I("s_cmp_eq_u32 s3, 5\ns_cbranch_scc1 L_s1")
    I("s_branch L_s23")

    XF = 64; AF = 128
    L("L_s0")
    C("S0: wq tile DMA (even idx), gate_w, b2")
    if cfg.s0_early_bar:
        I("s_barrier"); STAMP_(1)
    I("s_bitcmp1_b32 s9, 0\ns_cbranch_scc1 L_s0_noq1")
    tq_calc("s11")
    I("s_lshl_b32 s10, s8, 10\ns_lshl_b32 s11, s11, 6\ns_add_u32 s10, s10, s11")
    I("s_sub_u32 s11, %d, s10" % (448 * 8192))
    srd_add(48, 22, 23, "s10", "s11")
    I("v_lshrrev_b32 v9, 2, v0\nv_and_b32 v10, 3, v0\nv_lshlrev_b32 v10, 4, v10")
    I("v_lshl_add_u32 v11, v9, 13, v10")
    I("s_mov_b32 s12, 0\ns_mov_b32 m0, %d" % WQT)
    for i in range(28):
        I("buffer_load_dwordx4 v11, s[48:51], s12 offen%s lds" % cfg.nt_w)
        if i < 27: I("s_add_u32 m0, m0, 1024\ns_add_u32 s12, s12, 0x20000")
    L("L_s0_noq1")
    I("v_mov_b32 v13, %d" % OOB)
    srd(52, 36, 37, "896")
    I("v_lshlrev_b32 v14, 4, v0\nv_cmp_gt_u32 vcc, 56, v0\nv_cndmask_b32 v14, v13, v14, vcc")
    I("buffer_load_dwordx4 v[36:39], v14, s[52:55], 0 offen")
    srd(56, 34, 35, "896")
    I("v_and_b32 v15, 7, v0\nv_lshlrev_b32 v15, 2, v15\ns_lshl_b32 s10, s7, 5")
    I("buffer_load_dword v52, v15, s[56:59], s10 offen")
    if not cfg.s0_early_bar:
        I("s_barrier"); STAMP_(1)
    wait_flag(4, FO(F_X), 1, 26)
    I("v_and_b32 v12, 7, v2\nv_mul_u32_u24 v12, 896, v12\nv_lshl_add_u32 v12, v3, 4, v12\nv_add_u32 v12, %d, v12" % XL)
    for t in range(14):
        I("ds_read_b128 v[%d:%d], v12 offset:%d" % (XF + 4 * t, XF + 4 * t + 3, 64 * t))
    I("s_mul_i32 s10, s4, 896\ns_add_u32 s10, s10, %d" % XL)
    I("v_min_u32 v14, 55, v0\nv_lshlrev_b32 v14, 4, v14\nv_add_u32 v14, s10, v14")
    I("ds_read_b128 v[32:35], v14")
    I("s_waitcnt vmcnt(0) lgkmcnt(0)")
    STAMP_(2)
    I("s_mul_i32 s44, s44, 1664525\ns_add_u32 s44, s44, 1013904223")
    I("s_bitcmp1_b32 s9, 0\ns_cbranch_scc1 L_s0_noq2")
    I("v_lshrrev_b32 v15, 2, v2\nv_lshl_add_u32 v15, v3, 3, v15\nv_lshlrev_b32 v15, 6, v15\nv_add_u32 v15, v15, v7\nv_add_u32 v15, %d, v15" % WQT)
    for t in range(14):
        for ct in range(2):
            r = AF + 8 * t + 4 * ct
            I("ds_read_b64_tr_b16 v[%d:%d], v15 offset:%d" % (r, r + 1, 2048 * t + 32 * ct))
            I("ds_read_b64_tr_b16 v[%d:%d], v15 offset:%d" % (r + 2, r + 3, 2048 * t + 32 * ct + 256))
    I("s_waitcnt lgkmcnt(0)")
    for t in range(14):
        for ct in range(2):
            d = 16 + 4 * ct
            c = "0" if t == 0 else "v[%d:%d]" % (d, d + 3)
            r = AF + 8 * t + 4 * ct
            I("v_mfma_f32_16x16x32_bf16 v[%d:%d], v[%d:%d], v[%d:%d], %s" % (d, d + 3, r, r + 3, XF + 4 * t, XF + 4 * t + 3, c))
    I("v_lshlrev_b32 v14, 11, v2\nv_lshl_add_u32 v14, v3, 4, v14\nv_cmp_gt_u32 vcc, 8, v2\nv_cndmask_b32 v14, v13, v14, vcc")
    tq_calc("s11")
    I("s_lshl_b32 s10, s8, 14\ns_lshl_b32 s11, s11, 7\ns_add_u32 s10, s10, s11\ns_add_u32 s10, s10, %d" % QBUF)
    I("v_mov_b32 v57, s44\nv_mov_b32 v59, s44\nv_mov_b32 v61, s44\nv_mov_b32 v63, s44")
    I("v_cvt_pk_bf16_f32 v56, v16, v17\nv_cvt_pk_bf16_f32 v58, v18, v19\nv_cvt_pk_bf16_f32 v60, v20, v21\nv_cvt_pk_bf16_f32 v62, v22, v23")
    I("buffer_store_dwordx4 v[56:59], v14, s[60:63], s10 offen sc1")
    I("buffer_store_dwordx4 v[60:63], v14, s[60:63], s10 offen offset:64 sc1")
    L("L_s0_noq2")
    STAMP_(3)
    C("gate (lanes >= 56 have gate_w = 0)")
    for q in range(4):
        I("v_lshlrev_b32 v%d, 16, v%d\nv_and_b32 v%d, 0xffff0000, v%d" % (24 + 2 * q, 32 + q, 25 + 2 * q, 32 + q))
        I("v_lshlrev_b32 v%d, 16, v%d\nv_and_b32 v%d, 0xffff0000, v%d" % (40 + 2 * q, 36 + q, 41 + 2 * q, 36 + q))
    for k in range(8): I("v_mul_f32 v%d, v%d, v%d" % (24 + k, 24 + k, 40 + k))
    for q in range(4): rnd_pair(24 + 2 * q, 25 + 2 * q, 24 + 2 * q, 25 + 2 * q, 32)
    I("v_add_f32 v24, v24, v25\nv_add_f32 v26, v26, v27\nv_add_f32 v28, v28, v29\nv_add_f32 v30, v30, v31")
    I("v_add_f32 v24, v24, v26\nv_add_f32 v28, v28, v30\nv_add_f32 v24, v24, v28")
    wave_reduce("v_add_f32", 24, 25)
    rnd_pair(24, 25, 24, 24, 26)
    I("v_mul_f32 v24, 0x%08x, v24" % f2u(-1.4426950408889634))
    I("v_exp_f32 v24, v24\nv_add_f32 v24, 1.0, v24\nv_rcp_f32 v24, v24")
    rnd_pair(50, 25, 24, 24, 26)
    I("v_sub_f32 v24, 1.0, v50")
    rnd_pair(51, 25, 24, 24, 26)
    STAMP_(4)
    C("q gather")
    wait_flag(4, FO(F_T1), 256, 26)
    I("s_lshl_b32 s10, s5, 3\ns_add_u32 s10, s10, s4\ns_lshl_b32 s10, s10, 11\ns_add_u32 s10, s10, %d" % QBUF)
    I("v_lshlrev_b32 v14, 4, v0")
    STAMP_(5)
    def iss():
        I("buffer_load_dwordx4 v[16:19], v14, s[60:63], s10 offen sc1")
        I("buffer_load_dwordx4 v[20:23], v14, s[60:63], s10 offen offset:1024 sc1")
    poll(iss, [17, 19, 21, 23], 26, 27)
    I("v_lshlrev_b32 v15, 3, v0\nv_add_u32 v15, %d, v15" % QL)
    I("ds_write2_b32 v15, v16, v18 offset0:0 offset1:1")
    I("ds_write2_b32 v15, v20, v22 offset0:128 offset1:129")
    set_flag_add(4, FO(F_Q), 5)
    STAMP_(6)
    if cfg.wo_by == 'S0':
        wo_tile('L_s0_wo')
        L('L_s0_wo')
        set_flag_add(4, FO(F_WO), 5)
    C("MLP partial gather (owners)")
    I("s_cmp_ge_u32 s7, 28\ns_cbranch_scc1 L_s0_nomlp")
    wait_flag(4, FO(F_T2), 256, 26)
    I("s_mul_i32 s10, s4, 28\ns_add_u32 s10, s10, s7\ns_lshl_b32 s10, s10, 11\ns_add_u32 s10, s10, %d" % MBUF)
    I("v_lshlrev_b32 v14, 4, v0")
    def iss():
        I("buffer_load_dwordx4 v[16:19], v14, s[60:63], s10 offen sc1")
        I("buffer_load_dwordx4 v[20:23], v14, s[60:63], s10 offen offset:1024 sc1")
    poll(iss, [17, 19, 21, 23], 26, 27)
    I("v_add_f32 v16, v16, v20\nv_add_f32 v18, v18, v22")
    def red8(v, t):
        I("v_add_f32_dpp v%d, v%d, v%d row_ror:8 row_mask:0xf bank_mask:0xf" % (v, v, v))
        for sw in ("v_permlane16_swap_b32", "v_permlane32_swap_b32"):
            I("v_mov_b32 v%d, v%d" % (t, v)); I("%s v%d, v%d" % (sw, v, t)); I("v_add_f32 v%d, v%d, v%d" % (v, v, t))
    red8(16, 24); red8(18, 25)
    rnd_pair(16, 18, 16, 18, 26)
    I("v_lshlrev_b32 v24, 16, v52\nv_and_b32 v25, 0xffff0000, v52")
    I("v_add_f32 v16, v16, v24\nv_add_f32 v18, v18, v25")
    rnd_pair(16, 18, 16, 18, 26)
    I("v_mul_f32 v16, v16, v51\nv_mul_f32 v18, v18, v51")
    rnd_pair(53, 54, 16, 18, 26)
    L("L_s0_nomlp")
    STAMP_(7)
    I("s_branch L_outproj")

    L("L_s1")
    I("s_barrier")
    STAMP_(1)
    I("s_waitcnt lgkmcnt(0)")
    I("s_mul_i32 s44, s44, 1664525\ns_add_u32 s44, s44, 1013904223")
    I("s_cmp_ge_u32 s9, 28\ns_cbranch_scc1 L_outproj")
    C("M2: w2 tile [112 rows x 32 columns]; s12 = k range (0..15), s13 = column tile (0..13)")
    I("s_cmp_ge_u32 s9, 14\ns_cselect_b32 s12, 1, 0\ns_mul_i32 s13, s12, 14\ns_sub_u32 s13, s9, s13\ns_lshl_b32 s11, s8, 1\ns_add_u32 s12, s12, s11")
    I("s_mov_b32 s68, s12\ns_mov_b32 s69, s13")
    I("s_mul_i32 s10, s12, %d\ns_lshl_b32 s11, s13, 6\ns_add_u32 s10, s10, s11" % (112 * 896))
    I("s_sub_u32 s11, %d, s10" % (1792 * 896))
    srd_add(48, 32, 33, "s10", "s11")
    I("v_lshrrev_b32 v9, 2, v0\nv_and_b32 v10, 3, v0\nv_lshlrev_b32 v10, 4, v10")
    I("v_mul_u32_u24 v11, 896, v9\nv_add_u32 v11, v11, v10")
    if cfg.w2_trig: wait_flag(4, FO(eval(cfg.w2_trig)), 256, 26)
    I("s_mov_b32 s12, 0\ns_mov_b32 m0, %d" % W2T)
    for i in range(7):
        if i >= cfg.w2_win: I("s_waitcnt vmcnt(%d)" % (cfg.w2_win - 1))
        I("buffer_load_dwordx4 v11, s[48:51], s12 offen%s lds" % cfg.nt_w)
        if i < 6: I("s_add_u32 m0, m0, 1024\ns_add_u32 s12, s12, %d" % (16 * 896))
    I("s_waitcnt vmcnt(0)")
    I("v_lshrrev_b32 v15, 2, v2\nv_lshl_add_u32 v15, v3, 3, v15\nv_lshlrev_b32 v15, 6, v15\nv_add_u32 v15, v15, v7\nv_add_u32 v15, %d, v15" % W2T)
    I("v_and_b32 v12, 1, v3\nv_lshrrev_b32 v14, 2, v2\nv_lshl_add_u32 v14, v12, 3, v14\nv_lshlrev_b32 v14, 6, v14\nv_add_u32 v14, v14, v7\nv_add_u32 v14, %d, v14" % W2T)
    for t in range(4):
        for ct in range(2):
            r = 160 + 8 * t + 4 * ct
            a_ = 15 if t < 3 else 14
            I("ds_read_b64_tr_b16 v[%d:%d], v%d offset:%d" % (r, r + 1, a_, 2048 * t + 32 * ct))
            I("ds_read_b64_tr_b16 v[%d:%d], v%d offset:%d" % (r + 2, r + 3, a_, 2048 * t + 32 * ct + 256))
    I("s_waitcnt lgkmcnt(0)")
    STAMP_(2)
    wait_flag(4, FO(eval(cfg.h_trig)), 256, 26)
    STAMP_(3)
    I("v_mov_b32 v13, %d" % OOB)
    I("v_lshrrev_b32 v9, 3, v0\nv_and_b32 v10, 7, v0\nv_mul_u32_u24 v14, 7168, v9\nv_lshl_add_u32 v14, v10, 4, v14")
    I("v_cmp_gt_u32 vcc, 4, v10\nv_cndmask_b32 v12, v13, v14, vcc")
    I("s_mul_i32 s10, s68, 448\ns_add_u32 s10, s10, %d" % HBUF)
    I("s_mov_b32 s14, 0x0f0f0f0f\ns_mov_b32 s15, 0x0f0f0f0f")
    def iss():
        for i in range(3):
            r = 64 + 4 * i
            I("buffer_load_dwordx4 v[%d:%d], v14, s[60:63], s10 offen offset:%d sc1" % (r, r + 3, 128 * i))
        I("buffer_load_dwordx4 v[76:79], v12, s[60:63], s10 offen offset:384 sc1")
    lp = lab("pl"); dn = lab("pld")
    I("s_mov_b32 s45, %d" % cfg.maxpoll)
    L(lp)
    iss()
    I("s_waitcnt vmcnt(0)")
    I("v_mov_b32 v28, s44")
    I("v_cndmask_b32 v77, v28, v77, s[14:15]\nv_cndmask_b32 v79, v28, v79, s[14:15]")
    check_tags([65, 67, 69, 71, 73, 75, 77, 79], 26, 27)
    I("s_cbranch_scc1 %s" % dn)
    if cfg.backoff: I("s_sleep %d" % cfg.backoff)
    I("s_sub_u32 s45, s45, 1\ns_cmp_lg_u32 s45, 0\ns_cbranch_scc1 %s" % lp)
    L(dn)
    STAMP_(4)
    I("v_mul_u32_u24 v15, 272, v9\nv_lshl_add_u32 v15, v10, 3, v15\nv_add_u32 v15, %d, v15" % HL)
    for i in range(4):
        I("ds_write2_b32 v15, v%d, v%d offset0:%d offset1:%d" % (64 + 4 * i, 64 + 4 * i + 2, 16 * i, 16 * i + 1))
    I("v_and_b32 v15, 7, v2\nv_mul_u32_u24 v15, 272, v15\nv_lshl_add_u32 v15, v3, 4, v15\nv_add_u32 v15, %d, v15" % HL)
    I("s_waitcnt lgkmcnt(0)")
    for t in range(4):
        I("ds_read_b128 v[%d:%d], v15 offset:%d" % (128 + 4 * t, 128 + 4 * t + 3, 64 * t))
    I("s_waitcnt lgkmcnt(0)")
    for t in range(4):
        for ct in range(2):
            d = 16 + 4 * ct
            c = "0" if t == 0 else "v[%d:%d]" % (d, d + 3)
            r = 160 + 8 * t + 4 * ct
            I("v_mfma_f32_16x16x32_bf16 v[%d:%d], v[%d:%d], v[%d:%d], %s" % (d, d + 3, 128 + 4 * t, 128 + 4 * t + 3, r, r + 3, c))
    I("v_and_b32 v14, 1, v3\nv_mul_u32_u24 v14, %d, v14\nv_lshrrev_b32 v16 + 0, 1, v3" .replace("v16 + 0", "v24") % (4 * 28 * 2048))
    I("v_lshl_add_u32 v14, v24, 11, v14\nv_lshl_add_u32 v14, v2, 3, v14")
    I("s_lshl_b32 s10, s69, 12\ns_lshl_b32 s11, s68, 7\ns_add_u32 s10, s10, s11\ns_add_u32 s10, s10, %d" % MBUF)
    I("s_mov_b32 s48, 0\ns_mov_b32 s49, -1")
    for r in range(4):
        I("v_mov_b32 v%d, s44" % (33 + 2 * r))
        I("v_cndmask_b32 v%d, v%d, v%d, s[48:49]" % (32 + 2 * r, 16 + r, 20 + r))
    for r in range(4):
        I("s_add_u32 s11, s10, %d" % (r * 28 * 2048))
        I("buffer_store_dwordx2 v[%d:%d], v14, s[60:63], s11 offen sc1" % (32 + 2 * r, 33 + 2 * r))
    STAMP_(5)
    I("s_branch L_outproj")

    L("L_s23")
    I("s_cmp_eq_u32 s3, 6\ns_cbranch_scc1 L_s2_pre")
    C("wave 7: x -> LDS, then the wo tile (128 rows x 64 columns; batch b < 7 takes column block b)")
    srd(48, 16, 17, "7168")
    I("v_lshlrev_b32 v9, 4, v0\ns_mov_b32 m0, %d\ns_mov_b32 s12, 0" % XL)
    for i in range(7):
        if i == 4: I("s_mov_b32 m0, %d\ns_mov_b32 s12, 4096" % (XL + 4096))
        I("buffer_load_dwordx4 v9, s[48:51], s12 offen offset:%d lds" % ((i % 4) * 1024))
    I("s_barrier")
    STAMP_(1)
    I("s_waitcnt vmcnt(0)")
    set_flag_add(4, FO(F_X), 5)
    STAMP_(2)
    if cfg.wo_by == 'S3': wo_tile('L_s3_fin')
    L("L_s3_fin")
    if cfg.wo_by == 'S3': set_flag_add(4, FO(F_WO), 5)
    I("s_waitcnt lgkmcnt(0)")
    I("s_mul_i32 s44, s44, 1664525\ns_add_u32 s44, s44, 1013904223")
    I("s_branch L_softmax")
    L("L_s2_pre")
    C("wave 6: zero flags, w1 tile")
    I("v_lshlrev_b32 v9, 2, v0\nv_add_u32 v9, %d, v9\nv_mov_b32 v10, 0" % FLG)
    I("s_mov_b64 exec, 0xffff\nds_write_b32 v9, v10\ns_mov_b64 exec, -1")
    I("s_bitcmp0_b32 s9, 0\ns_cbranch_scc1 L_s2_nom1\ns_cmp_ge_u32 s9, 28\ns_cbranch_scc1 L_s2_nom1")
    I("s_lshr_b32 s10, s9, 1\ns_mul_i32 s11, s8, 14\ns_add_u32 s10, s10, s11")
    I("s_mov_b32 s69, s10")
    I("s_lshl_b32 s10, s10, 5\ns_sub_u32 s11, %d, s10" % (448 * 3584))
    srd_add(56, 28, 29, "s10", "s11")
    I("v_lshrrev_b32 v9, 1, v0\nv_and_b32 v10, 1, v0\nv_lshlrev_b32 v10, 4, v10")
    I("v_mul_u32_u24 v14, 3584, v9\nv_add_u32 v14, v14, v10")
    srd(64, 30, 31, "3584")
    I("v_lshlrev_b32 v15, 3, v3")
    I("s_mov_b32 s12, 0\ns_mov_b32 m0, %d" % W1T)
    for i in range(14):
        I("buffer_load_dwordx4 v14, s[56:59], s12 offen%s lds" % cfg.nt_w)
        if i < 13: I("s_add_u32 m0, m0, 1024\ns_add_u32 s12, s12, %d" % (32 * 3584))
    I("buffer_load_dwordx2 v[24:25], v15, s[64:67], s10 offen")
    L("L_s2_nom1")
    I("s_waitcnt lgkmcnt(0)")
    I("s_barrier")
    STAMP_(1)
    I("s_mul_i32 s44, s44, 1664525\ns_add_u32 s44, s44, 1013904223")
    I("s_bitcmp0_b32 s9, 0\ns_cbranch_scc1 L_softmax\ns_cmp_ge_u32 s9, 28\ns_cbranch_scc1 L_softmax")
    wait_flag(4, FO(F_X), 1, 26)
    C("LayerNorm (wave 6, M1 workgroups)")
    I("v_lshrrev_b32 v9, 3, v0\nv_and_b32 v10, 7, v0\nv_lshlrev_b32 v10, 4, v10")
    I("v_mul_u32_u24 v11, 896, v9\nv_add_u32 v11, v11, v10\nv_add_u32 v11, %d, v11" % XL)
    for i in range(7):
        I("ds_read_b128 v[%d:%d], v11 offset:%d" % (64 + 4 * i, 64 + 4 * i + 3, 128 * i))
    I("v_mul_u32_u24 v12, 912, v9\nv_add_u32 v12, v12, v10\nv_add_u32 v12, %d, v12" % YL)
    I("s_waitcnt lgkmcnt(0)")
    set_flag_add(4, FO(F_Y), 5)
    F = 128
    for k in range(28):
        I("v_lshlrev_b32 v%d, 16, v%d\nv_and_b32 v%d, 0xffff0000, v%d" % (F + 2 * k, 64 + k, F + 2 * k + 1, 64 + k))
    I("v_pk_add_f32 v[16:17], v[%d:%d], v[%d:%d]" % (F, F + 1, F + 2, F + 3))
    for k in range(2, 28):
        I("v_pk_add_f32 v[16:17], v[16:17], v[%d:%d]" % (F + 2 * k, F + 2 * k + 1))
    I("v_add_f32 v16, v16, v17")
    def red_p(v):
        for mod in ("quad_perm:[1,0,3,2]", "quad_perm:[2,3,0,1]", "row_half_mirror"):
            I("v_add_f32_dpp v%d, v%d, v%d %s row_mask:0xf bank_mask:0xf" % (v, v, v, mod))
    red_p(16)
    I("v_mul_f32 v16, 0x%08x, v16" % f2u(1.0 / 448))
    rnd_pair(18, 19, 16, 16, 17)
    I("v_sub_f32 v20, v16, v18")
    I("v_sub_f32 v18, 0, v18\nv_mov_b32 v19, v18")
    for k in range(28):
        I("v_pk_add_f32 v[%d:%d], v[%d:%d], v[18:19]" % (F + 2 * k, F + 2 * k + 1, F + 2 * k, F + 2 * k + 1))
    I("v_pk_mul_f32 v[16:17], v[%d:%d], v[%d:%d]" % (F, F + 1, F, F + 1))
    for k in range(1, 28):
        I("v_pk_fma_f32 v[16:17], v[%d:%d], v[%d:%d], v[16:17]" % (F + 2 * k, F + 2 * k + 1, F + 2 * k, F + 2 * k + 1))
    I("v_add_f32 v16, v16, v17")
    red_p(16)
    I("v_mul_f32 v16, 0x%08x, v16" % f2u(1.0 / 448))
    I("v_fma_f32 v16, -v20, v20, v16\nv_max_f32 v16, 0, v16")
    rnd_pair(16, 17, 16, 16, 21)
    I("v_add_f32 v16, 0x%08x, v16" % f2u(1e-5))
    rnd_pair(16, 17, 16, 16, 21)
    I("v_sqrt_f32 v16, v16")
    rnd_pair(16, 17, 16, 16, 21)
    I("v_rcp_f32 v16, v16")
    I("v_mov_b32 v17, v16")
    for k in range(28):
        I("v_pk_mul_f32 v[%d:%d], v[%d:%d], v[16:17]" % (F + 2 * k, F + 2 * k + 1, F + 2 * k, F + 2 * k + 1))
    for k in range(28):
        I("v_cvt_pk_bf16_f32 v%d, v%d, v%d" % (64 + k, F + 2 * k, F + 2 * k + 1))
    for i in range(7):
        I("ds_write_b128 v12, v[%d:%d] offset:%d" % (64 + 4 * i, 64 + 4 * i + 3, 128 * i))
    STAMP_(2)
    C("M1: h tile")
    I("s_waitcnt vmcnt(0) lgkmcnt(0)")
    I("v_mov_b32 v13, %d" % OOB)
    I("v_and_b32 v15, 7, v2\nv_mul_u32_u24 v15, 912, v15\nv_lshl_add_u32 v15, v3, 4, v15\nv_add_u32 v15, %d, v15" % YL)
    for t in range(14):
        I("ds_read_b128 v[%d:%d], v15 offset:%d" % (XF + 4 * t, XF + 4 * t + 3, 64 * t))
    I("v_add_u32 v15, %d, v6" % W1T)
    for t in range(14):
        I("ds_read_b64_tr_b16 v[%d:%d], v15 offset:%d" % (AF + 4 * t, AF + 4 * t + 1, 1024 * t))
        I("ds_read_b64_tr_b16 v[%d:%d], v15 offset:%d" % (AF + 4 * t + 2, AF + 4 * t + 3, 1024 * t + 128))
    I("s_waitcnt lgkmcnt(0)")
    for t in range(14):
        c = "0" if t == 0 else "v[16:19]"
        I("v_mfma_f32_16x16x32_bf16 v[16:19], v[%d:%d], v[%d:%d], %s" % (AF + 4 * t, AF + 4 * t + 3, XF + 4 * t, XF + 4 * t + 3, c))
    rnd_pair(16, 17, 16, 17, 26)
    rnd_pair(18, 19, 18, 19, 27)
    I("v_lshlrev_b32 v28, 16, v24\nv_and_b32 v29, 0xffff0000, v24\nv_lshlrev_b32 v30, 16, v25\nv_and_b32 v31, 0xffff0000, v25")
    for r in range(4): I("v_add_f32 v%d, v%d, v%d" % (16 + r, 16 + r, 28 + r))
    rnd_pair(16, 17, 16, 17, 26)
    rnd_pair(18, 19, 18, 19, 27)
    k0 = -2.0 * 0.7978845608028654 * 1.4426950408889634
    k1 = k0 * 0.044715
    I("s_mov_b32 s10, 0x%08x\ns_mov_b32 s11, 0x%08x" % (f2u(k0), f2u(k1)))
    I("v_mov_b32 v32, s10")
    for r in range(4):
        I("v_mul_f32 v%d, v%d, v%d" % (28 + r, 16 + r, 16 + r))
        I("v_fma_f32 v%d, v%d, s11, v32" % (28 + r, 28 + r))
        I("v_mul_f32 v%d, v%d, v%d" % (28 + r, 28 + r, 16 + r))
    for r in range(4): I("v_exp_f32 v%d, v%d" % (28 + r, 28 + r))
    for r in range(4): I("v_add_f32 v%d, 1.0, v%d" % (28 + r, 28 + r))
    for r in range(4): I("v_rcp_f32 v%d, v%d" % (28 + r, 28 + r))
    for r in range(4): I("v_mul_f32 v%d, v%d, v%d" % (16 + r, 16 + r, 28 + r))
    I("v_mov_b32 v21, s44\nv_mov_b32 v23, s44")
    I("v_cvt_pk_bf16_f32 v20, v16, v17\nv_cvt_pk_bf16_f32 v22, v18, v19")
    I("v_mul_u32_u24 v14, 7168, v2\nv_lshl_add_u32 v14, v3, 4, v14\nv_cmp_gt_u32 vcc, 8, v2\nv_cndmask_b32 v14, v13, v14, vcc")
    I("s_lshl_b32 s10, s69, 6\ns_add_u32 s10, s10, %d" % HBUF)
    I("buffer_store_dwordx4 v[20:23], v14, s[60:63], s10 offen sc1")
    STAMP_(6)
    L("L_softmax")
    C("softmax for head (wave-6); wave 6 gathers the scores and hands the raw words to wave 7 through LDS")
    I("v_lshlrev_b32 v15, 4, v0\nv_add_u32 v15, %d, v15" % SG)
    I("s_cmp_eq_u32 s3, 6\ns_cbranch_scc0 L_sm_w7")
    wait_flag(4, FO(F_T2), 256, 26)
    STAMP_(3)
    I("s_lshl_b32 s10, s4, 3\ns_add_u32 s10, s10, s5\ns_lshl_b32 s10, s10, 13\ns_add_u32 s10, s10, %d\ns_add_u32 s11, s10, 4096" % SBUF)
    I("v_lshlrev_b32 v14, 4, v0")
    def iss():
        for i in range(8):
            I("buffer_load_dwordx4 v[%d:%d], v14, s[60:63], s%d offen offset:%d sc1" % (64 + 4 * i, 64 + 4 * i + 3, 10 + i // 4, (i % 4) * 1024))
    tags = []
    for k in range(8): tags += [64 + 4 * k + 1, 64 + 4 * k + 3]
    poll(iss, tags, 26, 27, after_first=lambda: set_flag_add(4, FO(F_SP), 5))
    for i in range(8):
        I("v_mov_b32 v%d, v%d\nv_mov_b32 v%d, v%d" % (96 + 2 * i, 64 + 4 * i, 96 + 2 * i + 1, 64 + 4 * i + 2))
    for q in range(4):
        I("ds_write_b128 v15, v[%d:%d] offset:%d" % (96 + 4 * q, 96 + 4 * q + 3, 1024 * q))
    set_flag_add(4, FO(F_G), 5)
    I("s_branch L_sm_go")
    L("L_sm_w7")
    wait_flag(4, FO(F_G), 1, 26)
    for q in range(4):
        I("ds_read_b128 v[%d:%d], v15 offset:%d" % (96 + 4 * q, 96 + 4 * q + 3, 1024 * q))
    I("s_waitcnt lgkmcnt(0)")
    L("L_sm_go")
    STAMP_(4)
    I("s_mov_b32 s12, 0x01000c0c\ns_cmp_eq_u32 s3, 6\ns_cselect_b32 s12, s12, 0x03020c0c")
    F = 128
    for i in range(16):
        I("v_perm_b32 v%d, v%d, v%d, s12" % (F + i, 96 + i, 96 + i))
    I("v_max3_f32 v16, v%d, v%d, v%d" % (F, F + 1, F + 2))
    for k in range(3, 15, 2): I("v_max3_f32 v16, v16, v%d, v%d" % (F + k, F + k + 1))
    I("v_max_f32 v16, v16, v%d" % (F + 15))
    wave_reduce("v_max_f32", 16, 17)
    cexp = 1.4426950408889634 / 16.0
    I("s_mov_b32 s13, 0x%08x" % f2u(cexp))
    I("v_mul_f32 v16, s13, v16\nv_sub_f32 v16, 0, v16")
    for k in range(16): I("v_fma_f32 v%d, v%d, s13, v16" % (F + k, F + k))
    for k in range(16): I("v_exp_f32 v%d, v%d" % (F + k, F + k))
    I("v_add_f32 v17, v%d, v%d" % (F, F + 1))
    I("v_add_f32 v18, v%d, v%d" % (F + 2, F + 3))
    for k in range(4, 16, 2):
        I("v_add_f32 v17, v17, v%d\nv_add_f32 v18, v18, v%d" % (F + k, F + k + 1))
    I("v_add_f32 v17, v17, v18")
    wave_reduce("v_add_f32", 17, 18)
    I("v_rcp_f32 v17, v17")
    for k in range(16): I("v_mul_f32 v%d, v%d, v17" % (F + k, F + k))
    for i in range(8): I("v_cvt_pk_bf16_f32 v%d, v%d, v%d" % (64 + i, F + 2 * i, F + 2 * i + 1))
    I("s_sub_u32 s12, s3, 6\ns_lshl_b32 s12, s12, 11\ns_add_u32 s12, s12, %d" % PL)
    I("v_lshlrev_b32 v15, 2, v0\nv_add_u32 v15, s12, v15")
    for i in range(8): I("ds_write_b32 v15, v%d offset:%d" % (64 + i, 256 * i))
    set_flag_add(4, FO(F_P), 5)
    STAMP_(5)

    L("L_outproj")
    BF = 128
    I("s_cmp_ge_u32 s3, 5\ns_cbranch_scc1 L_s23_end")
    C("wave 4: preload wo fragments for four 16-column tiles")
    wait_flag(4, FO(F_WO), 1, 26)
    STAMP_(8)
    I("v_lshrrev_b32 v8, 2, v2\nv_lshl_add_u32 v8, v3, 3, v8\nv_lshlrev_b32 v8, 7, v8\nv_add_u32 v8, v8, v7")
    if WOT: I("v_add_u32 v8, %d, v8" % WOT)
    for t in range(4):
        for tt in range(4):
            r = BF + 4 * (t * 4 + tt)
            I("ds_read_b64_tr_b16 v[%d:%d], v8 offset:%d" % (r, r + 1, t * 4096 + tt * 32))
            I("ds_read_b64_tr_b16 v[%d:%d], v8 offset:%d" % (r + 2, r + 3, t * 4096 + tt * 32 + 512))
    I("v_mov_b32 v13, %d" % OOB)
    I("v_lshlrev_b32 v10, 4, v0")
    I("s_lshl_b32 s10, s7, 12\ns_add_u32 s10, s10, %d" % OBUF)
    I("s_lshl_b32 s11, s4, 9\nv_add_u32 v11, s11, v10\nv_cmp_gt_u32 vcc, 32, v0\nv_cndmask_b32 v11, v13, v11, vcc")
    I("v_and_b32 v12, 31, v0\nv_lshlrev_b32 v12, 4, v12\nv_add_u32 v12, %d, v12" % OA)
    I("v_lshrrev_b32 v9, 5, v0\nv_mul_u32_u24 v9, 272, v9\nv_and_b32 v15, 31, v0\nv_lshl_add_u32 v9, v15, 3, v9\nv_add_u32 v9, %d, v9" % OG)
    I("v_and_b32 v15, 7, v2\nv_mul_u32_u24 v15, 272, v15\nv_lshl_add_u32 v15, v3, 4, v15\nv_add_u32 v15, %d, v15" % OG)
    I("v_and_b32 v14, 1, v3\nv_mul_u32_u24 v14, %d, v14\nv_lshrrev_b32 v16, 1, v3\nv_lshl_add_u32 v14, v16, 12, v14\nv_lshl_add_u32 v14, v2, 3, v14" % (4 * 28 * 4096))
    I("s_lshl_b32 s11, s4, 14\ns_lshl_b32 s13, s7, 7\ns_add_u32 s11, s11, s13\ns_add_u32 s11, s11, %d" % PBUF)
    I("s_mov_b32 s48, 0\ns_mov_b32 s49, -1")
    for k in range(8): I("v_mov_b32 v%d, s44" % (193 + 2 * k))
    I("v_mov_b32 v57, s44\nv_mov_b32 v59, s44")
    I("s_waitcnt lgkmcnt(0)")
    STAMP_(9)
    I("s_barrier")
    STAMP_(10)
    C("reduce the four o partials, round, publish")
    for w in range(4):
        I("ds_read_b128 v[%d:%d], v12 offset:%d" % (64 + 4 * w, 64 + 4 * w + 3, 512 * w))
    I("s_waitcnt lgkmcnt(2)")
    I("v_pk_add_f32 v[64:65], v[64:65], v[68:69]\nv_pk_add_f32 v[66:67], v[66:67], v[70:71]")
    I("s_waitcnt lgkmcnt(0)")
    I("v_pk_add_f32 v[72:73], v[72:73], v[76:77]\nv_pk_add_f32 v[74:75], v[74:75], v[78:79]")
    I("v_pk_add_f32 v[64:65], v[64:65], v[72:73]\nv_pk_add_f32 v[66:67], v[66:67], v[74:75]")
    I("v_cvt_pk_bf16_f32 v56, v64, v65\nv_cvt_pk_bf16_f32 v58, v66, v67")
    I("buffer_store_dwordx4 v[56:59], v11, s[60:63], s10 offen sc1")
    STAMP_(11)
    I("s_cmp_eq_u32 s4, 7\ns_cbranch_scc1 L_noproj")
    def iss():
        for k in range(4):
            I("buffer_load_dwordx4 v[%d:%d], v10, s[60:63], s10 offen offset:%d sc1" % (64 + 4 * k, 64 + 4 * k + 3, 1024 * k))
    tags = []
    for k in range(4): tags += [64 + 4 * k + 1, 64 + 4 * k + 3]
    poll(iss, tags, 26, 27, backoff=cfg.tail_backoff)
    STAMP_(12)
    for k in range(4):
        I("ds_write2_b32 v9, v%d, v%d offset0:%d offset1:%d" % (64 + 4 * k, 64 + 4 * k + 2, 136 * k, 136 * k + 1) if 136 * k + 1 < 256 else
          "v_add_u32 v9, %d, v9\nds_write2_b32 v9, v%d, v%d offset0:%d offset1:%d" % (544 * 2 if k == 2 else 0, 64 + 4 * k, 64 + 4 * k + 2, 136 * (k - 2), 136 * (k - 2) + 1) if k == 2 else
          "ds_write2_b32 v9, v%d, v%d offset0:%d offset1:%d" % (64 + 4 * k, 64 + 4 * k + 2, 136 * (k - 2), 136 * (k - 2) + 1))
    I("s_waitcnt lgkmcnt(0)")
    for t in range(4):
        I("ds_read_b128 v[%d:%d], v15 offset:%d" % (96 + 4 * t, 96 + 4 * t + 3, 64 * t))
    for t in range(4):
        I("s_waitcnt lgkmcnt(%d)" % (3 - t))
        for tt in range(4):
            r = BF + 4 * (t * 4 + tt); d = 16 + 4 * tt
            c = "0" if t == 0 else "v[%d:%d]" % (d, d + 3)
            I("v_mfma_f32_16x16x32_bf16 v[%d:%d], v[%d:%d], v[%d:%d], %s" % (d, d + 3, 96 + 4 * t, 96 + 4 * t + 3, r, r + 3, c))
    for p in range(2):
        for r in range(4):
            k = p * 4 + r
            I("v_cndmask_b32 v%d, v%d, v%d, s[48:49]" % (192 + 2 * k, 16 + 8 * p + r, 16 + 8 * p + 4 + r))
        for r in range(4):
            k = p * 4 + r
            I("s_add_u32 s13, s11, %d" % (r * 28 * 4096 + p * 2 * 4096))
            I("buffer_store_dwordx2 v[%d:%d], v14, s[60:63], s13 offen sc1" % (192 + 2 * k, 193 + 2 * k))
    L("L_noproj")
    STAMP_(13)
    I("s_cmp_ge_u32 s7, 28\ns_cbranch_scc1 L_sdone")
    C("final gather")
    I("s_mul_i32 s10, s4, 28\ns_add_u32 s10, s10, s7\ns_lshl_b32 s10, s10, 12\ns_add_u32 s10, s10, %d" % PBUF)
    I("v_lshlrev_b32 v14, 4, v0")
    def iss():
        for i in range(4):
            I("buffer_load_dwordx4 v[%d:%d], v14, s[60:63], s10 offen offset:%d sc1" % (64 + 4 * i, 64 + 4 * i + 3, 1024 * i))
    poll(iss, [65, 67, 69, 71, 73, 75, 77, 79], 26, 27, backoff=cfg.tail_backoff)
    STAMP_(14)
    I("v_add_f32 v16, v64, v68\nv_add_f32 v18, v66, v70\nv_add_f32 v17, v72, v76\nv_add_f32 v19, v74, v78")
    I("v_add_f32 v16, v16, v17\nv_add_f32 v18, v18, v19")
    red8(16, 24); red8(18, 25)
    rnd_pair(16, 18, 16, 18, 26)
    I("v_mul_f32 v16, v16, v50\nv_mul_f32 v18, v18, v50")
    rnd_pair(16, 18, 16, 18, 26)
    I("v_add_f32 v16, v16, v53\nv_add_f32 v18, v18, v54")
    I("v_cvt_pk_bf16_f32 v16, v16, v18")
    srd(48, 38, 39, "7168")
    I("v_lshlrev_b32 v14, 2, v0\nv_cmp_gt_u32 vcc, 8, v0\nv_cndmask_b32 v14, v13, v14, vcc")
    I("s_mul_i32 s10, s4, 896\ns_lshl_b32 s11, s7, 5\ns_add_u32 s10, s10, s11")
    I("buffer_store_dword v16, v14, s[48:51], s10 offen")
    C("epoch update by workgroup 0")
    I("s_cmp_eq_u32 s2, 0\ns_cbranch_scc0 L_sdone")
    I("v_mov_b32 v16, s44\nv_mov_b32 v14, %d\nv_cmp_eq_u32 vcc, 0, v0\nv_cndmask_b32 v14, v13, v14, vcc" % EPOCH)
    I("buffer_store_dword v16, v14, s[60:63], 0 offen sc1")
    I("s_branch L_sdone")
    L("L_s23_end")
    I("s_barrier")
    L("L_sdone")
    STAMP_(15)
    stamps_out()
    L("L_end")
    I("s_endpgm")

    body = e.finalize()
    hdr = open('gated_mix__sliding_block_cached__mixer_channel_mlp__decode.s.ref').read().split('\n')
    head = [l for l in hdr if l.startswith(';') and '@launch' not in l and 'Override launch' not in l]
    txt = "\n".join(head) + "\n; @launch grid=(256,1,1) block=(512,1,1) lds=%d\n" % LDS_SIZE
    txt += '.amdgcn_target "amdgcn-amd-amdhsa--gfx950"\n.text\n.globl %s\n.p2align 8\n.type %s,@function\n%s:\n' % (NAME, NAME, NAME)
    txt += body
    txt += '.section .rodata,"a"\n.p2align 6\n.amdhsa_kernel %s\n' % NAME
    txt += "  .amdhsa_next_free_vgpr 256\n  .amdhsa_next_free_sgpr 102\n  .amdhsa_accum_offset 256\n  .amdhsa_group_segment_fixed_size 0\n  .amdhsa_kernarg_size 112\n  .amdhsa_user_sgpr_count 2\n  .amdhsa_user_sgpr_kernarg_segment_ptr 1\n  .amdhsa_system_sgpr_workgroup_id_x 1\n.end_amdhsa_kernel\n"
    return txt

if __name__ == "__main__":
    cfg = Cfg()
    out = sys.argv[1] if len(sys.argv) > 1 else "gated_mix__sliding_block_cached__mixer_channel_mlp__decode.s"
    for a in sys.argv[2:]:
        k, v = a.split("=")
        setattr(cfg, k, eval(v))
    open(out, "w").write(gen(cfg))
    print("written", out)
```

```python
import sys, struct
from emit import Emitter

NAME = "gated_mix__sliding_block_cached__mixer_channel_mlp__decode_kernel"

WOT  = 0
WQT  = 16384
W1T  = WQT + 14336
W2T  = WQT + 28672
XL   = W2T + 7168
YL   = XL + 7168
QL   = YL + 7296
PL   = QL + 1024
OA   = PL + 4096
HL   = OA + 2048
OG   = HL + 2176
SG   = OG + 2176
FLG  = SG + 4096
F_Q, F_Y, F_S, F_P, F_WO, F_T1, F_T2, F_X, F_SP, F_K, F_G = [FLG + 4 * i for i in range(11)]
LDS_SIZE = FLG + 64
EPOCH = 0
QBUF = 4096
HBUF = QBUF + 131072
SBUF = 0x30000
MBUF = 0xB0000
PBUF = 0x120000
OBUF = 0x200000
STAMP = 0x220000
WS_RANGE = 0x400000
OOB = 0x7FFF0000

def f2u(x): return struct.unpack('<I', struct.pack('<f', x))[0]

class Cfg:
    wk = 8
    wv = 7
    nt_kv = " nt"
    nt_w = " nt"
    nt_wo = " nt"
    stamps = False
    qpos = 39
    sched = None
    pat = 'VW' * 8 + 'WWV' * 10 + 'V' * 14
    maxpoll = 20000
    prio = 3
    free_flag = 'F_G'
    nofree = False
    ldf = 'sc1'
    stf = 'sc1'
    code_pf = 18
    wo_by = 'S1'
    tq_swap = True
    w2_win = 7
    wo_win = 6
    w2_trig = None
    wo_trig = None
    kflag_slot = 31
    pretouch = False
    tail_backoff = 0
    wo_rot = True
    s0_w = 'after_q'
    mapping = 'ps'
    s0_early_bar = False
    h_trig = 'F_T1'
    wk_pre = 2
    late_tiles = True
    t1 = 20
    t2 = 46
    backoff = 4

def default_sched(cfg):
    s = [('K', n // 8, n % 8) for n in range(32)]
    s += [('V', T, j) for T in range(4) for j in range(8)]
    return s

def gen(cfg):
    e = Emitter(); I = e.I; L = e.L; C = e.C
    nst = [0]
    def STAMP_(i):
        if cfg.stamps: I("s_memrealtime s[%d:%d]" % (70 + 2 * i, 71 + 2 * i))
    def stamps_out():
        if not cfg.stamps: return
        I("s_waitcnt vmcnt(0) lgkmcnt(0)")
        I("s_lshl_b32 s8, s2, 3\ns_add_u32 s8, s8, s3\ns_lshl_b32 s8, s8, 7\ns_add_u32 s8, s8, %d" % STAMP)
        I("v_mov_b32 v1, 0")
        I("s_mov_b64 exec, 1")
        for k in range(8):
            for q in range(4): I("v_mov_b32 v%d, s%d" % (4 + q, 70 + 4 * k + q))
            I("buffer_store_dwordx4 v[4:7], v1, s[60:63], s8 offen offset:%d" % (16 * k))
            I("s_nop 1")
        I("s_waitcnt vmcnt(0)")
    uid = [0]
    def lab(p):
        uid[0] += 1
        return "L_%s_%d" % (p, uid[0])
    def srd(n, lo, hi, nrec):
        I("s_mov_b32 s%d, s%d\ns_mov_b32 s%d, s%d\ns_mov_b32 s%d, %s\ns_mov_b32 s%d, 0x20000" % (n, lo, n + 1, hi, n + 2, nrec, n + 3))
    def srd_add(n, lo, hi, off_sgpr, nrec):
        I("s_add_u32 s%d, s%d, %s\ns_addc_u32 s%d, s%d, 0\ns_mov_b32 s%d, %s\ns_mov_b32 s%d, 0x20000" % (n, lo, off_sgpr, n + 1, hi, n + 2, nrec, n + 3))
    def wait_flag(addr_v, off, val, tmpv, cmp="ge"):
        lp = lab("fl"); dn = lab("fld")
        I("s_mov_b32 s45, 0x100000")
        L(lp)
        I("ds_read_b32 v%d, v%d offset:%d" % (tmpv, addr_v, off))
        I("s_waitcnt lgkmcnt(0)")
        I("v_readfirstlane_b32 s46, v%d" % tmpv)
        I("s_cmp_ge_u32 s46, %d" % val)
        I("s_cbranch_scc1 %s" % dn)
        I("s_sub_u32 s45, s45, 1")
        I("s_cmp_lg_u32 s45, 0")
        I("s_cbranch_scc1 %s" % lp)
        L(dn)
    def set_flag_add(addr_v, off, onev):
        I("ds_add_u32 v%d, v%d offset:%d" % (addr_v, onev, off))
    def check_tags(tags, vmin, vmax, lanemask=None):
        t = list(tags)
        if len(t) % 2 == 1: t.append(t[-1])
        I("v_min_u32 v%d, v%d, v%d" % (vmin, t[0], t[1]))
        I("v_max_u32 v%d, v%d, v%d" % (vmax, t[0], t[1]))
        for k in range(2, len(t), 2):
            I("v_min3_u32 v%d, v%d, v%d, v%d" % (vmin, vmin, t[k], t[k + 1]))
            I("v_max3_u32 v%d, v%d, v%d, v%d" % (vmax, vmax, t[k], t[k + 1]))
        I("v_cmp_ne_u32 vcc, s44, v%d" % vmin)
        I("v_cmp_ne_u32 s[46:47], s44, v%d" % vmax)
        I("s_or_b64 vcc, vcc, s[46:47]")
        if lanemask: I("s_and_b64 vcc, vcc, %s" % lanemask)
        I("s_cmp_eq_u64 vcc, 0")
    def poll(issue, tags, vmin, vmax, lanemask=None, backoff=cfg.backoff, after_first=None):
        lp = lab("pl"); dn = lab("pld")
        I("s_mov_b32 s45, %d" % cfg.maxpoll)
        if after_first:
            issue(); after_first()
            I("s_branch %s_w" % lp)
        L(lp)
        issue()
        if after_first: L(lp + "_w")
        I("s_waitcnt vmcnt(0)")
        check_tags(tags, vmin, vmax, lanemask)
        I("s_cbranch_scc1 %s" % dn)
        if backoff: I("s_sleep %d" % backoff)
        I("s_sub_u32 s45, s45, 1")
        I("s_cmp_lg_u32 s45, 0")
        I("s_cbranch_scc1 %s" % lp)
        L(dn)
    def rnd_pair(dst_lo, dst_hi, a, b, tmp):
        I("v_cvt_pk_bf16_f32 v%d, v%d, v%d" % (tmp, a, b))
        I("v_lshlrev_b32 v%d, 16, v%d" % (dst_lo, tmp))
        I("v_and_b32 v%d, 0xffff0000, v%d" % (dst_hi, tmp))
    def wave_reduce(op, v, t):
        for mod in ("quad_perm:[1,0,3,2]", "quad_perm:[2,3,0,1]", "row_half_mirror", "row_mirror"):
            I("%s_dpp v%d, v%d, v%d %s row_mask:0xf bank_mask:0xf" % (op, v, v, v, mod))
        for sw in ("v_permlane16_swap_b32", "v_permlane32_swap_b32"):
            I("v_mov_b32 v%d, v%d" % (t, v))
            I("%s v%d, v%d" % (sw, v, t))
            I("%s v%d, v%d, v%d" % (op, v, v, t))

    def tq_calc(dst):
        I("s_lshr_b32 %s, s9, 1" % dst)
        if cfg.tq_swap:
            I("s_and_b32 s46, %s, 6\ns_cmp_eq_u32 s46, 6\ns_cselect_b32 s46, 8, 0\ns_xor_b32 %s, %s, s46" % (dst, dst, dst))

    def wo_tile(skip):
        I("s_cmp_eq_u32 s4, 7\ns_cbranch_scc1 %s" % skip)
        I("s_lshl_b32 s10, s5, 9\ns_lshl_b32 s11, s6, 6\ns_add_u32 s10, s10, s11\ns_mul_i32 s10, s10, 896\ns_lshl_b32 s11, s4, 7\ns_add_u32 s10, s10, s11")
        I("s_sub_u32 s11, %d, s10" % (4096 * 896))
        srd_add(52, 24, 25, "s10", "s11")
        I("v_lshrrev_b32 v9, 3, v0\nv_mul_u32_u24 v9, 896, v9\nv_and_b32 v10, 7, v0\nv_lshl_add_u32 v9, v10, 4, v9")
        if cfg.wo_trig: wait_flag(4, FO(eval(cfg.wo_trig)), 256, 26)
        I("s_mov_b32 m0, %d\ns_mov_b32 s12, 0" % WOT)
        for i in range(16):
            if i >= cfg.wo_win: I("s_waitcnt vmcnt(%d)" % (cfg.wo_win - 1))
            I("buffer_load_dwordx4 v9, s[52:55], s12 offen%s lds" % cfg.nt_wo)
            if i < 15: I("s_add_u32 m0, m0, 1024\ns_add_u32 s12, s12, %d" % (8 * 896 if i != 7 else (256 - 56) * 896))
        I("s_waitcnt vmcnt(0)")

    def dma_loop(n, vreg_, srd_, step, flags, cnt="s13", win=None):
        lp = lab("dma")
        I("s_mov_b32 %s, %d" % (cnt, n))
        L(lp)
        if win: I("s_waitcnt vmcnt(%d)" % (win - 1))
        I("buffer_load_dwordx4 v%d, s[%d:%d], s12 offen%s lds" % (vreg_, srd_, srd_ + 3, flags))
        I("s_add_u32 m0, m0, 1024\ns_add_u32 s12, s12, %d\ns_sub_u32 %s, %s, 1\ns_cmp_lg_u32 %s, 0\ns_cbranch_scc1 %s" % (step, cnt, cnt, cnt, lp))
    def SEC(name): e.lines.append(";@SEC " + name)

    I("s_cmp_ge_u32 s2, 256")
    I("s_cbranch_scc1 L_end")
    I("s_load_dwordx16 s[16:31], s[0:1], 0")
    I("s_load_dwordx8 s[32:39], s[0:1], 64")
    I("s_load_dwordx4 s[40:43], s[0:1], 96")
    if cfg.stamps:
        for k in range(70, 102): I("s_mov_b32 s%d, 0" % k)
    STAMP_(0)
    I("v_lshrrev_b32 v1, 6, v0")
    I("v_and_b32 v0, 63, v0")
    I("v_readfirstlane_b32 s3, v1")
    I("s_lshr_b32 s4, s2, 5")
    if cfg.mapping == "kx":
        I("s_and_b32 s5, s2, 7")
        I("s_bfe_u32 s6, s2, 0x20003")
    else:
        I("s_bfe_u32 s5, s2, 0x30002")
        I("s_and_b32 s6, s2, 3")
    I("s_and_b32 s7, s2, 31")
    I("s_and_b32 s8, s2, 7")
    I("s_lshr_b32 s9, s2, 3")
    I("v_and_b32 v2, 15, v0")
    I("v_lshrrev_b32 v3, 4, v0")
    I("v_mov_b32 v4, %d" % FLG)
    I("v_mov_b32 v5, 1")
    def start_sync():
        I("s_waitcnt lgkmcnt(0)")
        I("s_load_dword s44, s[42:43], %d" % EPOCH)
        srd(60, 42, 43, hex(WS_RANGE))
    def start_bar():
        I("s_barrier")
        STAMP_(1)
    I("s_cmp_ge_u32 s3, 4")
    I("s_cbranch_scc1 L_service")
    FO = lambda f: f - FLG

    C("bulk waves")
    KR = 64; VB = 192; QA = 32; PF = 16; SACC = 224
    vreg = {0: VB, 1: KR, 2: KR + 32, 3: KR + 64}
    TMP = KR + 96
    I("s_lshl_b32 s10, s4, 3\ns_add_u32 s10, s10, s5")
    I("s_lshl_b32 s11, s10, 21\ns_add_u32 s11, s11, %d" % (3072 * 512))
    I("s_lshl_b32 s12, s6, 15\ns_lshl_b32 s13, s3, 13\ns_add_u32 s12, s12, s13")
    I("s_sub_u32 s14, %d, s12" % 524288)
    I("s_add_u32 s12, s12, s11")
    I("s_mov_b32 s64, 0\ns_mov_b32 s65, 0x20000\ns_mov_b32 s66, 0x40000\ns_mov_b32 s67, 0x60000")
    I("v_bfe_u32 v6, v0, 2, 2\nv_lshlrev_b32 v6, 11, v6\nv_lshl_add_u32 v6, v3, 6, v6\nv_and_b32 v7, 3, v0\nv_lshl_add_u32 v6, v7, 4, v6")
    start_sync()
    srd_add(48, 18, 19, "s12", "s14")
    def bulk_setup_b():
        I("s_lshl_b32 s12, s3, 15\ns_lshl_b32 s13, s6, 7\ns_add_u32 s12, s12, s13")
        I("s_sub_u32 s14, %d, s12" % 524288)
        I("s_add_u32 s12, s12, s11")
        srd_add(52, 20, 21, "s12", "s14")
        I("v_lshrrev_b32 v7, 3, v0\nv_lshlrev_b32 v7, 12, v7\nv_and_b32 v8, 7, v0\nv_lshl_add_u32 v7, v8, 4, v7")
        I("v_lshlrev_b32 v9, 11, v3\nv_lshl_add_u32 v9, v2, 3, v9")
        I("s_lshl_b32 s15, s10, 13\ns_lshl_b32 s12, s6, 9\ns_add_u32 s15, s15, s12\ns_lshl_b32 s12, s3, 7\ns_add_u32 s15, s15, s12\ns_add_u32 s15, s15, %d" % SBUF)
        I("v_bfe_u32 v10, v0, 2, 1\nv_lshlrev_b32 v10, 9, v10\nv_lshl_add_u32 v10, v3, 6, v10\nv_and_b32 v11, 3, v0\nv_lshl_add_u32 v10, v11, 4, v10\nv_add_u32 v10, %d, v10" % QL)
        I("v_bfe_u32 v11, v0, 1, 1\nv_lshlrev_b32 v11, 11, v11\nv_lshl_add_u32 v11, v3, 5, v11\nv_and_b32 v12, 1, v0\nv_lshl_add_u32 v11, v12, 4, v11")
        I("s_lshl_b32 s12, s3, 7\ns_add_u32 s12, s12, %d\nv_add_u32 v11, s12, v11" % PL)
        I("v_and_b32 v12, 7, v0\nv_lshlrev_b32 v12, 5, v12\ns_lshl_b32 s12, s3, 9\ns_add_u32 s12, s12, %d\nv_add_u32 v12, s12, v12" % OA)
        I("s_mov_b32 s68, 0x05040100\ns_mov_b32 s69, 0x07060302")
        I("s_mov_b32 s47, 0")
        I("s_mov_b32 s16, 0xffff0000\ns_mov_b32 s17, 0\ns_mov_b32 s18, 0\ns_mov_b32 s19, 0x0000ffff\ns_mov_b32 s20, 0\ns_mov_b32 s21, 0xffff0000")
        I("s_mov_b32 s22, 0x22222222\ns_mov_b32 s23, 0x22222222\ns_mov_b32 s24, 0x44444444\ns_mov_b32 s25, 0x44444444\ns_mov_b32 s26, 0x88888888\ns_mov_b32 s27, 0x88888888")
        start_bar()
    sched = cfg.sched or default_sched(cfg)
    ops = []
    def outstanding_after(opid):
        return len(ops) - 1 - ops.index(opid)
    def wait_op(opid):
        n = outstanding_after(opid)
        I("s_waitcnt vmcnt(%d)" % min(n, 63))
    tag_ready = [False]
    def ensure_tag():
        if not tag_ready[0]:
            I("s_waitcnt lgkmcnt(0)")
            I("s_mul_i32 s44, s44, 1664525\ns_add_u32 s44, s44, 1013904223")
            I("v_mov_b32 v%d, s44" % (SACC + 5))
            tag_ready[0] = True
    DQ = QA + 8
    def score_tile(T):
        C("scores tile %d" % T)
        wait_op(('K', T, 7))
        for hf in range(2):
            for G in range(4):
                c = "0" if hf == 0 else "v[%d:%d]" % (DQ + 4 * G, DQ + 4 * G + 3)
                r = KR + 32 * T + 4 * (2 * G + hf)
                I("v_mfma_f32_16x16x32_bf16 v[%d:%d], v[%d:%d], v[%d:%d], %s" % (DQ + 4 * G, DQ + 4 * G + 3, QA + 4 * hf, QA + 4 * hf + 3, r, r + 3, c))
        t = QA + 24
        for G in range(4):
            I("v_mov_b32_dpp v%d, v%d quad_perm:[0,0,0,0] row_mask:0xf bank_mask:0xf" % (t + G, DQ + 4 * G))
        for c in range(1, 4):
            for G in range(4):
                I("v_add_f32_dpp v%d, v%d, v%d quad_perm:[%d,%d,%d,%d] row_mask:0xf bank_mask:0xf" % (t + G, DQ + 4 * G + c, t + G, c, c, c, c))
        I("v_cndmask_b32 v%d, v%d, v%d, s[22:23]" % (t, t, t + 1))
        I("v_cndmask_b32 v%d, v%d, v%d, s[24:25]" % (t, t, t + 2))
        I("v_cndmask_b32 v%d, v%d, v%d, s[26:27]" % (t, t, t + 3))
        I("v_mov_b32 v%d, v%d" % (t + 1, t))
        I("v_permlane16_swap_b32 v%d, v%d" % (t, t + 1))
        I("v_cvt_pk_bf16_f32 v%d, v%d, v%d" % (SACC + T, t, t + 1))
        if T == 3:
            I("v_cndmask_b32 v%d, v%d, v%d, s[16:17]" % (SACC + 4, SACC, SACC + 1))
            I("v_cndmask_b32 v%d, v%d, v%d, s[18:19]" % (SACC + 4, SACC + 4, SACC + 2))
            I("v_cndmask_b32 v%d, v%d, v%d, s[20:21]" % (SACC + 4, SACC + 4, SACC + 3))
            I("buffer_store_dwordx2 v[%d:%d], v9, s[60:63], s15 offen @ST@" % (SACC + 4, SACC + 5))
            ops.append(('S', T))
    first_v = min(i for i, o in enumerate(sched) if o[0] == 'V')
    last_k = max(i for i, o in enumerate(sched) if o[0] == 'K')
    qpos = cfg.qpos
    tiles_done = 0
    scores_flagged = False
    wo_flagged = False
    for si, o in enumerate(sched):
        win = cfg.wk if si <= last_k else cfg.wv
        if si == cfg.wk_pre:
            I("s_branch L_bulk_main"); SEC("bulkmain"); L("L_bulk_main")
            bulk_setup_b()
        if len(ops) >= win and not (qpos < si <= qpos + 3):
            sk = None
            if scores_flagged:
                sk = lab("sk")
                I("s_cmp_lg_u32 s47, 0")
                I("s_cbranch_scc1 %s" % sk)
            I("s_waitcnt vmcnt(%d)" % (win - 1))
            if sk and si > cfg.t2 and not cfg.nofree:
                I("ds_read_b32 v13, v4 offset:%d" % FO(eval(cfg.free_flag)))
                I("s_waitcnt lgkmcnt(0)")
                I("v_readfirstlane_b32 s46, v13")
                I("s_lshr_b32 s47, s46, 6")
            if sk: L(sk)
        if si == cfg.t1:
            set_flag_add(4, FO(F_T1), 5); STAMP_(10)
        if si == qpos:
            C("wait q")
            STAMP_(2)
            ensure_tag()
            wait_flag(4, FO(F_Q), 1, 13)
            for hf in range(2):
                I("ds_read_b128 v[%d:%d], v10 offset:%d" % (QA + 4 * hf, QA + 4 * hf + 3, 256 * hf))
            I("s_waitcnt lgkmcnt(0)")
            STAMP_(3)
        if si >= qpos and tiles_done < 4:
            T = tiles_done
            score_tile(T); tiles_done += 1
            if tiles_done == 4:
                set_flag_add(4, FO(F_S), 5); scores_flagged = True
                STAMP_(4)
        if si == cfg.t2:
            set_flag_add(4, FO(F_T2), 5); STAMP_(11)
        if o[0] == 'K':
            _, T, t = o
            I("buffer_load_dwordx4 v[%d:%d], v6, s[48:51], s%d offen offset:%d%s" % (KR + 32 * T + 4 * t, KR + 32 * T + 4 * t + 3, 64 + T, 512 * (t // 2) + 256 * (t % 2), cfg.nt_kv))
            if si == cfg.kflag_slot:
                set_flag_add(4, FO(F_K), 5)
            if si == last_k: STAMP_(12)
        elif o[0] == 'V':
            _, T, j = o
            if T >= 1: assert tiles_done > T - 1, "V tile overwrites K tile not yet consumed"
            r = vreg[T] + 4 * j
            I("buffer_load_dwordx4 v[%d:%d], v7, s[52:55], s%d offen offset:%d%s" % (r, r + 3, 64 + T, 512 * j, cfg.nt_kv))
        else:
            i = o[1]
            if i >= 21: assert si > qpos, "wo chunk overlays x before q flag"
            if i % 4 == 0:
                I("s_add_u32 m0, s13, %d" % (i * 1024))
                I("s_mov_b32 s14, %d" % (i * 1024))
            I("buffer_load_dwordx4 v8, s[56:59], s14 offen offset:%d%s lds" % ((i % 4) * 1024, cfg.nt_wo))
        ops.append(o)
    assert tiles_done == 4
    STAMP_(6)
    dstT = {0: TMP, 1: VB, 2: KR, 3: KR + 32}
    def pv_perm(T):
        C("transpose V tile %d" % T)
        wait_op(('V', T, 7))
        R = vreg[T]; Dd = dstT[T]
        for jp in range(8):
            sel = "s68" if jp % 2 == 0 else "s69"
            for i in range(4):
                I("v_perm_b32 v%d, v%d, v%d, %s" % (Dd + 4 * jp + i, R + 4 * (2 * i + 1) + jp // 2, R + 4 * (2 * i) + jp // 2, sel))
    def pv_mfma(T):
        for q in range(8):
            c = "0" if T == 0 else "v[%d:%d]" % (QA + 4 * q, QA + 4 * q + 3)
            I("v_mfma_f32_16x16x32_bf16 v[%d:%d], v[%d:%d], v[%d:%d], %s" % (QA + 4 * q, QA + 4 * q + 3, PF + 4 * T, PF + 4 * T + 3, dstT[T] + 4 * q, dstT[T] + 4 * q + 3, c))
    for T in range(3): pv_perm(T)
    I("ds_read_b32 v13, v4 offset:%d" % FO(F_P))
    I("s_waitcnt lgkmcnt(0)")
    I("v_readfirstlane_b32 s46, v13")
    I("s_lshr_b32 s47, s46, 7")
    I("s_cmp_lg_u32 s47, 0")
    I("s_cbranch_scc1 L_p_early")
    pv_perm(3)
    C("wait p")
    wait_flag(4, FO(F_P), 128, 13)
    L("L_p_early")
    for T in range(4):
        I("ds_read_b128 v[%d:%d], v11 offset:%d" % (PF + 4 * T, PF + 4 * T + 3, 512 * T))
    STAMP_(7)
    for T in range(3):
        I("s_waitcnt lgkmcnt(%d)" % (3 - T))
        pv_mfma(T)
    I("s_cmp_lg_u32 s47, 0")
    I("s_cbranch_scc0 L_p_late")
    pv_perm(3)
    L("L_p_late")
    I("s_waitcnt lgkmcnt(0)")
    pv_mfma(3)
    STAMP_(8)
    C("u-sum, pack, write OA")
    OS = 64
    for h in range(2):
        for jp in range(8):
            I("v_add_f32_dpp v%d, v%d, v%d row_ror:8 row_mask:0xf bank_mask:0xf" % (OS + 8 * h + jp, QA + 4 * jp + 2 * h + 1, QA + 4 * jp + 2 * h))
    I("s_mov_b64 exec, 0xff")
    for h in range(2):
        I("ds_write_b128 v12, v[%d:%d] offset:%d" % (OS + 8 * h, OS + 8 * h + 3, 256 * h))
        I("ds_write_b128 v12, v[%d:%d] offset:%d" % (OS + 8 * h + 4, OS + 8 * h + 7, 256 * h + 16))
    I("s_mov_b64 exec, -1")
    I("s_waitcnt lgkmcnt(0)")
    I("s_barrier")
    STAMP_(9)
    stamps_out()
    I("s_endpgm")

    SEC("svc")
    L("L_service")
    if cfg.prio: I("s_setprio %d" % cfg.prio)
    I("s_mov_b32 s14, 0x00ff00ff\ns_mov_b32 s15, 0x00ff00ff")
    I("v_cmp_gt_u32 vcc, 8, v2")
    I("v_lshrrev_b32 v6, 2, v2\nv_lshl_add_u32 v6, v3, 3, v6")
    I("v_and_b32 v7, 3, v2\nv_lshlrev_b32 v7, 3, v7")
    I("v_mul_u32_u24 v8, 896, v6\nv_add_u32 v8, v8, v7")
    I("v_lshl_add_u32 v6, v6, 5, v7")
    I("s_cmp_eq_u32 s3, 7\ns_cbranch_scc1 L_s3")
    I("s_cmp_eq_u32 s3, 6\ns_cbranch_scc1 L_s2_pre")
    I("s_cmp_eq_u32 s3, 5\ns_cbranch_scc1 L_s1")

    XF = 64; AF = 128
    L("L_s0")
    C("S0: wq tile DMA (even idx), gate_w, b2")
    I("v_lshrrev_b32 v9, 2, v0\nv_and_b32 v10, 3, v0\nv_lshlrev_b32 v10, 4, v10")
    I("v_lshl_add_u32 v11, v9, 13, v10")
    start_sync()
    I("s_bitcmp1_b32 s9, 0\ns_cbranch_scc1 L_s0_noq1")
    tq_calc("s11")
    I("s_lshl_b32 s10, s8, 10\ns_lshl_b32 s11, s11, 6\ns_add_u32 s10, s10, s11")
    I("s_sub_u32 s11, %d, s10" % (448 * 8192))
    srd_add(48, 22, 23, "s10", "s11")
    I("s_mov_b32 s12, 0\ns_mov_b32 m0, %d" % WQT)
    dma_loop(28, 11, 48, 0x20000, cfg.nt_w)
    L("L_s0_noq1")
    I("v_mov_b32 v13, %d" % OOB)
    srd(52, 36, 37, "896")
    I("v_lshlrev_b32 v14, 4, v0\nv_cmp_gt_u32 vcc, 56, v0\nv_cndmask_b32 v14, v13, v14, vcc")
    I("buffer_load_dwordx4 v[36:39], v14, s[52:55], 0 offen")
    srd(56, 34, 35, "896")
    I("v_and_b32 v15, 7, v0\nv_lshlrev_b32 v15, 2, v15\ns_lshl_b32 s10, s7, 5")
    I("buffer_load_dword v52, v15, s[56:59], s10 offen")
    start_bar()
    I("s_branch L_s0_main"); SEC("s0main"); L("L_s0_main")
    wait_flag(4, FO(F_X), 1, 26)
    I("v_and_b32 v12, 7, v2\nv_mul_u32_u24 v12, 896, v12\nv_lshl_add_u32 v12, v3, 4, v12\nv_add_u32 v12, %d, v12" % XL)
    for t in range(14):
        I("ds_read_b128 v[%d:%d], v12 offset:%d" % (XF + 4 * t, XF + 4 * t + 3, 64 * t))
    I("s_mul_i32 s10, s4, 896\ns_add_u32 s10, s10, %d" % XL)
    I("v_min_u32 v14, 55, v0\nv_lshlrev_b32 v14, 4, v14\nv_add_u32 v14, s10, v14")
    I("ds_read_b128 v[32:35], v14")
    I("s_waitcnt vmcnt(0) lgkmcnt(0)")
    STAMP_(2)
    I("s_mul_i32 s44, s44, 1664525\ns_add_u32 s44, s44, 1013904223")
    I("s_bitcmp1_b32 s9, 0\ns_cbranch_scc1 L_s0_noq2")
    I("v_lshrrev_b32 v15, 2, v2\nv_lshl_add_u32 v15, v3, 3, v15\nv_lshlrev_b32 v15, 6, v15\nv_add_u32 v15, v15, v7\nv_add_u32 v15, %d, v15" % WQT)
    for t in range(14):
        for ct in range(2):
            r = AF + 8 * t + 4 * ct
            I("ds_read_b64_tr_b16 v[%d:%d], v15 offset:%d" % (r, r + 1, 2048 * t + 32 * ct))
            I("ds_read_b64_tr_b16 v[%d:%d], v15 offset:%d" % (r + 2, r + 3, 2048 * t + 32 * ct + 256))
    I("s_waitcnt lgkmcnt(0)")
    for t in range(14):
        for ct in range(2):
            d = 16 + 4 * ct
            c = "0" if t == 0 else "v[%d:%d]" % (d, d + 3)
            r = AF + 8 * t + 4 * ct
            I("v_mfma_f32_16x16x32_bf16 v[%d:%d], v[%d:%d], v[%d:%d], %s" % (d, d + 3, r, r + 3, XF + 4 * t, XF + 4 * t + 3, c))
    I("v_lshlrev_b32 v14, 11, v2\nv_lshl_add_u32 v14, v3, 4, v14\nv_cmp_gt_u32 vcc, 8, v2\nv_cndmask_b32 v14, v13, v14, vcc")
    tq_calc("s11")
    I("s_lshl_b32 s10, s8, 14\ns_lshl_b32 s11, s11, 7\ns_add_u32 s10, s10, s11\ns_add_u32 s10, s10, %d" % QBUF)
    I("v_mov_b32 v57, s44\nv_mov_b32 v59, s44\nv_mov_b32 v61, s44\nv_mov_b32 v63, s44")
    I("v_cvt_pk_bf16_f32 v56, v16, v17\nv_cvt_pk_bf16_f32 v58, v18, v19\nv_cvt_pk_bf16_f32 v60, v20, v21\nv_cvt_pk_bf16_f32 v62, v22, v23")
    I("buffer_store_dwordx4 v[56:59], v14, s[60:63], s10 offen @ST@")
    I("buffer_store_dwordx4 v[60:63], v14, s[60:63], s10 offen offset:64 @ST@")
    L("L_s0_noq2")
    STAMP_(3)
    C("gate (lanes >= 56 have gate_w = 0)")
    for q in range(4):
        I("v_lshlrev_b32 v%d, 16, v%d\nv_and_b32 v%d, 0xffff0000, v%d" % (24 + 2 * q, 32 + q, 25 + 2 * q, 32 + q))
        I("v_lshlrev_b32 v%d, 16, v%d\nv_and_b32 v%d, 0xffff0000, v%d" % (40 + 2 * q, 36 + q, 41 + 2 * q, 36 + q))
    for k in range(8): I("v_mul_f32 v%d, v%d, v%d" % (24 + k, 24 + k, 40 + k))
    for q in range(4): rnd_pair(24 + 2 * q, 25 + 2 * q, 24 + 2 * q, 25 + 2 * q, 32)
    I("v_add_f32 v24, v24, v25\nv_add_f32 v26, v26, v27\nv_add_f32 v28, v28, v29\nv_add_f32 v30, v30, v31")
    I("v_add_f32 v24, v24, v26\nv_add_f32 v28, v28, v30\nv_add_f32 v24, v24, v28")
    wave_reduce("v_add_f32", 24, 25)
    rnd_pair(24, 25, 24, 24, 26)
    I("v_mul_f32 v24, 0x%08x, v24" % f2u(-1.4426950408889634))
    I("v_exp_f32 v24, v24\nv_add_f32 v24, 1.0, v24\nv_rcp_f32 v24, v24")
    rnd_pair(50, 25, 24, 24, 26)
    I("v_sub_f32 v24, 1.0, v50")
    rnd_pair(51, 25, 24, 24, 26)
    STAMP_(4)
    C("q gather")
    wait_flag(4, FO(F_T1), 256, 26)
    I("s_lshl_b32 s10, s5, 3\ns_add_u32 s10, s10, s4\ns_lshl_b32 s10, s10, 11\ns_add_u32 s10, s10, %d" % QBUF)
    I("v_lshlrev_b32 v14, 4, v0")
    STAMP_(5)
    def iss():
        I("buffer_load_dwordx4 v[16:19], v14, s[60:63], s10 offen @LD@")
        I("buffer_load_dwordx4 v[20:23], v14, s[60:63], s10 offen offset:1024 @LD@")
    poll(iss, [17, 19, 21, 23], 26, 27)
    if cfg.stamps:
        I("s_sub_u32 s86, %d, s45\ns_mov_b32 s87, 0" % (cfg.maxpoll + 1))
    I("v_lshlrev_b32 v15, 3, v0\nv_add_u32 v15, %d, v15" % QL)
    I("ds_write2_b32 v15, v16, v18 offset0:0 offset1:1")
    I("ds_write2_b32 v15, v20, v22 offset0:128 offset1:129")
    set_flag_add(4, FO(F_Q), 5)
    STAMP_(6)
    if cfg.wo_by == 'S0':
        wo_tile('L_s0_wo')
        L('L_s0_wo')
        set_flag_add(4, FO(F_WO), 5)
    C("MLP partial gather (owners)")
    I("s_cmp_ge_u32 s7, 28\ns_cbranch_scc1 L_s0_nomlp")
    wait_flag(4, FO(F_T2), 256, 26)
    I("s_mul_i32 s10, s4, 28\ns_add_u32 s10, s10, s7\ns_lshl_b32 s10, s10, 11\ns_add_u32 s10, s10, %d" % MBUF)
    I("v_lshlrev_b32 v14, 4, v0")
    def iss():
        I("buffer_load_dwordx4 v[16:19], v14, s[60:63], s10 offen @LD@")
        I("buffer_load_dwordx4 v[20:23], v14, s[60:63], s10 offen offset:1024 @LD@")
    poll(iss, [17, 19, 21, 23], 26, 27)
    I("v_add_f32 v16, v16, v20\nv_add_f32 v18, v18, v22")
    def red8(v, t):
        I("v_add_f32_dpp v%d, v%d, v%d row_ror:8 row_mask:0xf bank_mask:0xf" % (v, v, v))
        for sw in ("v_permlane16_swap_b32", "v_permlane32_swap_b32"):
            I("v_mov_b32 v%d, v%d" % (t, v)); I("%s v%d, v%d" % (sw, v, t)); I("v_add_f32 v%d, v%d, v%d" % (v, v, t))
    red8(16, 24); red8(18, 25)
    rnd_pair(16, 18, 16, 18, 26)
    I("v_lshlrev_b32 v24, 16, v52\nv_and_b32 v25, 0xffff0000, v52")
    I("v_add_f32 v16, v16, v24\nv_add_f32 v18, v18, v25")
    rnd_pair(16, 18, 16, 18, 26)
    I("v_mul_f32 v16, v16, v51\nv_mul_f32 v18, v18, v51")
    rnd_pair(53, 54, 16, 18, 26)
    L("L_s0_nomlp")
    STAMP_(7)
    I("s_branch L_outproj")

    SEC("s1start")
    L("L_s1")
    start_sync()
    if cfg.code_pf:
        C("one workgroup per XCD pulls the kernel's code into L2 (reads only)")
        I("s_cmp_eq_u32 s9, 31\ns_cbranch_scc0 L_s1_nopf")
        I("s_getpc_b64 s[10:11]")
        L("L_pcref")
        I("s_sub_u32 s10, s10, L_pcref-%s\ns_subb_u32 s11, s11, 0" % NAME)
        I("v_lshlrev_b32 v9, 4, v0")
        for i in range(cfg.code_pf):
            I("global_load_dwordx4 v[64:67], v9, s[10:11]")
            if i < cfg.code_pf - 1: I("v_add_u32 v9, 1024, v9")
        L("L_s1_nopf")
    start_bar()
    I("s_branch L_s1_main"); SEC("s1main"); L("L_s1_main")
    I("s_cmp_ge_u32 s9, 28\ns_cbranch_scc1 L_s1_none")
    C("M2: w2 tile [112 rows x 32 columns]; s12 = k range (0..15), s13 = column tile (0..13)")
    I("s_cmp_ge_u32 s9, 14\ns_cselect_b32 s12, 1, 0\ns_mul_i32 s13, s12, 14\ns_sub_u32 s13, s9, s13\ns_lshl_b32 s11, s8, 1\ns_add_u32 s12, s12, s11")
    I("s_mov_b32 s68, s12\ns_mov_b32 s69, s13")
    I("s_mul_i32 s10, s12, %d\ns_lshl_b32 s11, s13, 6\ns_add_u32 s10, s10, s11" % (112 * 896))
    I("s_sub_u32 s11, %d, s10" % (1792 * 896))
    srd_add(48, 32, 33, "s10", "s11")
    I("v_lshrrev_b32 v9, 2, v0\nv_and_b32 v10, 3, v0\nv_lshlrev_b32 v10, 4, v10")
    I("v_mul_u32_u24 v11, 896, v9\nv_add_u32 v11, v11, v10")
    if cfg.w2_trig: wait_flag(4, FO(eval(cfg.w2_trig)), 256, 26)
    I("s_mov_b32 s12, 0\ns_mov_b32 m0, %d" % W2T)
    for i in range(7):
        if i >= cfg.w2_win: I("s_waitcnt vmcnt(%d)" % (cfg.w2_win - 1))
        I("buffer_load_dwordx4 v11, s[48:51], s12 offen%s lds" % cfg.nt_w)
        if i < 6: I("s_add_u32 m0, m0, 1024\ns_add_u32 s12, s12, %d" % (16 * 896))
    I("s_waitcnt vmcnt(0) lgkmcnt(0)")
    I("s_mul_i32 s44, s44, 1664525\ns_add_u32 s44, s44, 1013904223")
    I("v_lshrrev_b32 v15, 2, v2\nv_lshl_add_u32 v15, v3, 3, v15\nv_lshlrev_b32 v15, 6, v15\nv_add_u32 v15, v15, v7\nv_add_u32 v15, %d, v15" % W2T)
    I("v_and_b32 v12, 1, v3\nv_lshrrev_b32 v14, 2, v2\nv_lshl_add_u32 v14, v12, 3, v14\nv_lshlrev_b32 v14, 6, v14\nv_add_u32 v14, v14, v7\nv_add_u32 v14, %d, v14" % W2T)
    for t in range(4):
        for ct in range(2):
            r = 160 + 8 * t + 4 * ct
            a_ = 15 if t < 3 else 14
            I("ds_read_b64_tr_b16 v[%d:%d], v%d offset:%d" % (r, r + 1, a_, 2048 * t + 32 * ct))
            I("ds_read_b64_tr_b16 v[%d:%d], v%d offset:%d" % (r + 2, r + 3, a_, 2048 * t + 32 * ct + 256))
    I("s_waitcnt lgkmcnt(0)")
    STAMP_(2)
    wait_flag(4, FO(eval(cfg.h_trig)), 256, 26)
    STAMP_(3)
    I("v_mov_b32 v13, %d" % OOB)
    I("v_lshrrev_b32 v9, 3, v0\nv_and_b32 v10, 7, v0\nv_mul_u32_u24 v14, 7168, v9\nv_lshl_add_u32 v14, v10, 4, v14")
    I("v_cmp_gt_u32 vcc, 4, v10\nv_cndmask_b32 v12, v13, v14, vcc")
    I("s_mul_i32 s10, s68, 448\ns_add_u32 s10, s10, %d" % HBUF)
    I("s_mov_b32 s14, 0x0f0f0f0f\ns_mov_b32 s15, 0x0f0f0f0f")
    def iss():
        for i in range(3):
            r = 64 + 4 * i
            I("buffer_load_dwordx4 v[%d:%d], v14, s[60:63], s10 offen offset:%d @LD@" % (r, r + 3, 128 * i))
        I("buffer_load_dwordx4 v[76:79], v12, s[60:63], s10 offen offset:384 @LD@")
    lp = lab("pl"); dn = lab("pld")
    I("s_mov_b32 s45, %d" % cfg.maxpoll)
    L(lp)
    iss()
    I("s_waitcnt vmcnt(0)")
    I("v_mov_b32 v28, s44")
    I("v_cndmask_b32 v77, v28, v77, s[14:15]\nv_cndmask_b32 v79, v28, v79, s[14:15]")
    check_tags([65, 67, 69, 71, 73, 75, 77, 79], 26, 27)
    I("s_cbranch_scc1 %s" % dn)
    if cfg.backoff: I("s_sleep %d" % cfg.backoff)
    I("s_sub_u32 s45, s45, 1\ns_cmp_lg_u32 s45, 0\ns_cbranch_scc1 %s" % lp)
    L(dn)
    STAMP_(4)
    I("v_mul_u32_u24 v15, 272, v9\nv_lshl_add_u32 v15, v10, 3, v15\nv_add_u32 v15, %d, v15" % HL)
    for i in range(4):
        I("ds_write2_b32 v15, v%d, v%d offset0:%d offset1:%d" % (64 + 4 * i, 64 + 4 * i + 2, 16 * i, 16 * i + 1))
    I("v_and_b32 v15, 7, v2\nv_mul_u32_u24 v15, 272, v15\nv_lshl_add_u32 v15, v3, 4, v15\nv_add_u32 v15, %d, v15" % HL)
    I("s_waitcnt lgkmcnt(0)")
    for t in range(4):
        I("ds_read_b128 v[%d:%d], v15 offset:%d" % (128 + 4 * t, 128 + 4 * t + 3, 64 * t))
    I("s_waitcnt lgkmcnt(0)")
    for t in range(4):
        for ct in range(2):
            d = 16 + 4 * ct
            c = "0" if t == 0 else "v[%d:%d]" % (d, d + 3)
            r = 160 + 8 * t + 4 * ct
            I("v_mfma_f32_16x16x32_bf16 v[%d:%d], v[%d:%d], v[%d:%d], %s" % (d, d + 3, 128 + 4 * t, 128 + 4 * t + 3, r, r + 3, c))
    I("v_and_b32 v14, 1, v3\nv_mul_u32_u24 v14, %d, v14\nv_lshrrev_b32 v16 + 0, 1, v3" .replace("v16 + 0", "v24") % (4 * 28 * 2048))
    I("v_lshl_add_u32 v14, v24, 11, v14\nv_lshl_add_u32 v14, v2, 3, v14")
    I("s_lshl_b32 s10, s69, 12\ns_lshl_b32 s11, s68, 7\ns_add_u32 s10, s10, s11\ns_add_u32 s10, s10, %d" % MBUF)
    I("s_mov_b32 s48, 0\ns_mov_b32 s49, -1")
    for r in range(4):
        I("v_mov_b32 v%d, s44" % (33 + 2 * r))
        I("v_cndmask_b32 v%d, v%d, v%d, s[48:49]" % (32 + 2 * r, 16 + r, 20 + r))
    for r in range(4):
        I("s_add_u32 s11, s10, %d" % (r * 28 * 2048))
        I("buffer_store_dwordx2 v[%d:%d], v14, s[60:63], s11 offen @ST@" % (32 + 2 * r, 33 + 2 * r))
    STAMP_(5)
    L("L_s1_none")
    if cfg.wo_by == 'S1':
        wo_tile('L_s1_wo')
        L('L_s1_wo')
        set_flag_add(4, FO(F_WO), 5)
        STAMP_(6)
    I("s_branch L_outproj")

    SEC("s3start")
    L("L_s3")
    C("wave 7: x -> LDS, then the wo tile (128 rows x 64 columns; batch b < 7 takes column block b)")
    I("v_lshlrev_b32 v9, 4, v0\ns_mov_b32 m0, %d\ns_mov_b32 s12, 0" % XL)
    start_sync()
    srd(48, 16, 17, "7168")
    for i in range(7):
        if i == 4: I("s_mov_b32 m0, %d\ns_mov_b32 s12, 4096" % (XL + 4096))
        I("buffer_load_dwordx4 v9, s[48:51], s12 offen offset:%d lds" % ((i % 4) * 1024))
    start_bar()
    I("s_branch L_s3_main"); SEC("s3main"); L("L_s3_main")
    I("s_waitcnt vmcnt(0)")
    set_flag_add(4, FO(F_X), 5)
    STAMP_(2)
    if cfg.wo_by == 'S3': wo_tile('L_s3_fin')
    L("L_s3_fin")
    if cfg.wo_by == 'S3': set_flag_add(4, FO(F_WO), 5)
    I("s_waitcnt lgkmcnt(0)")
    I("s_mul_i32 s44, s44, 1664525\ns_add_u32 s44, s44, 1013904223")
    I("s_branch L_softmax")
    SEC("s2start")
    L("L_s2_pre")
    C("wave 6: zero flags, w1 tile")
    I("v_lshlrev_b32 v9, 2, v0\nv_add_u32 v9, %d, v9\nv_mov_b32 v10, 0" % FLG)
    I("s_mov_b64 exec, 0xffff\nds_write_b32 v9, v10\ns_mov_b64 exec, -1")
    I("v_lshrrev_b32 v9, 1, v0\nv_and_b32 v10, 1, v0\nv_lshlrev_b32 v10, 4, v10")
    I("v_mul_u32_u24 v14, 3584, v9\nv_add_u32 v14, v14, v10")
    I("v_lshlrev_b32 v15, 3, v3")
    start_sync()
    I("s_bitcmp0_b32 s9, 0\ns_cbranch_scc1 L_s2_nom1\ns_cmp_ge_u32 s9, 28\ns_cbranch_scc1 L_s2_nom1")
    I("s_lshr_b32 s10, s9, 1\ns_mul_i32 s11, s8, 14\ns_add_u32 s10, s10, s11")
    I("s_mov_b32 s69, s10")
    I("s_lshl_b32 s10, s10, 5\ns_sub_u32 s11, %d, s10" % (448 * 3584))
    srd_add(56, 28, 29, "s10", "s11")
    srd(64, 30, 31, "3584")
    I("s_mov_b32 s12, 0\ns_mov_b32 m0, %d" % W1T)
    dma_loop(14, 14, 56, 32 * 3584, cfg.nt_w)
    I("buffer_load_dwordx2 v[24:25], v15, s[64:67], s10 offen")
    L("L_s2_nom1")
    I("s_waitcnt lgkmcnt(0)")
    start_bar()
    I("s_branch L_s2_main"); SEC("s2main"); L("L_s2_main")
    I("s_mul_i32 s44, s44, 1664525\ns_add_u32 s44, s44, 1013904223")
    I("s_bitcmp0_b32 s9, 0\ns_cbranch_scc1 L_softmax\ns_cmp_ge_u32 s9, 28\ns_cbranch_scc1 L_softmax")
    wait_flag(4, FO(F_X), 1, 26)
    C("LayerNorm (wave 6, M1 workgroups)")
    I("v_lshrrev_b32 v9, 3, v0\nv_and_b32 v10, 7, v0\nv_lshlrev_b32 v10, 4, v10")
    I("v_mul_u32_u24 v11, 896, v9\nv_add_u32 v11, v11, v10\nv_add_u32 v11, %d, v11" % XL)
    for i in range(7):
        I("ds_read_b128 v[%d:%d], v11 offset:%d" % (64 + 4 * i, 64 + 4 * i + 3, 128 * i))
    I("v_mul_u32_u24 v12, 912, v9\nv_add_u32 v12, v12, v10\nv_add_u32 v12, %d, v12" % YL)
    I("s_waitcnt lgkmcnt(0)")
    set_flag_add(4, FO(F_Y), 5)
    F = 128
    for k in range(28):
        I("v_lshlrev_b32 v%d, 16, v%d\nv_and_b32 v%d, 0xffff0000, v%d" % (F + 2 * k, 64 + k, F + 2 * k + 1, 64 + k))
    I("v_pk_add_f32 v[16:17], v[%d:%d], v[%d:%d]" % (F, F + 1, F + 2, F + 3))
    for k in range(2, 28):
        I("v_pk_add_f32 v[16:17], v[16:17], v[%d:%d]" % (F + 2 * k, F + 2 * k + 1))
    I("v_add_f32 v16, v16, v17")
    def red_p(v):
        for mod in ("quad_perm:[1,0,3,2]", "quad_perm:[2,3,0,1]", "row_half_mirror"):
            I("v_add_f32_dpp v%d, v%d, v%d %s row_mask:0xf bank_mask:0xf" % (v, v, v, mod))
    red_p(16)
    I("v_mul_f32 v16, 0x%08x, v16" % f2u(1.0 / 448))
    rnd_pair(18, 19, 16, 16, 17)
    I("v_sub_f32 v20, v16, v18")
    I("v_sub_f32 v18, 0, v18\nv_mov_b32 v19, v18")
    for k in range(28):
        I("v_pk_add_f32 v[%d:%d], v[%d:%d], v[18:19]" % (F + 2 * k, F + 2 * k + 1, F + 2 * k, F + 2 * k + 1))
    I("v_pk_mul_f32 v[16:17], v[%d:%d], v[%d:%d]" % (F, F + 1, F, F + 1))
    for k in range(1, 28):
        I("v_pk_fma_f32 v[16:17], v[%d:%d], v[%d:%d], v[16:17]" % (F + 2 * k, F + 2 * k + 1, F + 2 * k, F + 2 * k + 1))
    I("v_add_f32 v16, v16, v17")
    red_p(16)
    I("v_mul_f32 v16, 0x%08x, v16" % f2u(1.0 / 448))
    I("v_fma_f32 v16, -v20, v20, v16\nv_max_f32 v16, 0, v16")
    rnd_pair(16, 17, 16, 16, 21)
    I("v_add_f32 v16, 0x%08x, v16" % f2u(1e-5))
    rnd_pair(16, 17, 16, 16, 21)
    I("v_sqrt_f32 v16, v16")
    rnd_pair(16, 17, 16, 16, 21)
    I("v_rcp_f32 v16, v16")
    I("v_mov_b32 v17, v16")
    for k in range(28):
        I("v_pk_mul_f32 v[%d:%d], v[%d:%d], v[16:17]" % (F + 2 * k, F + 2 * k + 1, F + 2 * k, F + 2 * k + 1))
    for k in range(28):
        I("v_cvt_pk_bf16_f32 v%d, v%d, v%d" % (64 + k, F + 2 * k, F + 2 * k + 1))
    for i in range(7):
        I("ds_write_b128 v12, v[%d:%d] offset:%d" % (64 + 4 * i, 64 + 4 * i + 3, 128 * i))
    STAMP_(2)
    C("M1: h tile")
    I("s_waitcnt vmcnt(0) lgkmcnt(0)")
    I("v_mov_b32 v13, %d" % OOB)
    I("v_and_b32 v15, 7, v2\nv_mul_u32_u24 v15, 912, v15\nv_lshl_add_u32 v15, v3, 4, v15\nv_add_u32 v15, %d, v15" % YL)
    for t in range(14):
        I("ds_read_b128 v[%d:%d], v15 offset:%d" % (XF + 4 * t, XF + 4 * t + 3, 64 * t))
    I("v_add_u32 v15, %d, v6" % W1T)
    for t in range(14):
        I("ds_read_b64_tr_b16 v[%d:%d], v15 offset:%d" % (AF + 4 * t, AF + 4 * t + 1, 1024 * t))
        I("ds_read_b64_tr_b16 v[%d:%d], v15 offset:%d" % (AF + 4 * t + 2, AF + 4 * t + 3, 1024 * t + 128))
    I("s_waitcnt lgkmcnt(0)")
    for t in range(14):
        c = "0" if t == 0 else "v[16:19]"
        I("v_mfma_f32_16x16x32_bf16 v[16:19], v[%d:%d], v[%d:%d], %s" % (AF + 4 * t, AF + 4 * t + 3, XF + 4 * t, XF + 4 * t + 3, c))
    rnd_pair(16, 17, 16, 17, 26)
    rnd_pair(18, 19, 18, 19, 27)
    I("v_lshlrev_b32 v28, 16, v24\nv_and_b32 v29, 0xffff0000, v24\nv_lshlrev_b32 v30, 16, v25\nv_and_b32 v31, 0xffff0000, v25")
    for r in range(4): I("v_add_f32 v%d, v%d, v%d" % (16 + r, 16 + r, 28 + r))
    rnd_pair(16, 17, 16, 17, 26)
    rnd_pair(18, 19, 18, 19, 27)
    k0 = -2.0 * 0.7978845608028654 * 1.4426950408889634
    k1 = k0 * 0.044715
    I("s_mov_b32 s10, 0x%08x\ns_mov_b32 s11, 0x%08x" % (f2u(k0), f2u(k1)))
    I("v_mov_b32 v32, s10")
    for r in range(4):
        I("v_mul_f32 v%d, v%d, v%d" % (28 + r, 16 + r, 16 + r))
        I("v_fma_f32 v%d, v%d, s11, v32" % (28 + r, 28 + r))
        I("v_mul_f32 v%d, v%d, v%d" % (28 + r, 28 + r, 16 + r))
    for r in range(4): I("v_exp_f32 v%d, v%d" % (28 + r, 28 + r))
    for r in range(4): I("v_add_f32 v%d, 1.0, v%d" % (28 + r, 28 + r))
    for r in range(4): I("v_rcp_f32 v%d, v%d" % (28 + r, 28 + r))
    for r in range(4): I("v_mul_f32 v%d, v%d, v%d" % (16 + r, 16 + r, 28 + r))
    I("v_mov_b32 v21, s44\nv_mov_b32 v23, s44")
    I("v_cvt_pk_bf16_f32 v20, v16, v17\nv_cvt_pk_bf16_f32 v22, v18, v19")
    I("v_mul_u32_u24 v14, 7168, v2\nv_lshl_add_u32 v14, v3, 4, v14\nv_cmp_gt_u32 vcc, 8, v2\nv_cndmask_b32 v14, v13, v14, vcc")
    I("s_lshl_b32 s10, s69, 6\ns_add_u32 s10, s10, %d" % HBUF)
    I("buffer_store_dwordx4 v[20:23], v14, s[60:63], s10 offen @ST@")
    STAMP_(6)
    L("L_softmax")
    C("softmax for head (wave-6); wave 6 gathers the scores and hands the raw words to wave 7 through LDS")
    I("v_lshlrev_b32 v15, 4, v0\nv_add_u32 v15, %d, v15" % SG)
    I("s_cmp_eq_u32 s3, 6\ns_cbranch_scc0 L_sm_w7")
    wait_flag(4, FO(F_T2), 256, 26)
    STAMP_(3)
    I("s_lshl_b32 s10, s4, 3\ns_add_u32 s10, s10, s5\ns_lshl_b32 s10, s10, 13\ns_add_u32 s10, s10, %d\ns_add_u32 s11, s10, 4096" % SBUF)
    I("v_lshlrev_b32 v14, 4, v0")
    def iss():
        for i in range(8):
            I("buffer_load_dwordx4 v[%d:%d], v14, s[60:63], s%d offen offset:%d @LD@" % (64 + 4 * i, 64 + 4 * i + 3, 10 + i // 4, (i % 4) * 1024))
    tags = []
    for k in range(8): tags += [64 + 4 * k + 1, 64 + 4 * k + 3]
    poll(iss, tags, 26, 27, after_first=lambda: (STAMP_(7), set_flag_add(4, FO(F_SP), 5)))
    if cfg.stamps:
        I("s_sub_u32 s86, %d, s45\ns_mov_b32 s87, 0" % (cfg.maxpoll + 1))
    for i in range(8):
        I("v_mov_b32 v%d, v%d\nv_mov_b32 v%d, v%d" % (96 + 2 * i, 64 + 4 * i, 96 + 2 * i + 1, 64 + 4 * i + 2))
    for q in range(4):
        I("ds_write_b128 v15, v[%d:%d] offset:%d" % (96 + 4 * q, 96 + 4 * q + 3, 1024 * q))
    set_flag_add(4, FO(F_G), 5)
    I("s_branch L_sm_go")
    L("L_sm_w7")
    wait_flag(4, FO(F_G), 1, 26)
    for q in range(4):
        I("ds_read_b128 v[%d:%d], v15 offset:%d" % (96 + 4 * q, 96 + 4 * q + 3, 1024 * q))
    I("s_waitcnt lgkmcnt(0)")
    L("L_sm_go")
    STAMP_(4)
    I("s_mov_b32 s12, 0x01000c0c\ns_cmp_eq_u32 s3, 6\ns_cselect_b32 s12, s12, 0x03020c0c")
    F = 128
    for i in range(16):
        I("v_perm_b32 v%d, v%d, v%d, s12" % (F + i, 96 + i, 96 + i))
    I("v_max3_f32 v16, v%d, v%d, v%d" % (F, F + 1, F + 2))
    for k in range(3, 15, 2): I("v_max3_f32 v16, v16, v%d, v%d" % (F + k, F + k + 1))
    I("v_max_f32 v16, v16, v%d" % (F + 15))
    wave_reduce("v_max_f32", 16, 17)
    cexp = 1.4426950408889634 / 16.0
    I("s_mov_b32 s13, 0x%08x" % f2u(cexp))
    I("v_mul_f32 v16, s13, v16\nv_sub_f32 v16, 0, v16")
    for k in range(16): I("v_fma_f32 v%d, v%d, s13, v16" % (F + k, F + k))
    for k in range(16): I("v_exp_f32 v%d, v%d" % (F + k, F + k))
    I("v_add_f32 v17, v%d, v%d" % (F, F + 1))
    I("v_add_f32 v18, v%d, v%d" % (F + 2, F + 3))
    for k in range(4, 16, 2):
        I("v_add_f32 v17, v17, v%d\nv_add_f32 v18, v18, v%d" % (F + k, F + k + 1))
    I("v_add_f32 v17, v17, v18")
    wave_reduce("v_add_f32", 17, 18)
    I("v_rcp_f32 v17, v17")
    for k in range(16): I("v_mul_f32 v%d, v%d, v17" % (F + k, F + k))
    for i in range(8): I("v_cvt_pk_bf16_f32 v%d, v%d, v%d" % (64 + i, F + 2 * i, F + 2 * i + 1))
    I("s_sub_u32 s12, s3, 6\ns_lshl_b32 s12, s12, 11\ns_add_u32 s12, s12, %d" % PL)
    I("v_lshlrev_b32 v15, 2, v0\nv_add_u32 v15, s12, v15")
    for i in range(8): I("ds_write_b32 v15, v%d offset:%d" % (64 + i, 256 * i))
    set_flag_add(4, FO(F_P), 5)
    STAMP_(5)

    L("L_outproj")
    BF = 128
    I("s_cmp_ge_u32 s3, 5\ns_cbranch_scc1 L_s23_end")
    C("wave 4: preload wo fragments for four 16-column tiles")
    wait_flag(4, FO(F_WO), 1, 26)
    I("v_lshrrev_b32 v8, 2, v2\nv_lshl_add_u32 v8, v3, 3, v8\nv_lshlrev_b32 v8, 7, v8\nv_add_u32 v8, v8, v7")
    if WOT: I("v_add_u32 v8, %d, v8" % WOT)
    for t in range(4):
        for tt in range(4):
            r = BF + 4 * (t * 4 + tt)
            I("ds_read_b64_tr_b16 v[%d:%d], v8 offset:%d" % (r, r + 1, t * 4096 + tt * 32))
            I("ds_read_b64_tr_b16 v[%d:%d], v8 offset:%d" % (r + 2, r + 3, t * 4096 + tt * 32 + 512))
    I("v_mov_b32 v13, %d" % OOB)
    I("v_lshlrev_b32 v10, 4, v0")
    I("s_lshl_b32 s10, s7, 12\ns_add_u32 s10, s10, %d" % OBUF)
    I("s_lshl_b32 s11, s4, 9\nv_add_u32 v11, s11, v10\nv_cmp_gt_u32 vcc, 32, v0\nv_cndmask_b32 v11, v13, v11, vcc")
    I("v_and_b32 v12, 31, v0\nv_lshlrev_b32 v12, 4, v12\nv_add_u32 v12, %d, v12" % OA)
    I("v_lshrrev_b32 v9, 5, v0\nv_mul_u32_u24 v9, 272, v9\nv_and_b32 v15, 31, v0\nv_lshl_add_u32 v9, v15, 3, v9\nv_add_u32 v9, %d, v9" % OG)
    I("v_and_b32 v15, 7, v2\nv_mul_u32_u24 v15, 272, v15\nv_lshl_add_u32 v15, v3, 4, v15\nv_add_u32 v15, %d, v15" % OG)
    I("v_and_b32 v14, 1, v3\nv_mul_u32_u24 v14, %d, v14\nv_lshrrev_b32 v16, 1, v3\nv_lshl_add_u32 v14, v16, 12, v14\nv_lshl_add_u32 v14, v2, 3, v14" % (4 * 28 * 4096))
    I("s_lshl_b32 s11, s4, 14\ns_lshl_b32 s13, s7, 7\ns_add_u32 s11, s11, s13\ns_add_u32 s11, s11, %d" % PBUF)
    I("s_mov_b32 s48, 0\ns_mov_b32 s49, -1")
    for k in range(8): I("v_mov_b32 v%d, s44" % (193 + 2 * k))
    I("v_mov_b32 v57, s44\nv_mov_b32 v59, s44")
    I("s_waitcnt lgkmcnt(0)")
    STAMP_(9)
    I("s_barrier")
    STAMP_(10)
    C("reduce the four o partials, round, publish")
    for w in range(4):
        I("ds_read_b128 v[%d:%d], v12 offset:%d" % (64 + 4 * w, 64 + 4 * w + 3, 512 * w))
    I("s_waitcnt lgkmcnt(2)")
    I("v_pk_add_f32 v[64:65], v[64:65], v[68:69]\nv_pk_add_f32 v[66:67], v[66:67], v[70:71]")
    I("s_waitcnt lgkmcnt(0)")
    I("v_pk_add_f32 v[72:73], v[72:73], v[76:77]\nv_pk_add_f32 v[74:75], v[74:75], v[78:79]")
    I("v_pk_add_f32 v[64:65], v[64:65], v[72:73]\nv_pk_add_f32 v[66:67], v[66:67], v[74:75]")
    I("v_cvt_pk_bf16_f32 v56, v64, v65\nv_cvt_pk_bf16_f32 v58, v66, v67")
    I("buffer_store_dwordx4 v[56:59], v11, s[60:63], s10 offen @ST@")
    STAMP_(11)
    I("s_cmp_eq_u32 s4, 7\ns_cbranch_scc1 L_noproj")
    def iss():
        for k in range(4):
            I("buffer_load_dwordx4 v[%d:%d], v10, s[60:63], s10 offen offset:%d @LD@" % (64 + 4 * k, 64 + 4 * k + 3, 1024 * k))
    tags = []
    for k in range(4): tags += [64 + 4 * k + 1, 64 + 4 * k + 3]
    poll(iss, tags, 26, 27, backoff=cfg.tail_backoff)
    STAMP_(12)
    for k in range(4):
        I("ds_write2_b32 v9, v%d, v%d offset0:%d offset1:%d" % (64 + 4 * k, 64 + 4 * k + 2, 136 * k, 136 * k + 1) if 136 * k + 1 < 256 else
          "v_add_u32 v9, %d, v9\nds_write2_b32 v9, v%d, v%d offset0:%d offset1:%d" % (544 * 2 if k == 2 else 0, 64 + 4 * k, 64 + 4 * k + 2, 136 * (k - 2), 136 * (k - 2) + 1) if k == 2 else
          "ds_write2_b32 v9, v%d, v%d offset0:%d offset1:%d" % (64 + 4 * k, 64 + 4 * k + 2, 136 * (k - 2), 136 * (k - 2) + 1))
    I("s_waitcnt lgkmcnt(0)")
    for t in range(4):
        I("ds_read_b128 v[%d:%d], v15 offset:%d" % (96 + 4 * t, 96 + 4 * t + 3, 64 * t))
    for t in range(4):
        I("s_waitcnt lgkmcnt(%d)" % (3 - t))
        for tt in range(4):
            r = BF + 4 * (t * 4 + tt); d = 16 + 4 * tt
            c = "0" if t == 0 else "v[%d:%d]" % (d, d + 3)
            I("v_mfma_f32_16x16x32_bf16 v[%d:%d], v[%d:%d], v[%d:%d], %s" % (d, d + 3, 96 + 4 * t, 96 + 4 * t + 3, r, r + 3, c))
    for p in range(2):
        for r in range(4):
            k = p * 4 + r
            I("v_cndmask_b32 v%d, v%d, v%d, s[48:49]" % (192 + 2 * k, 16 + 8 * p + r, 16 + 8 * p + 4 + r))
        for r in range(4):
            k = p * 4 + r
            I("s_add_u32 s13, s11, %d" % (r * 28 * 4096 + p * 2 * 4096))
            I("buffer_store_dwordx2 v[%d:%d], v14, s[60:63], s13 offen @ST@" % (192 + 2 * k, 193 + 2 * k))
    L("L_noproj")
    STAMP_(13)
    I("s_cmp_ge_u32 s7, 28\ns_cbranch_scc1 L_sdone")
    C("final gather")
    I("s_mul_i32 s10, s4, 28\ns_add_u32 s10, s10, s7\ns_lshl_b32 s10, s10, 12\ns_add_u32 s10, s10, %d" % PBUF)
    I("v_lshlrev_b32 v14, 4, v0")
    def iss():
        for i in range(4):
            I("buffer_load_dwordx4 v[%d:%d], v14, s[60:63], s10 offen offset:%d @LD@" % (64 + 4 * i, 64 + 4 * i + 3, 1024 * i))
    poll(iss, [65, 67, 69, 71, 73, 75, 77, 79], 26, 27, backoff=cfg.tail_backoff)
    STAMP_(14)
    I("v_add_f32 v16, v64, v68\nv_add_f32 v18, v66, v70\nv_add_f32 v17, v72, v76\nv_add_f32 v19, v74, v78")
    I("v_add_f32 v16, v16, v17\nv_add_f32 v18, v18, v19")
    red8(16, 24); red8(18, 25)
    rnd_pair(16, 18, 16, 18, 26)
    I("v_mul_f32 v16, v16, v50\nv_mul_f32 v18, v18, v50")
    rnd_pair(16, 18, 16, 18, 26)
    I("v_add_f32 v16, v16, v53\nv_add_f32 v18, v18, v54")
    I("v_cvt_pk_bf16_f32 v16, v16, v18")
    srd(48, 38, 39, "7168")
    I("v_lshlrev_b32 v14, 2, v0\nv_cmp_gt_u32 vcc, 8, v0\nv_cndmask_b32 v14, v13, v14, vcc")
    I("s_mul_i32 s10, s4, 896\ns_lshl_b32 s11, s7, 5\ns_add_u32 s10, s10, s11")
    I("buffer_store_dword v16, v14, s[48:51], s10 offen")
    C("epoch update by workgroup 0")
    I("s_cmp_eq_u32 s2, 0\ns_cbranch_scc0 L_sdone")
    I("v_mov_b32 v16, s44\nv_mov_b32 v14, %d\nv_cmp_eq_u32 vcc, 0, v0\nv_cndmask_b32 v14, v13, v14, vcc" % EPOCH)
    I("buffer_store_dword v16, v14, s[60:63], 0 offen @ST@")
    I("s_branch L_sdone")
    L("L_s23_end")
    I("s_barrier")
    L("L_sdone")
    STAMP_(15)
    stamps_out()
    L("L_end")
    I("s_endpgm")

    secs = {}; order_seen = []; cur = "entry"; secs[cur] = []; order_seen.append(cur)
    for ln in e.lines:
        if ln.startswith(";@SEC "):
            cur = ln[6:].strip(); secs[cur] = []; order_seen.append(cur)
        else: secs[cur].append(ln)
    first = ["entry", "svc", "s3start", "s2start", "s1start"]
    rest = [x for x in order_seen if x not in first]
    e.lines = []
    for x in first + rest: e.lines += secs[x]
    e.lines = [l.replace('@LD@', cfg.ldf).replace('@ST@', cfg.stf) for l in e.lines]
    body = e.finalize()
    hdr = open('gated_mix__sliding_block_cached__mixer_channel_mlp__decode.s.ref').read().split('\n')
    head = [l for l in hdr if l.startswith(';') and '@launch' not in l and 'Override launch' not in l]
    txt = "\n".join(head) + "\n; @launch grid=(256,1,1) block=(512,1,1) lds=%d\n" % LDS_SIZE
    txt += '.amdgcn_target "amdgcn-amd-amdhsa--gfx950"\n.text\n.globl %s\n.p2align 8\n.type %s,@function\n%s:\n' % (NAME, NAME, NAME)
    txt += body
    txt += '.section .rodata,"a"\n.p2align 6\n.amdhsa_kernel %s\n' % NAME
    txt += "  .amdhsa_next_free_vgpr 256\n  .amdhsa_next_free_sgpr 102\n  .amdhsa_accum_offset 256\n  .amdhsa_group_segment_fixed_size 0\n  .amdhsa_kernarg_size 112\n  .amdhsa_user_sgpr_count 2\n  .amdhsa_user_sgpr_kernarg_segment_ptr 1\n  .amdhsa_system_sgpr_workgroup_id_x 1\n.end_amdhsa_kernel\n"
    return txt

if __name__ == "__main__":
    cfg = Cfg()
    out = sys.argv[1] if len(sys.argv) > 1 else "gated_mix__sliding_block_cached__mixer_channel_mlp__decode.s"
    for a in sys.argv[2:]:
        k, v = a.split("=")
        setattr(cfg, k, eval(v))
    open(out, "w").write(gen(cfg))
    print("written", out)
```

```python
import sys, struct
from emit import Emitter

NAME = "gated_mix__sliding_block_cached__mixer_channel_mlp__decode_kernel"

WOT  = 0
WQT  = 16384
W1T  = WQT + 14336
W2T  = WQT + 28672
XL   = W2T + 7168
YL   = XL + 7168
QL   = YL + 7296
PL   = QL + 1024
OA   = PL + 4096
HL   = OA + 2048
OG   = HL + 2176
SG   = OG + 2176
FLG  = SG + 4096
F_Q, F_Y, F_S, F_P, F_WO, F_T1, F_T2, F_X, F_SP, F_K, F_G = [FLG + 4 * i for i in range(11)]
LDS_SIZE = FLG + 64
EPOCH = 0
QBUF = 4096
HBUF = QBUF + 131072
SBUF = 0x30000
MBUF = 0xB0000
PBUF = 0x120000
OBUF = 0x200000
STAMP = 0x220000
WS_RANGE = 0x400000
OOB = 0x7FFF0000

def f2u(x): return struct.unpack('<I', struct.pack('<f', x))[0]

class Cfg:
    wk = 8
    wv = 6
    nt_kv = " nt"
    nt_w = " nt"
    nt_wo = " nt"
    stamps = False
    qpos = 38
    sched = None
    pat = 'VW' * 8 + 'WWV' * 10 + 'V' * 14
    maxpoll = 20000
    prio = 3
    free_flag = 'F_G'
    nofree = False
    ldf = 'sc1'
    stf = 'sc1'
    code_pf = 15
    pf_mask = 31
    pf_skip = 1024
    wo_by = 'S1'
    tq_swap = True
    w2_win = 7
    wo_win = 6
    w2_trig = None
    wo_trig = None
    kflag_slot = 31
    pretouch = False
    tail_backoff = 0
    wo_rot = True
    s0_w = 'after_q'
    mapping = 'ps'
    s0_early_bar = False
    h_trig = 'F_T1'
    wk_pre = 2
    late_tiles = True
    t1 = 20
    t2 = 46
    backoff = 4

def default_sched(cfg):
    s = [('K', n // 8, n % 8) for n in range(32)]
    s += [('V', T, j) for T in range(4) for j in range(8)]
    return s

def gen(cfg):
    e = Emitter(); I = e.I; L = e.L; C = e.C
    nst = [0]
    def STAMP_(i):
        if cfg.stamps: I("s_memrealtime s[%d:%d]" % (70 + 2 * i, 71 + 2 * i))
    def stamps_out():
        if not cfg.stamps: return
        I("s_waitcnt vmcnt(0) lgkmcnt(0)")
        I("s_lshl_b32 s8, s2, 3\ns_add_u32 s8, s8, s3\ns_lshl_b32 s8, s8, 7\ns_add_u32 s8, s8, %d" % STAMP)
        I("v_mov_b32 v1, 0")
        I("s_mov_b64 exec, 1")
        for k in range(8):
            for q in range(4): I("v_mov_b32 v%d, s%d" % (4 + q, 70 + 4 * k + q))
            I("buffer_store_dwordx4 v[4:7], v1, s[60:63], s8 offen offset:%d" % (16 * k))
            I("s_nop 1")
        I("s_waitcnt vmcnt(0)")
    uid = [0]
    def lab(p):
        uid[0] += 1
        return "L_%s_%d" % (p, uid[0])
    def srd(n, lo, hi, nrec):
        I("s_mov_b32 s%d, s%d\ns_mov_b32 s%d, s%d\ns_mov_b32 s%d, %s\ns_mov_b32 s%d, 0x20000" % (n, lo, n + 1, hi, n + 2, nrec, n + 3))
    def srd_add(n, lo, hi, off_sgpr, nrec):
        I("s_add_u32 s%d, s%d, %s\ns_addc_u32 s%d, s%d, 0\ns_mov_b32 s%d, %s\ns_mov_b32 s%d, 0x20000" % (n, lo, off_sgpr, n + 1, hi, n + 2, nrec, n + 3))
    def wait_flag(addr_v, off, val, tmpv, cmp="ge"):
        lp = lab("fl"); dn = lab("fld")
        I("s_mov_b32 s45, 0x100000")
        L(lp)
        I("ds_read_b32 v%d, v%d offset:%d" % (tmpv, addr_v, off))
        I("s_waitcnt lgkmcnt(0)")
        I("v_readfirstlane_b32 s46, v%d" % tmpv)
        I("s_cmp_ge_u32 s46, %d" % val)
        I("s_cbranch_scc1 %s" % dn)
        I("s_sub_u32 s45, s45, 1")
        I("s_cmp_lg_u32 s45, 0")
        I("s_cbranch_scc1 %s" % lp)
        L(dn)
    def set_flag_add(addr_v, off, onev):
        I("ds_add_u32 v%d, v%d offset:%d" % (addr_v, onev, off))
    def check_tags(tags, vmin, vmax, lanemask=None):
        t = list(tags)
        if len(t) % 2 == 1: t.append(t[-1])
        I("v_min_u32 v%d, v%d, v%d" % (vmin, t[0], t[1]))
        I("v_max_u32 v%d, v%d, v%d" % (vmax, t[0], t[1]))
        for k in range(2, len(t), 2):
            I("v_min3_u32 v%d, v%d, v%d, v%d" % (vmin, vmin, t[k], t[k + 1]))
            I("v_max3_u32 v%d, v%d, v%d, v%d" % (vmax, vmax, t[k], t[k + 1]))
        I("v_cmp_ne_u32 vcc, s44, v%d" % vmin)
        I("v_cmp_ne_u32 s[46:47], s44, v%d" % vmax)
        I("s_or_b64 vcc, vcc, s[46:47]")
        if lanemask: I("s_and_b64 vcc, vcc, %s" % lanemask)
        I("s_cmp_eq_u64 vcc, 0")
    def poll(issue, tags, vmin, vmax, lanemask=None, backoff=cfg.backoff, after_first=None):
        lp = lab("pl"); dn = lab("pld")
        I("s_mov_b32 s45, %d" % cfg.maxpoll)
        if after_first:
            issue(); after_first()
            I("s_branch %s_w" % lp)
        L(lp)
        issue()
        if after_first: L(lp + "_w")
        I("s_waitcnt vmcnt(0)")
        check_tags(tags, vmin, vmax, lanemask)
        I("s_cbranch_scc1 %s" % dn)
        if backoff: I("s_sleep %d" % backoff)
        I("s_sub_u32 s45, s45, 1")
        I("s_cmp_lg_u32 s45, 0")
        I("s_cbranch_scc1 %s" % lp)
        L(dn)
    def rnd_pair(dst_lo, dst_hi, a, b, tmp):
        I("v_cvt_pk_bf16_f32 v%d, v%d, v%d" % (tmp, a, b))
        I("v_lshlrev_b32 v%d, 16, v%d" % (dst_lo, tmp))
        I("v_and_b32 v%d, 0xffff0000, v%d" % (dst_hi, tmp))
    def wave_reduce(op, v, t):
        for mod in ("quad_perm:[1,0,3,2]", "quad_perm:[2,3,0,1]", "row_half_mirror", "row_mirror"):
            I("%s_dpp v%d, v%d, v%d %s row_mask:0xf bank_mask:0xf" % (op, v, v, v, mod))
        for sw in ("v_permlane16_swap_b32", "v_permlane32_swap_b32"):
            I("v_mov_b32 v%d, v%d" % (t, v))
            I("%s v%d, v%d" % (sw, v, t))
            I("%s v%d, v%d, v%d" % (op, v, v, t))

    def tq_calc(dst):
        I("s_lshr_b32 %s, s9, 1" % dst)
        if cfg.tq_swap:
            I("s_and_b32 s46, %s, 6\ns_cmp_eq_u32 s46, 6\ns_cselect_b32 s46, 8, 0\ns_xor_b32 %s, %s, s46" % (dst, dst, dst))

    def wo_tile(skip):
        I("s_cmp_eq_u32 s4, 7\ns_cbranch_scc1 %s" % skip)
        I("s_lshl_b32 s10, s5, 9\ns_lshl_b32 s11, s6, 6\ns_add_u32 s10, s10, s11\ns_mul_i32 s10, s10, 896\ns_lshl_b32 s11, s4, 7\ns_add_u32 s10, s10, s11")
        I("s_sub_u32 s11, %d, s10" % (4096 * 896))
        srd_add(52, 24, 25, "s10", "s11")
        I("v_lshrrev_b32 v9, 3, v0\nv_mul_u32_u24 v9, 896, v9\nv_and_b32 v10, 7, v0\nv_lshl_add_u32 v9, v10, 4, v9")
        if cfg.wo_trig: wait_flag(4, FO(eval(cfg.wo_trig)), 256, 26)
        I("s_mov_b32 m0, %d\ns_mov_b32 s12, 0" % WOT)
        for i in range(16):
            if i >= cfg.wo_win: I("s_waitcnt vmcnt(%d)" % (cfg.wo_win - 1))
            I("buffer_load_dwordx4 v9, s[52:55], s12 offen%s lds" % cfg.nt_wo)
            if i < 15: I("s_add_u32 m0, m0, 1024\ns_add_u32 s12, s12, %d" % (8 * 896 if i != 7 else (256 - 56) * 896))
        I("s_waitcnt vmcnt(0)")

    def dma_loop(n, vreg_, srd_, step, flags, cnt="s13", win=None):
        lp = lab("dma")
        I("s_mov_b32 %s, %d" % (cnt, n))
        L(lp)
        if win: I("s_waitcnt vmcnt(%d)" % (win - 1))
        I("buffer_load_dwordx4 v%d, s[%d:%d], s12 offen%s lds" % (vreg_, srd_, srd_ + 3, flags))
        I("s_add_u32 m0, m0, 1024\ns_add_u32 s12, s12, %d\ns_sub_u32 %s, %s, 1\ns_cmp_lg_u32 %s, 0\ns_cbranch_scc1 %s" % (step, cnt, cnt, cnt, lp))
    def SEC(name): e.lines.append(";@SEC " + name)

    def code_prefetch():
        if not cfg.code_pf: return
        C("a few workgroups pull the kernel's code into L2 (reads only)")
        I("s_and_b32 s10, s9, %d\ns_cmp_eq_u32 s10, %d\ns_cbranch_scc0 L_s1_nopf" % (cfg.pf_mask, cfg.pf_mask))
        I("s_getpc_b64 s[10:11]")
        L("L_pcref")
        I("s_sub_u32 s10, s10, L_pcref-%s\ns_subb_u32 s11, s11, 0" % NAME)
        I("v_lshlrev_b32 v9, 4, v0\nv_add_u32 v9, %d, v9" % cfg.pf_skip)
        for i in range(cfg.code_pf):
            I("global_load_dwordx4 v[64:67], v9, s[10:11]")
            if i < cfg.code_pf - 1: I("v_add_u32 v9, 1024, v9")
        L("L_s1_nopf")

    I("s_cmp_ge_u32 s2, 256")
    I("s_cbranch_scc1 L_end")
    I("s_load_dwordx16 s[16:31], s[0:1], 0")
    I("s_load_dwordx8 s[32:39], s[0:1], 64")
    I("s_load_dwordx4 s[40:43], s[0:1], 96")
    if cfg.stamps:
        for k in range(70, 102): I("s_mov_b32 s%d, 0" % k)
    STAMP_(0)
    I("v_lshrrev_b32 v1, 6, v0")
    I("v_and_b32 v0, 63, v0")
    I("v_readfirstlane_b32 s3, v1")
    I("s_lshr_b32 s4, s2, 5")
    if cfg.mapping == "kx":
        I("s_and_b32 s5, s2, 7")
        I("s_bfe_u32 s6, s2, 0x20003")
    else:
        I("s_bfe_u32 s5, s2, 0x30002")
        I("s_and_b32 s6, s2, 3")
    I("s_and_b32 s7, s2, 31")
    I("s_and_b32 s8, s2, 7")
    I("s_lshr_b32 s9, s2, 3")
    I("v_and_b32 v2, 15, v0")
    I("v_lshrrev_b32 v3, 4, v0")
    I("v_mov_b32 v4, %d" % FLG)
    I("v_mov_b32 v5, 1")
    def start_sync():
        I("s_waitcnt lgkmcnt(0)")
        I("s_load_dword s44, s[42:43], %d" % EPOCH)
        srd(60, 42, 43, hex(WS_RANGE))
    def start_bar():
        I("s_barrier")
        STAMP_(1)
    I("s_cmp_ge_u32 s3, 4")
    I("s_cbranch_scc1 L_service")
    FO = lambda f: f - FLG

    C("bulk waves")
    KR = 64; VB = 192; QA = 32; PF = 16; SACC = 224
    vreg = {0: VB, 1: KR, 2: KR + 32, 3: KR + 64}
    TMP = KR + 96
    I("s_lshl_b32 s10, s4, 3\ns_add_u32 s10, s10, s5")
    I("s_lshl_b32 s11, s10, 21\ns_add_u32 s11, s11, %d" % (3072 * 512))
    I("s_lshl_b32 s12, s6, 15\ns_lshl_b32 s13, s3, 13\ns_add_u32 s12, s12, s13")
    I("s_sub_u32 s14, %d, s12" % 524288)
    I("s_add_u32 s12, s12, s11")
    I("s_mov_b32 s64, 0\ns_mov_b32 s65, 0x20000\ns_mov_b32 s66, 0x40000\ns_mov_b32 s67, 0x60000")
    I("v_bfe_u32 v6, v0, 2, 2\nv_lshlrev_b32 v6, 11, v6\nv_lshl_add_u32 v6, v3, 6, v6\nv_and_b32 v7, 3, v0\nv_lshl_add_u32 v6, v7, 4, v6")
    start_sync()
    srd_add(48, 18, 19, "s12", "s14")
    def bulk_setup_b():
        I("s_lshl_b32 s12, s3, 15\ns_lshl_b32 s13, s6, 7\ns_add_u32 s12, s12, s13")
        I("s_sub_u32 s14, %d, s12" % 524288)
        I("s_add_u32 s12, s12, s11")
        srd_add(52, 20, 21, "s12", "s14")
        I("v_lshrrev_b32 v7, 3, v0\nv_lshlrev_b32 v7, 12, v7\nv_and_b32 v8, 7, v0\nv_lshl_add_u32 v7, v8, 4, v7")
        I("v_lshlrev_b32 v9, 11, v3\nv_lshl_add_u32 v9, v2, 3, v9")
        I("s_lshl_b32 s15, s10, 13\ns_lshl_b32 s12, s6, 9\ns_add_u32 s15, s15, s12\ns_lshl_b32 s12, s3, 7\ns_add_u32 s15, s15, s12\ns_add_u32 s15, s15, %d" % SBUF)
        I("v_bfe_u32 v10, v0, 2, 1\nv_lshlrev_b32 v10, 9, v10\nv_lshl_add_u32 v10, v3, 6, v10\nv_and_b32 v11, 3, v0\nv_lshl_add_u32 v10, v11, 4, v10\nv_add_u32 v10, %d, v10" % QL)
        I("v_bfe_u32 v11, v0, 1, 1\nv_lshlrev_b32 v11, 11, v11\nv_lshl_add_u32 v11, v3, 5, v11\nv_and_b32 v12, 1, v0\nv_lshl_add_u32 v11, v12, 4, v11")
        I("s_lshl_b32 s12, s3, 7\ns_add_u32 s12, s12, %d\nv_add_u32 v11, s12, v11" % PL)
        I("v_and_b32 v12, 7, v0\nv_lshlrev_b32 v12, 5, v12\ns_lshl_b32 s12, s3, 9\ns_add_u32 s12, s12, %d\nv_add_u32 v12, s12, v12" % OA)
        I("s_mov_b32 s68, 0x05040100\ns_mov_b32 s69, 0x07060302")
        I("s_mov_b32 s47, 0")
        I("s_mov_b32 s16, 0xffff0000\ns_mov_b32 s17, 0\ns_mov_b32 s18, 0\ns_mov_b32 s19, 0x0000ffff\ns_mov_b32 s20, 0\ns_mov_b32 s21, 0xffff0000")
        I("s_mov_b32 s22, 0x22222222\ns_mov_b32 s23, 0x22222222\ns_mov_b32 s24, 0x44444444\ns_mov_b32 s25, 0x44444444\ns_mov_b32 s26, 0x88888888\ns_mov_b32 s27, 0x88888888")
        start_bar()
    sched = cfg.sched or default_sched(cfg)
    ops = []
    def outstanding_after(opid):
        return len(ops) - 1 - ops.index(opid)
    def wait_op(opid):
        n = outstanding_after(opid)
        I("s_waitcnt vmcnt(%d)" % min(n, 63))
    tag_ready = [False]
    def ensure_tag():
        if not tag_ready[0]:
            I("s_waitcnt lgkmcnt(0)")
            I("s_mul_i32 s44, s44, 1664525\ns_add_u32 s44, s44, 1013904223")
            I("v_mov_b32 v%d, s44" % (SACC + 5))
            tag_ready[0] = True
    DQ = QA + 8
    def score_tile(T):
        C("scores tile %d" % T)
        wait_op(('K', T, 7))
        for hf in range(2):
            for G in range(4):
                c = "0" if hf == 0 else "v[%d:%d]" % (DQ + 4 * G, DQ + 4 * G + 3)
                r = KR + 32 * T + 4 * (2 * G + hf)
                I("v_mfma_f32_16x16x32_bf16 v[%d:%d], v[%d:%d], v[%d:%d], %s" % (DQ + 4 * G, DQ + 4 * G + 3, QA + 4 * hf, QA + 4 * hf + 3, r, r + 3, c))
        t = QA + 24
        for G in range(4):
            I("v_mov_b32_dpp v%d, v%d quad_perm:[0,0,0,0] row_mask:0xf bank_mask:0xf" % (t + G, DQ + 4 * G))
        for c in range(1, 4):
            for G in range(4):
                I("v_add_f32_dpp v%d, v%d, v%d quad_perm:[%d,%d,%d,%d] row_mask:0xf bank_mask:0xf" % (t + G, DQ + 4 * G + c, t + G, c, c, c, c))
        I("v_cndmask_b32 v%d, v%d, v%d, s[22:23]" % (t, t, t + 1))
        I("v_cndmask_b32 v%d, v%d, v%d, s[24:25]" % (t, t, t + 2))
        I("v_cndmask_b32 v%d, v%d, v%d, s[26:27]" % (t, t, t + 3))
        I("v_mov_b32 v%d, v%d" % (t + 1, t))
        I("v_permlane16_swap_b32 v%d, v%d" % (t, t + 1))
        I("v_cvt_pk_bf16_f32 v%d, v%d, v%d" % (SACC + T, t, t + 1))
        if T == 3:
            I("v_cndmask_b32 v%d, v%d, v%d, s[16:17]" % (SACC + 4, SACC, SACC + 1))
            I("v_cndmask_b32 v%d, v%d, v%d, s[18:19]" % (SACC + 4, SACC + 4, SACC + 2))
            I("v_cndmask_b32 v%d, v%d, v%d, s[20:21]" % (SACC + 4, SACC + 4, SACC + 3))
            I("buffer_store_dwordx2 v[%d:%d], v9, s[60:63], s15 offen @ST@" % (SACC + 4, SACC + 5))
            ops.append(('S', T))
    first_v = min(i for i, o in enumerate(sched) if o[0] == 'V')
    last_k = max(i for i, o in enumerate(sched) if o[0] == 'K')
    qpos = cfg.qpos
    tiles_done = 0
    scores_flagged = False
    wo_flagged = False
    for si, o in enumerate(sched):
        win = cfg.wk if si <= last_k else cfg.wv
        if si == cfg.wk_pre:
            I("s_branch L_bulk_main"); SEC("bulkmain"); L("L_bulk_main")
            bulk_setup_b()
        if len(ops) >= win and not (qpos < si <= qpos + 3):
            sk = None
            if scores_flagged:
                sk = lab("sk")
                I("s_cmp_lg_u32 s47, 0")
                I("s_cbranch_scc1 %s" % sk)
            I("s_waitcnt vmcnt(%d)" % (win - 1))
            if sk and si > cfg.t2 and not cfg.nofree:
                I("ds_read_b32 v13, v4 offset:%d" % FO(eval(cfg.free_flag)))
                I("s_waitcnt lgkmcnt(0)")
                I("v_readfirstlane_b32 s46, v13")
                I("s_lshr_b32 s47, s46, 6")
            if sk: L(sk)
        if si == cfg.t1:
            set_flag_add(4, FO(F_T1), 5); STAMP_(10)
        if si == qpos:
            C("wait q")
            STAMP_(2)
            ensure_tag()
            wait_flag(4, FO(F_Q), 1, 13)
            for hf in range(2):
                I("ds_read_b128 v[%d:%d], v10 offset:%d" % (QA + 4 * hf, QA + 4 * hf + 3, 256 * hf))
            I("s_waitcnt lgkmcnt(0)")
            STAMP_(3)
        if si >= qpos and tiles_done < 4:
            T = tiles_done
            score_tile(T); tiles_done += 1
            if tiles_done == 4:
                set_flag_add(4, FO(F_S), 5); scores_flagged = True
                STAMP_(4)
        if si == cfg.t2:
            set_flag_add(4, FO(F_T2), 5); STAMP_(11)
        if o[0] == 'K':
            _, T, t = o
            I("buffer_load_dwordx4 v[%d:%d], v6, s[48:51], s%d offen offset:%d%s" % (KR + 32 * T + 4 * t, KR + 32 * T + 4 * t + 3, 64 + T, 512 * (t // 2) + 256 * (t % 2), cfg.nt_kv))
            if si == cfg.kflag_slot:
                set_flag_add(4, FO(F_K), 5)
            if si == last_k: STAMP_(12)
        elif o[0] == 'V':
            _, T, j = o
            if T >= 1: assert tiles_done > T - 1, "V tile overwrites K tile not yet consumed"
            r = vreg[T] + 4 * j
            I("buffer_load_dwordx4 v[%d:%d], v7, s[52:55], s%d offen offset:%d%s" % (r, r + 3, 64 + T, 512 * j, cfg.nt_kv))
        else:
            i = o[1]
            if i >= 21: assert si > qpos, "wo chunk overlays x before q flag"
            if i % 4 == 0:
                I("s_add_u32 m0, s13, %d" % (i * 1024))
                I("s_mov_b32 s14, %d" % (i * 1024))
            I("buffer_load_dwordx4 v8, s[56:59], s14 offen offset:%d%s lds" % ((i % 4) * 1024, cfg.nt_wo))
        ops.append(o)
    assert tiles_done == 4
    STAMP_(6)
    dstT = {0: TMP, 1: VB, 2: KR, 3: KR + 32}
    def pv_perm(T):
        C("transpose V tile %d" % T)
        wait_op(('V', T, 7))
        R = vreg[T]; Dd = dstT[T]
        for jp in range(8):
            sel = "s68" if jp % 2 == 0 else "s69"
            for i in range(4):
                I("v_perm_b32 v%d, v%d, v%d, %s" % (Dd + 4 * jp + i, R + 4 * (2 * i + 1) + jp // 2, R + 4 * (2 * i) + jp // 2, sel))
    def pv_mfma(T):
        for q in range(8):
            c = "0" if T == 0 else "v[%d:%d]" % (QA + 4 * q, QA + 4 * q + 3)
            I("v_mfma_f32_16x16x32_bf16 v[%d:%d], v[%d:%d], v[%d:%d], %s" % (QA + 4 * q, QA + 4 * q + 3, PF + 4 * T, PF + 4 * T + 3, dstT[T] + 4 * q, dstT[T] + 4 * q + 3, c))
    for T in range(3): pv_perm(T)
    I("ds_read_b32 v13, v4 offset:%d" % FO(F_P))
    I("s_waitcnt lgkmcnt(0)")
    I("v_readfirstlane_b32 s46, v13")
    I("s_lshr_b32 s47, s46, 7")
    I("s_cmp_lg_u32 s47, 0")
    I("s_cbranch_scc1 L_p_early")
    pv_perm(3)
    C("wait p")
    wait_flag(4, FO(F_P), 128, 13)
    L("L_p_early")
    for T in range(4):
        I("ds_read_b128 v[%d:%d], v11 offset:%d" % (PF + 4 * T, PF + 4 * T + 3, 512 * T))
    STAMP_(7)
    for T in range(3):
        I("s_waitcnt lgkmcnt(%d)" % (3 - T))
        pv_mfma(T)
    I("s_cmp_lg_u32 s47, 0")
    I("s_cbranch_scc0 L_p_late")
    pv_perm(3)
    L("L_p_late")
    I("s_waitcnt lgkmcnt(0)")
    pv_mfma(3)
    STAMP_(8)
    C("u-sum, pack, write OA")
    OS = 64
    for h in range(2):
        for jp in range(8):
            I("v_add_f32_dpp v%d, v%d, v%d row_ror:8 row_mask:0xf bank_mask:0xf" % (OS + 8 * h + jp, QA + 4 * jp + 2 * h + 1, QA + 4 * jp + 2 * h))
    I("s_mov_b64 exec, 0xff")
    for h in range(2):
        I("ds_write_b128 v12, v[%d:%d] offset:%d" % (OS + 8 * h, OS + 8 * h + 3, 256 * h))
        I("ds_write_b128 v12, v[%d:%d] offset:%d" % (OS + 8 * h + 4, OS + 8 * h + 7, 256 * h + 16))
    I("s_mov_b64 exec, -1")
    I("s_waitcnt lgkmcnt(0)")
    I("s_barrier")
    STAMP_(9)
    stamps_out()
    I("s_endpgm")

    SEC("svc")
    L("L_service")
    if cfg.prio: I("s_setprio %d" % cfg.prio)
    I("s_mov_b32 s14, 0x00ff00ff\ns_mov_b32 s15, 0x00ff00ff")
    I("v_cmp_gt_u32 vcc, 8, v2")
    I("v_lshrrev_b32 v6, 2, v2\nv_lshl_add_u32 v6, v3, 3, v6")
    I("v_and_b32 v7, 3, v2\nv_lshlrev_b32 v7, 3, v7")
    I("v_mul_u32_u24 v8, 896, v6\nv_add_u32 v8, v8, v7")
    I("v_lshl_add_u32 v6, v6, 5, v7")
    I("s_cmp_eq_u32 s3, 7\ns_cbranch_scc1 L_s3")
    I("s_cmp_eq_u32 s3, 6\ns_cbranch_scc1 L_s2_pre")
    I("s_cmp_eq_u32 s3, 5\ns_cbranch_scc1 L_s1")

    XF = 64; AF = 128
    L("L_s0")
    C("S0: wq tile DMA (even idx), gate_w, b2")
    I("v_lshrrev_b32 v9, 2, v0\nv_and_b32 v10, 3, v0\nv_lshlrev_b32 v10, 4, v10")
    I("v_lshl_add_u32 v11, v9, 13, v10")
    start_sync()
    I("s_bitcmp1_b32 s9, 0\ns_cbranch_scc1 L_s0_noq1")
    tq_calc("s11")
    I("s_lshl_b32 s10, s8, 10\ns_lshl_b32 s11, s11, 6\ns_add_u32 s10, s10, s11")
    I("s_sub_u32 s11, %d, s10" % (448 * 8192))
    srd_add(48, 22, 23, "s10", "s11")
    I("s_mov_b32 s12, 0\ns_mov_b32 m0, %d" % WQT)
    dma_loop(28, 11, 48, 0x20000, cfg.nt_w)
    L("L_s0_noq1")
    I("v_mov_b32 v13, %d" % OOB)
    srd(52, 36, 37, "896")
    I("v_lshlrev_b32 v14, 4, v0\nv_cmp_gt_u32 vcc, 56, v0\nv_cndmask_b32 v14, v13, v14, vcc")
    I("buffer_load_dwordx4 v[36:39], v14, s[52:55], 0 offen")
    srd(56, 34, 35, "896")
    I("v_and_b32 v15, 7, v0\nv_lshlrev_b32 v15, 2, v15\ns_lshl_b32 s10, s7, 5")
    I("buffer_load_dword v52, v15, s[56:59], s10 offen")
    start_bar()
    I("s_branch L_s0_main"); SEC("s0main"); L("L_s0_main")
    wait_flag(4, FO(F_X), 1, 26)
    I("v_and_b32 v12, 7, v2\nv_mul_u32_u24 v12, 896, v12\nv_lshl_add_u32 v12, v3, 4, v12\nv_add_u32 v12, %d, v12" % XL)
    for t in range(14):
        I("ds_read_b128 v[%d:%d], v12 offset:%d" % (XF + 4 * t, XF + 4 * t + 3, 64 * t))
    I("s_mul_i32 s10, s4, 896\ns_add_u32 s10, s10, %d" % XL)
    I("v_min_u32 v14, 55, v0\nv_lshlrev_b32 v14, 4, v14\nv_add_u32 v14, s10, v14")
    I("ds_read_b128 v[32:35], v14")
    I("s_waitcnt vmcnt(0) lgkmcnt(0)")
    STAMP_(2)
    I("s_mul_i32 s44, s44, 1664525\ns_add_u32 s44, s44, 1013904223")
    I("s_bitcmp1_b32 s9, 0\ns_cbranch_scc1 L_s0_noq2")
    I("v_lshrrev_b32 v15, 2, v2\nv_lshl_add_u32 v15, v3, 3, v15\nv_lshlrev_b32 v15, 6, v15\nv_add_u32 v15, v15, v7\nv_add_u32 v15, %d, v15" % WQT)
    for t in range(14):
        for ct in range(2):
            r = AF + 8 * t + 4 * ct
            I("ds_read_b64_tr_b16 v[%d:%d], v15 offset:%d" % (r, r + 1, 2048 * t + 32 * ct))
            I("ds_read_b64_tr_b16 v[%d:%d], v15 offset:%d" % (r + 2, r + 3, 2048 * t + 32 * ct + 256))
    I("s_waitcnt lgkmcnt(0)")
    for t in range(14):
        for ct in range(2):
            d = 16 + 4 * ct
            c = "0" if t == 0 else "v[%d:%d]" % (d, d + 3)
            r = AF + 8 * t + 4 * ct
            I("v_mfma_f32_16x16x32_bf16 v[%d:%d], v[%d:%d], v[%d:%d], %s" % (d, d + 3, r, r + 3, XF + 4 * t, XF + 4 * t + 3, c))
    I("v_lshlrev_b32 v14, 11, v2\nv_lshl_add_u32 v14, v3, 4, v14\nv_cmp_gt_u32 vcc, 8, v2\nv_cndmask_b32 v14, v13, v14, vcc")
    tq_calc("s11")
    I("s_lshl_b32 s10, s8, 14\ns_lshl_b32 s11, s11, 7\ns_add_u32 s10, s10, s11\ns_add_u32 s10, s10, %d" % QBUF)
    I("v_mov_b32 v57, s44\nv_mov_b32 v59, s44\nv_mov_b32 v61, s44\nv_mov_b32 v63, s44")
    I("v_cvt_pk_bf16_f32 v56, v16, v17\nv_cvt_pk_bf16_f32 v58, v18, v19\nv_cvt_pk_bf16_f32 v60, v20, v21\nv_cvt_pk_bf16_f32 v62, v22, v23")
    I("buffer_store_dwordx4 v[56:59], v14, s[60:63], s10 offen @ST@")
    I("buffer_store_dwordx4 v[60:63], v14, s[60:63], s10 offen offset:64 @ST@")
    L("L_s0_noq2")
    STAMP_(3)
    C("gate (lanes >= 56 have gate_w = 0)")
    for q in range(4):
        I("v_lshlrev_b32 v%d, 16, v%d\nv_and_b32 v%d, 0xffff0000, v%d" % (24 + 2 * q, 32 + q, 25 + 2 * q, 32 + q))
        I("v_lshlrev_b32 v%d, 16, v%d\nv_and_b32 v%d, 0xffff0000, v%d" % (40 + 2 * q, 36 + q, 41 + 2 * q, 36 + q))
    for k in range(8): I("v_mul_f32 v%d, v%d, v%d" % (24 + k, 24 + k, 40 + k))
    for q in range(4): rnd_pair(24 + 2 * q, 25 + 2 * q, 24 + 2 * q, 25 + 2 * q, 32)
    I("v_add_f32 v24, v24, v25\nv_add_f32 v26, v26, v27\nv_add_f32 v28, v28, v29\nv_add_f32 v30, v30, v31")
    I("v_add_f32 v24, v24, v26\nv_add_f32 v28, v28, v30\nv_add_f32 v24, v24, v28")
    wave_reduce("v_add_f32", 24, 25)
    rnd_pair(24, 25, 24, 24, 26)
    I("v_mul_f32 v24, 0x%08x, v24" % f2u(-1.4426950408889634))
    I("v_exp_f32 v24, v24\nv_add_f32 v24, 1.0, v24\nv_rcp_f32 v24, v24")
    rnd_pair(50, 25, 24, 24, 26)
    I("v_sub_f32 v24, 1.0, v50")
    rnd_pair(51, 25, 24, 24, 26)
    STAMP_(4)
    C("q gather")
    wait_flag(4, FO(F_T1), 256, 26)
    I("s_lshl_b32 s10, s5, 3\ns_add_u32 s10, s10, s4\ns_lshl_b32 s10, s10, 11\ns_add_u32 s10, s10, %d" % QBUF)
    I("v_lshlrev_b32 v14, 4, v0")
    STAMP_(5)
    def iss():
        I("buffer_load_dwordx4 v[16:19], v14, s[60:63], s10 offen @LD@")
        I("buffer_load_dwordx4 v[20:23], v14, s[60:63], s10 offen offset:1024 @LD@")
    poll(iss, [17, 19, 21, 23], 26, 27)
    if cfg.stamps:
        I("s_sub_u32 s86, %d, s45\ns_mov_b32 s87, 0" % (cfg.maxpoll + 1))
    I("v_lshlrev_b32 v15, 3, v0\nv_add_u32 v15, %d, v15" % QL)
    I("ds_write2_b32 v15, v16, v18 offset0:0 offset1:1")
    I("ds_write2_b32 v15, v20, v22 offset0:128 offset1:129")
    set_flag_add(4, FO(F_Q), 5)
    STAMP_(6)
    if cfg.wo_by == 'S0':
        wo_tile('L_s0_wo')
        L('L_s0_wo')
        set_flag_add(4, FO(F_WO), 5)
    C("MLP partial gather (owners)")
    I("s_cmp_ge_u32 s7, 28\ns_cbranch_scc1 L_s0_nomlp")
    wait_flag(4, FO(F_T2), 256, 26)
    I("s_mul_i32 s10, s4, 28\ns_add_u32 s10, s10, s7\ns_lshl_b32 s10, s10, 11\ns_add_u32 s10, s10, %d" % MBUF)
    I("v_lshlrev_b32 v14, 4, v0")
    def iss():
        I("buffer_load_dwordx4 v[16:19], v14, s[60:63], s10 offen @LD@")
        I("buffer_load_dwordx4 v[20:23], v14, s[60:63], s10 offen offset:1024 @LD@")
    poll(iss, [17, 19, 21, 23], 26, 27)
    I("v_add_f32 v16, v16, v20\nv_add_f32 v18, v18, v22")
    def red8(v, t):
        I("v_add_f32_dpp v%d, v%d, v%d row_ror:8 row_mask:0xf bank_mask:0xf" % (v, v, v))
        for sw in ("v_permlane16_swap_b32", "v_permlane32_swap_b32"):
            I("v_mov_b32 v%d, v%d" % (t, v)); I("%s v%d, v%d" % (sw, v, t)); I("v_add_f32 v%d, v%d, v%d" % (v, v, t))
    red8(16, 24); red8(18, 25)
    rnd_pair(16, 18, 16, 18, 26)
    I("v_lshlrev_b32 v24, 16, v52\nv_and_b32 v25, 0xffff0000, v52")
    I("v_add_f32 v16, v16, v24\nv_add_f32 v18, v18, v25")
    rnd_pair(16, 18, 16, 18, 26)
    I("v_mul_f32 v16, v16, v51\nv_mul_f32 v18, v18, v51")
    rnd_pair(53, 54, 16, 18, 26)
    L("L_s0_nomlp")
    STAMP_(7)
    I("s_branch L_outproj")

    SEC("s1start")
    L("L_s1")
    code_prefetch()
    start_sync()
    start_bar()
    I("s_branch L_s1_main"); SEC("s1main"); L("L_s1_main")
    I("s_cmp_ge_u32 s9, 28\ns_cbranch_scc1 L_s1_none")
    C("M2: w2 tile [112 rows x 32 columns]; s12 = k range (0..15), s13 = column tile (0..13)")
    I("s_cmp_ge_u32 s9, 14\ns_cselect_b32 s12, 1, 0\ns_mul_i32 s13, s12, 14\ns_sub_u32 s13, s9, s13\ns_lshl_b32 s11, s8, 1\ns_add_u32 s12, s12, s11")
    I("s_mov_b32 s68, s12\ns_mov_b32 s69, s13")
    I("s_mul_i32 s10, s12, %d\ns_lshl_b32 s11, s13, 6\ns_add_u32 s10, s10, s11" % (112 * 896))
    I("s_sub_u32 s11, %d, s10" % (1792 * 896))
    srd_add(48, 32, 33, "s10", "s11")
    I("v_lshrrev_b32 v9, 2, v0\nv_and_b32 v10, 3, v0\nv_lshlrev_b32 v10, 4, v10")
    I("v_mul_u32_u24 v11, 896, v9\nv_add_u32 v11, v11, v10")
    if cfg.w2_trig: wait_flag(4, FO(eval(cfg.w2_trig)), 256, 26)
    I("s_mov_b32 s12, 0\ns_mov_b32 m0, %d" % W2T)
    for i in range(7):
        if i >= cfg.w2_win: I("s_waitcnt vmcnt(%d)" % (cfg.w2_win - 1))
        I("buffer_load_dwordx4 v11, s[48:51], s12 offen%s lds" % cfg.nt_w)
        if i < 6: I("s_add_u32 m0, m0, 1024\ns_add_u32 s12, s12, %d" % (16 * 896))
    I("s_waitcnt vmcnt(0) lgkmcnt(0)")
    I("s_mul_i32 s44, s44, 1664525\ns_add_u32 s44, s44, 1013904223")
    I("v_lshrrev_b32 v15, 2, v2\nv_lshl_add_u32 v15, v3, 3, v15\nv_lshlrev_b32 v15, 6, v15\nv_add_u32 v15, v15, v7\nv_add_u32 v15, %d, v15" % W2T)
    I("v_and_b32 v12, 1, v3\nv_lshrrev_b32 v14, 2, v2\nv_lshl_add_u32 v14, v12, 3, v14\nv_lshlrev_b32 v14, 6, v14\nv_add_u32 v14, v14, v7\nv_add_u32 v14, %d, v14" % W2T)
    for t in range(4):
        for ct in range(2):
            r = 160 + 8 * t + 4 * ct
            a_ = 15 if t < 3 else 14
            I("ds_read_b64_tr_b16 v[%d:%d], v%d offset:%d" % (r, r + 1, a_, 2048 * t + 32 * ct))
            I("ds_read_b64_tr_b16 v[%d:%d], v%d offset:%d" % (r + 2, r + 3, a_, 2048 * t + 32 * ct + 256))
    I("s_waitcnt lgkmcnt(0)")
    STAMP_(2)
    wait_flag(4, FO(eval(cfg.h_trig)), 256, 26)
    STAMP_(3)
    I("v_mov_b32 v13, %d" % OOB)
    I("v_lshrrev_b32 v9, 3, v0\nv_and_b32 v10, 7, v0\nv_mul_u32_u24 v14, 7168, v9\nv_lshl_add_u32 v14, v10, 4, v14")
    I("v_cmp_gt_u32 vcc, 4, v10\nv_cndmask_b32 v12, v13, v14, vcc")
    I("s_mul_i32 s10, s68, 448\ns_add_u32 s10, s10, %d" % HBUF)
    I("s_mov_b32 s14, 0x0f0f0f0f\ns_mov_b32 s15, 0x0f0f0f0f")
    def iss():
        for i in range(3):
            r = 64 + 4 * i
            I("buffer_load_dwordx4 v[%d:%d], v14, s[60:63], s10 offen offset:%d @LD@" % (r, r + 3, 128 * i))
        I("buffer_load_dwordx4 v[76:79], v12, s[60:63], s10 offen offset:384 @LD@")
    lp = lab("pl"); dn = lab("pld")
    I("s_mov_b32 s45, %d" % cfg.maxpoll)
    L(lp)
    iss()
    I("s_waitcnt vmcnt(0)")
    I("v_mov_b32 v28, s44")
    I("v_cndmask_b32 v77, v28, v77, s[14:15]\nv_cndmask_b32 v79, v28, v79, s[14:15]")
    check_tags([65, 67, 69, 71, 73, 75, 77, 79], 26, 27)
    I("s_cbranch_scc1 %s" % dn)
    if cfg.backoff: I("s_sleep %d" % cfg.backoff)
    I("s_sub_u32 s45, s45, 1\ns_cmp_lg_u32 s45, 0\ns_cbranch_scc1 %s" % lp)
    L(dn)
    STAMP_(4)
    I("v_mul_u32_u24 v15, 272, v9\nv_lshl_add_u32 v15, v10, 3, v15\nv_add_u32 v15, %d, v15" % HL)
    for i in range(4):
        I("ds_write2_b32 v15, v%d, v%d offset0:%d offset1:%d" % (64 + 4 * i, 64 + 4 * i + 2, 16 * i, 16 * i + 1))
    I("v_and_b32 v15, 7, v2\nv_mul_u32_u24 v15, 272, v15\nv_lshl_add_u32 v15, v3, 4, v15\nv_add_u32 v15, %d, v15" % HL)
    I("s_waitcnt lgkmcnt(0)")
    for t in range(4):
        I("ds_read_b128 v[%d:%d], v15 offset:%d" % (128 + 4 * t, 128 + 4 * t + 3, 64 * t))
    I("s_waitcnt lgkmcnt(0)")
    for t in range(4):
        for ct in range(2):
            d = 16 + 4 * ct
            c = "0" if t == 0 else "v[%d:%d]" % (d, d + 3)
            r = 160 + 8 * t + 4 * ct
            I("v_mfma_f32_16x16x32_bf16 v[%d:%d], v[%d:%d], v[%d:%d], %s" % (d, d + 3, 128 + 4 * t, 128 + 4 * t + 3, r, r + 3, c))
    I("v_and_b32 v14, 1, v3\nv_mul_u32_u24 v14, %d, v14\nv_lshrrev_b32 v16 + 0, 1, v3" .replace("v16 + 0", "v24") % (4 * 28 * 2048))
    I("v_lshl_add_u32 v14, v24, 11, v14\nv_lshl_add_u32 v14, v2, 3, v14")
    I("s_lshl_b32 s10, s69, 12\ns_lshl_b32 s11, s68, 7\ns_add_u32 s10, s10, s11\ns_add_u32 s10, s10, %d" % MBUF)
    I("s_mov_b32 s48, 0\ns_mov_b32 s49, -1")
    for r in range(4):
        I("v_mov_b32 v%d, s44" % (33 + 2 * r))
        I("v_cndmask_b32 v%d, v%d, v%d, s[48:49]" % (32 + 2 * r, 16 + r, 20 + r))
    for r in range(4):
        I("s_add_u32 s11, s10, %d" % (r * 28 * 2048))
        I("buffer_store_dwordx2 v[%d:%d], v14, s[60:63], s11 offen @ST@" % (32 + 2 * r, 33 + 2 * r))
    STAMP_(5)
    L("L_s1_none")
    if cfg.wo_by == 'S1':
        wo_tile('L_s1_wo')
        L('L_s1_wo')
        set_flag_add(4, FO(F_WO), 5)
        STAMP_(6)
    I("s_branch L_outproj")

    SEC("s3start")
    L("L_s3")
    C("wave 7: x -> LDS, then the wo tile (128 rows x 64 columns; batch b < 7 takes column block b)")
    I("v_lshlrev_b32 v9, 4, v0\ns_mov_b32 m0, %d\ns_mov_b32 s12, 0" % XL)
    start_sync()
    srd(48, 16, 17, "7168")
    for i in range(7):
        if i == 4: I("s_mov_b32 m0, %d\ns_mov_b32 s12, 4096" % (XL + 4096))
        I("buffer_load_dwordx4 v9, s[48:51], s12 offen offset:%d lds" % ((i % 4) * 1024))
    start_bar()
    I("s_branch L_s3_main"); SEC("s3main"); L("L_s3_main")
    I("s_waitcnt vmcnt(0)")
    set_flag_add(4, FO(F_X), 5)
    STAMP_(2)
    if cfg.wo_by == 'S3': wo_tile('L_s3_fin')
    L("L_s3_fin")
    if cfg.wo_by == 'S3': set_flag_add(4, FO(F_WO), 5)
    I("s_waitcnt lgkmcnt(0)")
    I("s_mul_i32 s44, s44, 1664525\ns_add_u32 s44, s44, 1013904223")
    I("s_branch L_softmax")
    SEC("s2start")
    L("L_s2_pre")
    C("wave 6: zero flags, w1 tile")
    I("v_lshlrev_b32 v9, 2, v0\nv_add_u32 v9, %d, v9\nv_mov_b32 v10, 0" % FLG)
    I("s_mov_b64 exec, 0xffff\nds_write_b32 v9, v10\ns_mov_b64 exec, -1")
    I("v_lshrrev_b32 v9, 1, v0\nv_and_b32 v10, 1, v0\nv_lshlrev_b32 v10, 4, v10")
    I("v_mul_u32_u24 v14, 3584, v9\nv_add_u32 v14, v14, v10")
    I("v_lshlrev_b32 v15, 3, v3")
    start_sync()
    I("s_bitcmp0_b32 s9, 0\ns_cbranch_scc1 L_s2_nom1\ns_cmp_ge_u32 s9, 28\ns_cbranch_scc1 L_s2_nom1")
    I("s_lshr_b32 s10, s9, 1\ns_mul_i32 s11, s8, 14\ns_add_u32 s10, s10, s11")
    I("s_mov_b32 s69, s10")
    I("s_lshl_b32 s10, s10, 5\ns_sub_u32 s11, %d, s10" % (448 * 3584))
    srd_add(56, 28, 29, "s10", "s11")
    srd(64, 30, 31, "3584")
    I("s_mov_b32 s12, 0\ns_mov_b32 m0, %d" % W1T)
    dma_loop(14, 14, 56, 32 * 3584, cfg.nt_w)
    I("buffer_load_dwordx2 v[24:25], v15, s[64:67], s10 offen")
    L("L_s2_nom1")
    I("s_waitcnt lgkmcnt(0)")
    start_bar()
    I("s_branch L_s2_main"); SEC("s2main"); L("L_s2_main")
    I("s_mul_i32 s44, s44, 1664525\ns_add_u32 s44, s44, 1013904223")
    I("s_bitcmp0_b32 s9, 0\ns_cbranch_scc1 L_softmax\ns_cmp_ge_u32 s9, 28\ns_cbranch_scc1 L_softmax")
    wait_flag(4, FO(F_X), 1, 26)
    C("LayerNorm (wave 6, M1 workgroups)")
    I("v_lshrrev_b32 v9, 3, v0\nv_and_b32 v10, 7, v0\nv_lshlrev_b32 v10, 4, v10")
    I("v_mul_u32_u24 v11, 896, v9\nv_add_u32 v11, v11, v10\nv_add_u32 v11, %d, v11" % XL)
    for i in range(7):
        I("ds_read_b128 v[%d:%d], v11 offset:%d" % (64 + 4 * i, 64 + 4 * i + 3, 128 * i))
    I("v_mul_u32_u24 v12, 912, v9\nv_add_u32 v12, v12, v10\nv_add_u32 v12, %d, v12" % YL)
    I("s_waitcnt lgkmcnt(0)")
    set_flag_add(4, FO(F_Y), 5)
    F = 128
    for k in range(28):
        I("v_lshlrev_b32 v%d, 16, v%d\nv_and_b32 v%d, 0xffff0000, v%d" % (F + 2 * k, 64 + k, F + 2 * k + 1, 64 + k))
    I("v_pk_add_f32 v[16:17], v[%d:%d], v[%d:%d]" % (F, F + 1, F + 2, F + 3))
    for k in range(2, 28):
        I("v_pk_add_f32 v[16:17], v[16:17], v[%d:%d]" % (F + 2 * k, F + 2 * k + 1))
    I("v_add_f32 v16, v16, v17")
    def red_p(v):
        for mod in ("quad_perm:[1,0,3,2]", "quad_perm:[2,3,0,1]", "row_half_mirror"):
            I("v_add_f32_dpp v%d, v%d, v%d %s row_mask:0xf bank_mask:0xf" % (v, v, v, mod))
    red_p(16)
    I("v_mul_f32 v16, 0x%08x, v16" % f2u(1.0 / 448))
    rnd_pair(18, 19, 16, 16, 17)
    I("v_sub_f32 v20, v16, v18")
    I("v_sub_f32 v18, 0, v18\nv_mov_b32 v19, v18")
    for k in range(28):
        I("v_pk_add_f32 v[%d:%d], v[%d:%d], v[18:19]" % (F + 2 * k, F + 2 * k + 1, F + 2 * k, F + 2 * k + 1))
    I("v_pk_mul_f32 v[16:17], v[%d:%d], v[%d:%d]" % (F, F + 1, F, F + 1))
    for k in range(1, 28):
        I("v_pk_fma_f32 v[16:17], v[%d:%d], v[%d:%d], v[16:17]" % (F + 2 * k, F + 2 * k + 1, F + 2 * k, F + 2 * k + 1))
    I("v_add_f32 v16, v16, v17")
    red_p(16)
    I("v_mul_f32 v16, 0x%08x, v16" % f2u(1.0 / 448))
    I("v_fma_f32 v16, -v20, v20, v16\nv_max_f32 v16, 0, v16")
    rnd_pair(16, 17, 16, 16, 21)
    I("v_add_f32 v16, 0x%08x, v16" % f2u(1e-5))
    rnd_pair(16, 17, 16, 16, 21)
    I("v_sqrt_f32 v16, v16")
    rnd_pair(16, 17, 16, 16, 21)
    I("v_rcp_f32 v16, v16")
    I("v_mov_b32 v17, v16")
    for k in range(28):
        I("v_pk_mul_f32 v[%d:%d], v[%d:%d], v[16:17]" % (F + 2 * k, F + 2 * k + 1, F + 2 * k, F + 2 * k + 1))
    for k in range(28):
        I("v_cvt_pk_bf16_f32 v%d, v%d, v%d" % (64 + k, F + 2 * k, F + 2 * k + 1))
    for i in range(7):
        I("ds_write_b128 v12, v[%d:%d] offset:%d" % (64 + 4 * i, 64 + 4 * i + 3, 128 * i))
    STAMP_(2)
    C("M1: h tile")
    I("s_waitcnt vmcnt(0) lgkmcnt(0)")
    I("v_mov_b32 v13, %d" % OOB)
    I("v_and_b32 v15, 7, v2\nv_mul_u32_u24 v15, 912, v15\nv_lshl_add_u32 v15, v3, 4, v15\nv_add_u32 v15, %d, v15" % YL)
    for t in range(14):
        I("ds_read_b128 v[%d:%d], v15 offset:%d" % (XF + 4 * t, XF + 4 * t + 3, 64 * t))
    I("v_add_u32 v15, %d, v6" % W1T)
    for t in range(14):
        I("ds_read_b64_tr_b16 v[%d:%d], v15 offset:%d" % (AF + 4 * t, AF + 4 * t + 1, 1024 * t))
        I("ds_read_b64_tr_b16 v[%d:%d], v15 offset:%d" % (AF + 4 * t + 2, AF + 4 * t + 3, 1024 * t + 128))
    I("s_waitcnt lgkmcnt(0)")
    for t in range(14):
        c = "0" if t == 0 else "v[16:19]"
        I("v_mfma_f32_16x16x32_bf16 v[16:19], v[%d:%d], v[%d:%d], %s" % (AF + 4 * t, AF + 4 * t + 3, XF + 4 * t, XF + 4 * t + 3, c))
    rnd_pair(16, 17, 16, 17, 26)
    rnd_pair(18, 19, 18, 19, 27)
    I("v_lshlrev_b32 v28, 16, v24\nv_and_b32 v29, 0xffff0000, v24\nv_lshlrev_b32 v30, 16, v25\nv_and_b32 v31, 0xffff0000, v25")
    for r in range(4): I("v_add_f32 v%d, v%d, v%d" % (16 + r, 16 + r, 28 + r))
    rnd_pair(16, 17, 16, 17, 26)
    rnd_pair(18, 19, 18, 19, 27)
    k0 = -2.0 * 0.7978845608028654 * 1.4426950408889634
    k1 = k0 * 0.044715
    I("s_mov_b32 s10, 0x%08x\ns_mov_b32 s11, 0x%08x" % (f2u(k0), f2u(k1)))
    I("v_mov_b32 v32, s10")
    for r in range(4):
        I("v_mul_f32 v%d, v%d, v%d" % (28 + r, 16 + r, 16 + r))
        I("v_fma_f32 v%d, v%d, s11, v32" % (28 + r, 28 + r))
        I("v_mul_f32 v%d, v%d, v%d" % (28 + r, 28 + r, 16 + r))
    for r in range(4): I("v_exp_f32 v%d, v%d" % (28 + r, 28 + r))
    for r in range(4): I("v_add_f32 v%d, 1.0, v%d" % (28 + r, 28 + r))
    for r in range(4): I("v_rcp_f32 v%d, v%d" % (28 + r, 28 + r))
    for r in range(4): I("v_mul_f32 v%d, v%d, v%d" % (16 + r, 16 + r, 28 + r))
    I("v_mov_b32 v21, s44\nv_mov_b32 v23, s44")
    I("v_cvt_pk_bf16_f32 v20, v16, v17\nv_cvt_pk_bf16_f32 v22, v18, v19")
    I("v_mul_u32_u24 v14, 7168, v2\nv_lshl_add_u32 v14, v3, 4, v14\nv_cmp_gt_u32 vcc, 8, v2\nv_cndmask_b32 v14, v13, v14, vcc")
    I("s_lshl_b32 s10, s69, 6\ns_add_u32 s10, s10, %d" % HBUF)
    I("buffer_store_dwordx4 v[20:23], v14, s[60:63], s10 offen @ST@")
    STAMP_(6)
    L("L_softmax")
    C("softmax for head (wave-6); wave 6 gathers the scores and hands the raw words to wave 7 through LDS")
    I("v_lshlrev_b32 v15, 4, v0\nv_add_u32 v15, %d, v15" % SG)
    I("s_cmp_eq_u32 s3, 6\ns_cbranch_scc0 L_sm_w7")
    wait_flag(4, FO(F_T2), 256, 26)
    STAMP_(3)
    I("s_lshl_b32 s10, s4, 3\ns_add_u32 s10, s10, s5\ns_lshl_b32 s10, s10, 13\ns_add_u32 s10, s10, %d\ns_add_u32 s11, s10, 4096" % SBUF)
    I("v_lshlrev_b32 v14, 4, v0")
    def iss():
        for i in range(8):
            I("buffer_load_dwordx4 v[%d:%d], v14, s[60:63], s%d offen offset:%d @LD@" % (64 + 4 * i, 64 + 4 * i + 3, 10 + i // 4, (i % 4) * 1024))
    tags = []
    for k in range(8): tags += [64 + 4 * k + 1, 64 + 4 * k + 3]
    poll(iss, tags, 26, 27, after_first=lambda: (STAMP_(7), set_flag_add(4, FO(F_SP), 5)))
    if cfg.stamps:
        I("s_sub_u32 s86, %d, s45\ns_mov_b32 s87, 0" % (cfg.maxpoll + 1))
    for i in range(8):
        I("v_mov_b32 v%d, v%d\nv_mov_b32 v%d, v%d" % (96 + 2 * i, 64 + 4 * i, 96 + 2 * i + 1, 64 + 4 * i + 2))
    for q in range(4):
        I("ds_write_b128 v15, v[%d:%d] offset:%d" % (96 + 4 * q, 96 + 4 * q + 3, 1024 * q))
    set_flag_add(4, FO(F_G), 5)
    I("s_branch L_sm_go")
    L("L_sm_w7")
    wait_flag(4, FO(F_G), 1, 26)
    for q in range(4):
        I("ds_read_b128 v[%d:%d], v15 offset:%d" % (96 + 4 * q, 96 + 4 * q + 3, 1024 * q))
    I("s_waitcnt lgkmcnt(0)")
    L("L_sm_go")
    STAMP_(4)
    I("s_mov_b32 s12, 0x01000c0c\ns_cmp_eq_u32 s3, 6\ns_cselect_b32 s12, s12, 0x03020c0c")
    F = 128
    for i in range(16):
        I("v_perm_b32 v%d, v%d, v%d, s12" % (F + i, 96 + i, 96 + i))
    I("v_max3_f32 v16, v%d, v%d, v%d" % (F, F + 1, F + 2))
    for k in range(3, 15, 2): I("v_max3_f32 v16, v16, v%d, v%d" % (F + k, F + k + 1))
    I("v_max_f32 v16, v16, v%d" % (F + 15))
    wave_reduce("v_max_f32", 16, 17)
    cexp = 1.4426950408889634 / 16.0
    I("s_mov_b32 s13, 0x%08x" % f2u(cexp))
    I("v_mul_f32 v16, s13, v16\nv_sub_f32 v16, 0, v16")
    for k in range(16): I("v_fma_f32 v%d, v%d, s13, v16" % (F + k, F + k))
    for k in range(16): I("v_exp_f32 v%d, v%d" % (F + k, F + k))
    I("v_add_f32 v17, v%d, v%d" % (F, F + 1))
    I("v_add_f32 v18, v%d, v%d" % (F + 2, F + 3))
    for k in range(4, 16, 2):
        I("v_add_f32 v17, v17, v%d\nv_add_f32 v18, v18, v%d" % (F + k, F + k + 1))
    I("v_add_f32 v17, v17, v18")
    wave_reduce("v_add_f32", 17, 18)
    I("v_rcp_f32 v17, v17")
    for k in range(16): I("v_mul_f32 v%d, v%d, v17" % (F + k, F + k))
    for i in range(8): I("v_cvt_pk_bf16_f32 v%d, v%d, v%d" % (64 + i, F + 2 * i, F + 2 * i + 1))
    I("s_sub_u32 s12, s3, 6\ns_lshl_b32 s12, s12, 11\ns_add_u32 s12, s12, %d" % PL)
    I("v_lshlrev_b32 v15, 2, v0\nv_add_u32 v15, s12, v15")
    for i in range(8): I("ds_write_b32 v15, v%d offset:%d" % (64 + i, 256 * i))
    set_flag_add(4, FO(F_P), 5)
    STAMP_(5)

    L("L_outproj")
    BF = 128
    I("s_cmp_ge_u32 s3, 5\ns_cbranch_scc1 L_s23_end")
    C("wave 4: preload wo fragments for four 16-column tiles")
    wait_flag(4, FO(F_WO), 1, 26)
    I("v_lshrrev_b32 v8, 2, v2\nv_lshl_add_u32 v8, v3, 3, v8\nv_lshlrev_b32 v8, 7, v8\nv_add_u32 v8, v8, v7")
    if WOT: I("v_add_u32 v8, %d, v8" % WOT)
    for t in range(4):
        for tt in range(4):
            r = BF + 4 * (t * 4 + tt)
            I("ds_read_b64_tr_b16 v[%d:%d], v8 offset:%d" % (r, r + 1, t * 4096 + tt * 32))
            I("ds_read_b64_tr_b16 v[%d:%d], v8 offset:%d" % (r + 2, r + 3, t * 4096 + tt * 32 + 512))
    I("v_mov_b32 v13, %d" % OOB)
    I("v_lshlrev_b32 v10, 4, v0")
    I("s_lshl_b32 s10, s7, 12\ns_add_u32 s10, s10, %d" % OBUF)
    I("s_lshl_b32 s11, s4, 9\nv_add_u32 v11, s11, v10\nv_cmp_gt_u32 vcc, 32, v0\nv_cndmask_b32 v11, v13, v11, vcc")
    I("v_and_b32 v12, 31, v0\nv_lshlrev_b32 v12, 4, v12\nv_add_u32 v12, %d, v12" % OA)
    I("v_lshrrev_b32 v9, 5, v0\nv_mul_u32_u24 v9, 272, v9\nv_and_b32 v15, 31, v0\nv_lshl_add_u32 v9, v15, 3, v9\nv_add_u32 v9, %d, v9" % OG)
    I("v_and_b32 v15, 7, v2\nv_mul_u32_u24 v15, 272, v15\nv_lshl_add_u32 v15, v3, 4, v15\nv_add_u32 v15, %d, v15" % OG)
    I("v_and_b32 v14, 1, v3\nv_mul_u32_u24 v14, %d, v14\nv_lshrrev_b32 v16, 1, v3\nv_lshl_add_u32 v14, v16, 12, v14\nv_lshl_add_u32 v14, v2, 3, v14" % (4 * 28 * 4096))
    I("s_lshl_b32 s11, s4, 14\ns_lshl_b32 s13, s7, 7\ns_add_u32 s11, s11, s13\ns_add_u32 s11, s11, %d" % PBUF)
    I("s_mov_b32 s48, 0\ns_mov_b32 s49, -1")
    for k in range(8): I("v_mov_b32 v%d, s44" % (193 + 2 * k))
    I("v_mov_b32 v57, s44\nv_mov_b32 v59, s44")
    I("s_waitcnt lgkmcnt(0)")
    STAMP_(9)
    I("s_barrier")
    STAMP_(10)
    C("reduce the four o partials, round, publish")
    for w in range(4):
        I("ds_read_b128 v[%d:%d], v12 offset:%d" % (64 + 4 * w, 64 + 4 * w + 3, 512 * w))
    I("s_waitcnt lgkmcnt(2)")
    I("v_pk_add_f32 v[64:65], v[64:65], v[68:69]\nv_pk_add_f32 v[66:67], v[66:67], v[70:71]")
    I("s_waitcnt lgkmcnt(0)")
    I("v_pk_add_f32 v[72:73], v[72:73], v[76:77]\nv_pk_add_f32 v[74:75], v[74:75], v[78:79]")
    I("v_pk_add_f32 v[64:65], v[64:65], v[72:73]\nv_pk_add_f32 v[66:67], v[66:67], v[74:75]")
    I("v_cvt_pk_bf16_f32 v56, v64, v65\nv_cvt_pk_bf16_f32 v58, v66, v67")
    I("buffer_store_dwordx4 v[56:59], v11, s[60:63], s10 offen @ST@")
    STAMP_(11)
    I("s_cmp_eq_u32 s4, 7\ns_cbranch_scc1 L_noproj")
    def iss():
        for k in range(4):
            I("buffer_load_dwordx4 v[%d:%d], v10, s[60:63], s10 offen offset:%d @LD@" % (64 + 4 * k, 64 + 4 * k + 3, 1024 * k))
    tags = []
    for k in range(4): tags += [64 + 4 * k + 1, 64 + 4 * k + 3]
    poll(iss, tags, 26, 27, backoff=cfg.tail_backoff)
    STAMP_(12)
    for k in range(4):
        I("ds_write2_b32 v9, v%d, v%d offset0:%d offset1:%d" % (64 + 4 * k, 64 + 4 * k + 2, 136 * k, 136 * k + 1) if 136 * k + 1 < 256 else
          "v_add_u32 v9, %d, v9\nds_write2_b32 v9, v%d, v%d offset0:%d offset1:%d" % (544 * 2 if k == 2 else 0, 64 + 4 * k, 64 + 4 * k + 2, 136 * (k - 2), 136 * (k - 2) + 1) if k == 2 else
          "ds_write2_b32 v9, v%d, v%d offset0:%d offset1:%d" % (64 + 4 * k, 64 + 4 * k + 2, 136 * (k - 2), 136 * (k - 2) + 1))
    I("s_waitcnt lgkmcnt(0)")
    for t in range(4):
        I("ds_read_b128 v[%d:%d], v15 offset:%d" % (96 + 4 * t, 96 + 4 * t + 3, 64 * t))
    for t in range(4):
        I("s_waitcnt lgkmcnt(%d)" % (3 - t))
        for tt in range(4):
            r = BF + 4 * (t * 4 + tt); d = 16 + 4 * tt
            c = "0" if t == 0 else "v[%d:%d]" % (d, d + 3)
            I("v_mfma_f32_16x16x32_bf16 v[%d:%d], v[%d:%d], v[%d:%d], %s" % (d, d + 3, 96 + 4 * t, 96 + 4 * t + 3, r, r + 3, c))
    for p in range(2):
        for r in range(4):
            k = p * 4 + r
            I("v_cndmask_b32 v%d, v%d, v%d, s[48:49]" % (192 + 2 * k, 16 + 8 * p + r, 16 + 8 * p + 4 + r))
        for r in range(4):
            k = p * 4 + r
            I("s_add_u32 s13, s11, %d" % (r * 28 * 4096 + p * 2 * 4096))
            I("buffer_store_dwordx2 v[%d:%d], v14, s[60:63], s13 offen @ST@" % (192 + 2 * k, 193 + 2 * k))
    L("L_noproj")
    STAMP_(13)
    I("s_cmp_ge_u32 s7, 28\ns_cbranch_scc1 L_sdone")
    C("final gather")
    I("s_mul_i32 s10, s4, 28\ns_add_u32 s10, s10, s7\ns_lshl_b32 s10, s10, 12\ns_add_u32 s10, s10, %d" % PBUF)
    I("v_lshlrev_b32 v14, 4, v0")
    def iss():
        for i in range(4):
            I("buffer_load_dwordx4 v[%d:%d], v14, s[60:63], s10 offen offset:%d @LD@" % (64 + 4 * i, 64 + 4 * i + 3, 1024 * i))
    poll(iss, [65, 67, 69, 71, 73, 75, 77, 79], 26, 27, backoff=cfg.tail_backoff)
    STAMP_(14)
    I("v_add_f32 v16, v64, v68\nv_add_f32 v18, v66, v70\nv_add_f32 v17, v72, v76\nv_add_f32 v19, v74, v78")
    I("v_add_f32 v16, v16, v17\nv_add_f32 v18, v18, v19")
    red8(16, 24); red8(18, 25)
    rnd_pair(16, 18, 16, 18, 26)
    I("v_mul_f32 v16, v16, v50\nv_mul_f32 v18, v18, v50")
    rnd_pair(16, 18, 16, 18, 26)
    I("v_add_f32 v16, v16, v53\nv_add_f32 v18, v18, v54")
    I("v_cvt_pk_bf16_f32 v16, v16, v18")
    srd(48, 38, 39, "7168")
    I("v_lshlrev_b32 v14, 2, v0\nv_cmp_gt_u32 vcc, 8, v0\nv_cndmask_b32 v14, v13, v14, vcc")
    I("s_mul_i32 s10, s4, 896\ns_lshl_b32 s11, s7, 5\ns_add_u32 s10, s10, s11")
    I("buffer_store_dword v16, v14, s[48:51], s10 offen")
    C("epoch update by workgroup 0")
    I("s_cmp_eq_u32 s2, 0\ns_cbranch_scc0 L_sdone")
    I("v_mov_b32 v16, s44\nv_mov_b32 v14, %d\nv_cmp_eq_u32 vcc, 0, v0\nv_cndmask_b32 v14, v13, v14, vcc" % EPOCH)
    I("buffer_store_dword v16, v14, s[60:63], 0 offen @ST@")
    I("s_branch L_sdone")
    L("L_s23_end")
    I("s_barrier")
    L("L_sdone")
    STAMP_(15)
    stamps_out()
    L("L_end")
    I("s_endpgm")

    secs = {}; order_seen = []; cur = "entry"; secs[cur] = []; order_seen.append(cur)
    for ln in e.lines:
        if ln.startswith(";@SEC "):
            cur = ln[6:].strip(); secs[cur] = []; order_seen.append(cur)
        else: secs[cur].append(ln)
    first = ["entry", "svc", "s3start", "s2start", "s1start"]
    rest = [x for x in order_seen if x not in first]
    e.lines = []
    for x in first + rest: e.lines += secs[x]
    e.lines = [l.replace('@LD@', cfg.ldf).replace('@ST@', cfg.stf) for l in e.lines]
    body = e.finalize()
    hdr = open('gated_mix__sliding_block_cached__mixer_channel_mlp__decode.s.ref').read().split('\n')
    head = [l for l in hdr if l.startswith(';') and '@launch' not in l and 'Override launch' not in l]
    txt = "\n".join(head) + "\n; @launch grid=(256,1,1) block=(512,1,1) lds=%d\n" % LDS_SIZE
    txt += '.amdgcn_target "amdgcn-amd-amdhsa--gfx950"\n.text\n.globl %s\n.p2align 8\n.type %s,@function\n%s:\n' % (NAME, NAME, NAME)
    txt += body
    txt += '.section .rodata,"a"\n.p2align 6\n.amdhsa_kernel %s\n' % NAME
    txt += "  .amdhsa_next_free_vgpr 256\n  .amdhsa_next_free_sgpr 102\n  .amdhsa_accum_offset 256\n  .amdhsa_group_segment_fixed_size 0\n  .amdhsa_kernarg_size 112\n  .amdhsa_user_sgpr_count 2\n  .amdhsa_user_sgpr_kernarg_segment_ptr 1\n  .amdhsa_system_sgpr_workgroup_id_x 1\n.end_amdhsa_kernel\n"
    return txt

if __name__ == "__main__":
    cfg = Cfg()
    out = sys.argv[1] if len(sys.argv) > 1 else "gated_mix__sliding_block_cached__mixer_channel_mlp__decode.s"
    for a in sys.argv[2:]:
        k, v = a.split("=")
        setattr(cfg, k, eval(v))
    open(out, "w").write(gen(cfg))
    print("written", out)
```

```python
import sys, struct
from emit import Emitter

NAME = "gated_mix__sliding_block_cached__mixer_channel_mlp__decode_kernel"

WOT  = 0
WQT  = 16384
W1T  = WQT + 14336
W2T  = WQT + 28672
XL   = W2T + 7168
YL   = XL + 7168
QL   = YL + 7296
PL   = QL + 1024
OA   = PL + 4096
HL   = OA + 2048
OG   = HL + 2176
SG   = OG + 2176
SL   = SG + 4096
FIN  = SL + 1024
FLG  = FIN + 128
F_Q, F_Y, F_S, F_P, F_WO, F_T1, F_T2, F_X, F_SP, F_K, F_G, F_LOC, F_LATE, F_PUB = [FLG + 4 * i for i in range(14)]
LDS_SIZE = FLG + 64
EPOCH = 0
QBUF = 4096
HBUF = QBUF + 131072
SBUF = 0x30000
MBUF = 0xB0000
PBUF = 0x120000
OBUF = 0x200000
XBUF = 0x220000
TBUF = 0x228000
STAMP = 0x230000
DUP = 0x400000
WS_RANGE = 0x800000
OOB = 0x7FFF0000

def f2u(x): return struct.unpack('<I', struct.pack('<f', x))[0]

class Cfg:
    wk = 8
    wv = 6
    nt_kv = " nt"
    nt_w = " nt"
    nt_wo = " nt"
    stamps = False
    qpos = 38
    sched = None
    pat = 'VW' * 8 + 'WWV' * 10 + 'V' * 14
    maxpoll = 20001
    prio = 3
    pub_wait = True
    stagger = 6
    lh = 'o'
    late_win = 0
    late_slot = 10
    late_cnt = 5
    x_late = False
    dbg_start = False
    hack_nop = False
    local = True
    qh_cond = False
    die_by = 'S3'
    perm = False
    die_tries = 4
    bper = 16
    noB = ''
    free_flag = 'F_G'
    nofree = False
    ldf = 'sc1'
    stf = 'sc1'
    stl = ''
    code_pf = 15
    pf_mask = 31
    pf_skip = 1024
    wo_by = 'S1'
    tq_swap = True
    w2_win = 7
    wo_win = 6
    w2_trig = None
    wo_trig = None
    kflag_slot = 31
    pretouch = False
    tail_backoff = 0
    wo_rot = True
    s0_w = 'after_q'
    mapping = 'ps'
    s0_early_bar = False
    h_trig = 'F_T1'
    wk_pre = 2
    late_tiles = True
    t1 = 20
    t2 = 46
    backoff = 4

def default_sched(cfg):
    s = [('K', n // 8, n % 8) for n in range(32)]
    s += [('V', T, j) for T in range(4) for j in range(8)]
    return s

def gen(cfg):
    lh = cfg.lh if cfg.local else ''
    if cfg.mapping != 'kx': assert 'q' not in lh and 's' not in lh
    cfg.noB = ''.join(c for c in 'qhso' if c not in lh) + cfg.noB
    cfg.local = bool(lh)
    e = Emitter(); I = e.I; L = e.L; C = e.C
    nst = [0]
    def STAMP_(i):
        if cfg.stamps: I("s_memrealtime s[%d:%d]" % (70 + 2 * i, 71 + 2 * i))
    def stamps_out():
        if not cfg.stamps: return
        I("s_waitcnt vmcnt(0) lgkmcnt(0)")
        I("s_lshl_b32 s8, s2, 3\ns_add_u32 s8, s8, s3\ns_lshl_b32 s8, s8, 7\ns_add_u32 s8, s8, %d" % STAMP)
        I("v_mov_b32 v1, 0")
        I("s_mov_b64 exec, 1")
        for k in range(8):
            for q in range(4): I("v_mov_b32 v%d, s%d" % (4 + q, 70 + 4 * k + q))
            I("buffer_store_dwordx4 v[4:7], v1, s[60:63], s8 offen offset:%d" % (16 * k))
            I("s_nop 1")
        I("s_waitcnt vmcnt(0)")
    uid = [0]
    def lab(p):
        uid[0] += 1
        return "L_%s_%d" % (p, uid[0])
    def srd(n, lo, hi, nrec):
        I("s_mov_b32 s%d, s%d\ns_mov_b32 s%d, s%d\ns_mov_b32 s%d, %s\ns_mov_b32 s%d, 0x20000" % (n, lo, n + 1, hi, n + 2, nrec, n + 3))
    def srd_add(n, lo, hi, off_sgpr, nrec):
        I("s_add_u32 s%d, s%d, %s\ns_addc_u32 s%d, s%d, 0\ns_mov_b32 s%d, %s\ns_mov_b32 s%d, 0x20000" % (n, lo, off_sgpr, n + 1, hi, n + 2, nrec, n + 3))
    def wait_flag(addr_v, off, val, tmpv, cmp="ge"):
        lp = lab("fl"); dn = lab("fld")
        I("s_mov_b32 s45, 0x100000")
        L(lp)
        I("ds_read_b32 v%d, v%d offset:%d" % (tmpv, addr_v, off))
        I("s_waitcnt lgkmcnt(0)")
        I("v_readfirstlane_b32 s46, v%d" % tmpv)
        I("s_cmp_ge_u32 s46, %d" % val)
        I("s_cbranch_scc1 %s" % dn)
        I("s_sub_u32 s45, s45, 1")
        I("s_cmp_lg_u32 s45, 0")
        I("s_cbranch_scc1 %s" % lp)
        L(dn)
    def set_flag_add(addr_v, off, onev):
        I("ds_add_u32 v%d, v%d offset:%d" % (addr_v, onev, off))
    def check_tags(tags, vmin, vmax, lanemask=None):
        t = list(tags)
        if len(t) % 2 == 1: t.append(t[-1])
        I("v_min_u32 v%d, v%d, v%d" % (vmin, t[0], t[1]))
        I("v_max_u32 v%d, v%d, v%d" % (vmax, t[0], t[1]))
        for k in range(2, len(t), 2):
            I("v_min3_u32 v%d, v%d, v%d, v%d" % (vmin, vmin, t[k], t[k + 1]))
            I("v_max3_u32 v%d, v%d, v%d, v%d" % (vmax, vmax, t[k], t[k + 1]))
        I("v_cmp_ne_u32 vcc, s44, v%d" % vmin)
        I("v_cmp_ne_u32 s[46:47], s44, v%d" % vmax)
        I("s_or_b64 vcc, vcc, s[46:47]")
        if lanemask: I("s_and_b64 vcc, vcc, %s" % lanemask)
        I("s_cmp_eq_u64 vcc, 0")
    def dual_init(bases):
        if bases: I("s_mov_b32 s64, 0")
    def dual_next(bases):
        if not bases: return
        I("s_and_b32 s65, s45, %d\ns_cmp_eq_u32 s65, 0\ns_cselect_b32 s65, %d, 0\ns_sub_u32 s66, s65, s64\ns_mov_b32 s64, s65" % (cfg.bper - 1, DUP))
        for b_ in bases: I("s_add_u32 %s, %s, s66" % (b_, b_))
    def poll(issue, tags, vmin, vmax, lanemask=None, backoff=cfg.backoff, after_first=None, dual=None):
        lp = lab("pl"); dn = lab("pld")
        I("s_mov_b32 s45, %d" % cfg.maxpoll)
        dual_init(dual)
        if after_first:
            issue(); after_first()
            I("s_branch %s_w" % lp)
        L(lp)
        issue()
        if after_first: L(lp + "_w")
        I("s_waitcnt vmcnt(0)")
        check_tags(tags, vmin, vmax, lanemask)
        I("s_cbranch_scc1 %s" % dn)
        if backoff: I("s_sleep %d" % backoff)
        I("s_sub_u32 s45, s45, 1")
        dual_next(dual)
        I("s_cmp_lg_u32 s45, 0")
        I("s_cbranch_scc1 %s" % lp)
        L(dn)
    def if_not_local(tmpv):
        sk = lab("loc")
        wait_flag(4, FO(F_LOC), 64, tmpv)
        I("s_cmp_ge_u32 s46, 128")
        I("s_cbranch_scc1 %s" % sk)
        return sk
    def rnd_pair(dst_lo, dst_hi, a, b, tmp):
        I("v_cvt_pk_bf16_f32 v%d, v%d, v%d" % (tmp, a, b))
        I("v_lshlrev_b32 v%d, 16, v%d" % (dst_lo, tmp))
        I("v_and_b32 v%d, 0xffff0000, v%d" % (dst_hi, tmp))
    def wave_reduce(op, v, t):
        for mod in ("quad_perm:[1,0,3,2]", "quad_perm:[2,3,0,1]", "row_half_mirror", "row_mirror"):
            I("%s_dpp v%d, v%d, v%d %s row_mask:0xf bank_mask:0xf" % (op, v, v, v, mod))
        for sw in ("v_permlane16_swap_b32", "v_permlane32_swap_b32"):
            I("v_mov_b32 v%d, v%d" % (t, v))
            I("%s v%d, v%d" % (sw, v, t))
            I("%s v%d, v%d, v%d" % (op, v, v, t))

    def tq_calc(dst):
        I("s_lshr_b32 %s, s9, 1" % dst)
        if cfg.tq_swap:
            I("s_and_b32 s46, %s, 6\ns_cmp_eq_u32 s46, 6\ns_cselect_b32 s46, 8, 0\ns_xor_b32 %s, %s, s46" % (dst, dst, dst))

    def wo_tile(skip):
        I("s_cmp_eq_u32 s4, 7\ns_cbranch_scc1 %s" % skip)
        I("s_lshl_b32 s10, s5, 9\ns_lshl_b32 s11, s6, 6\ns_add_u32 s10, s10, s11\ns_mul_i32 s10, s10, 896\ns_lshl_b32 s11, s4, 7\ns_add_u32 s10, s10, s11")
        I("s_sub_u32 s11, %d, s10" % (4096 * 896))
        srd_add(52, 24, 25, "s10", "s11")
        I("v_lshrrev_b32 v9, 3, v0\nv_mul_u32_u24 v9, 896, v9\nv_and_b32 v10, 7, v0\nv_lshl_add_u32 v9, v10, 4, v9")
        if cfg.wo_trig: wait_flag(4, FO(eval(cfg.wo_trig)), 256, 26)
        I("s_mov_b32 m0, %d\ns_mov_b32 s12, 0" % WOT)
        for i in range(16):
            if i >= cfg.wo_win: I("s_waitcnt vmcnt(%d)" % (cfg.wo_win - 1))
            I("buffer_load_dwordx4 v9, s[52:55], s12 offen%s lds" % cfg.nt_wo)
            if i < 15: I("s_add_u32 m0, m0, 1024\ns_add_u32 s12, s12, %d" % (8 * 896 if i != 7 else (256 - 56) * 896))
        I("s_waitcnt vmcnt(0)")

    def dma_loop(n, vreg_, srd_, step, flags, cnt="s13", win=None):
        lp = lab("dma")
        I("s_mov_b32 %s, %d" % (cnt, n))
        L(lp)
        if win: I("s_waitcnt vmcnt(%d)" % (win - 1))
        I("buffer_load_dwordx4 v%d, s[%d:%d], s12 offen%s lds" % (vreg_, srd_, srd_ + 3, flags))
        I("s_add_u32 m0, m0, 1024\ns_add_u32 s12, s12, %d\ns_sub_u32 %s, %s, 1\ns_cmp_lg_u32 %s, 0\ns_cbranch_scc1 %s" % (step, cnt, cnt, cnt, lp))
    def SEC(name): e.lines.append(";@SEC " + name)

    def code_prefetch():
        if not cfg.code_pf: return
        C("a few workgroups pull the kernel's code into L2 (reads only)")
        I("s_and_b32 s10, s9, %d\ns_cmp_eq_u32 s10, %d\ns_cbranch_scc0 L_s1_nopf" % (cfg.pf_mask, cfg.pf_mask))
        I("s_getpc_b64 s[10:11]")
        L("L_pcref")
        I("s_sub_u32 s10, s10, L_pcref-%s\ns_subb_u32 s11, s11, 0" % NAME)
        I("v_lshlrev_b32 v9, 4, v0\nv_add_u32 v9, %d, v9" % cfg.pf_skip)
        for i in range(cfg.code_pf):
            I("global_load_dwordx4 v[64:67], v9, s[10:11]")
            if i < cfg.code_pf - 1: I("v_add_u32 v9, 1024, v9")
        L("L_s1_nopf")

    def die_check(sfx):
        lp = lab("dc"); dn = lab("dcd"); ok = lab("dco")
        I("s_getreg_b32 s67, hwreg(HW_REG_XCC_ID)")
        I("s_lshl_b32 s15, s8, 9\ns_add_u32 s15, s15, %d" % XBUF)
        I("v_mov_b32 v13, %d\nv_lshlrev_b32 v19, 3, v0\nv_cmp_gt_u32 vcc, 32, v0\nv_cndmask_b32 v19, v13, v19, vcc" % OOB)
        I("s_mov_b32 s45, %d" % cfg.die_tries)
        L(lp)
        I("buffer_load_dwordx2 v[20:21], v19, s[60:63], s15 offen @LD@")
        I("s_waitcnt vmcnt(0)")
        I("v_cmp_ne_u32 vcc, s44, v21")
        I("s_cmp_eq_u32 vcc_lo, 0\ns_cbranch_scc1 %s" % ok)
        I("s_sleep 2\ns_sub_u32 s45, s45, 1\ns_cmp_lg_u32 s45, 0\ns_cbranch_scc1 %s" % lp)
        I("s_branch %s" % dn)
        L(ok)
        I("v_cmp_ne_u32 vcc, s67, v20")
        I("s_cmp_eq_u32 vcc_lo, 0\ns_cbranch_scc0 %s" % dn)
        set_flag_add(4, FO(F_LOC), 5)
        L(dn)
        set_flag_add(4, FO(F_LOC), 5)

    I("s_cmp_ge_u32 s2, 256")
    I("s_cbranch_scc1 L_end")
    if cfg.perm:
        I("s_and_b32 s4, s2, 31\ns_lshl_b32 s4, s4, 3\ns_lshr_b32 s2, s2, 5\ns_or_b32 s2, s2, s4")
    I("s_load_dwordx16 s[16:31], s[0:1], 0")
    I("s_load_dwordx8 s[32:39], s[0:1], 64")
    I("s_load_dwordx4 s[40:43], s[0:1], 96")
    if cfg.stamps:
        for k in range(70, 102): I("s_mov_b32 s%d, 0" % k)
    STAMP_(0)
    I("v_lshrrev_b32 v1, 6, v0")
    I("v_and_b32 v0, 63, v0")
    I("v_readfirstlane_b32 s3, v1")
    I("s_lshr_b32 s4, s2, 5")
    if cfg.mapping == "kx":
        I("s_and_b32 s5, s2, 7")
        I("s_bfe_u32 s6, s2, 0x20003")
    else:
        I("s_bfe_u32 s5, s2, 0x30002")
        I("s_and_b32 s6, s2, 3")
    I("s_and_b32 s7, s2, 31")
    I("s_and_b32 s8, s2, 7")
    I("s_lshr_b32 s9, s2, 3")
    I("v_and_b32 v2, 15, v0")
    I("v_lshrrev_b32 v3, 4, v0")
    I("v_mov_b32 v4, %d" % FLG)
    I("v_mov_b32 v5, 1")
    def start_sync():
        I("s_waitcnt lgkmcnt(0)")
        I("s_load_dword s44, s[42:43], %d" % EPOCH)
        srd(60, 42, 43, hex(WS_RANGE))
    def start_wait(): I("s_waitcnt lgkmcnt(0)")
    def start_ws():
        I("s_load_dword s44, s[42:43], %d" % EPOCH)
        srd(60, 42, 43, hex(WS_RANGE))
    def start_bar():
        I("s_barrier")
        STAMP_(1)
    I("s_cmp_ge_u32 s3, 4")
    I("s_cbranch_scc1 L_service")
    FO = lambda f: f - FLG

    C("bulk waves")
    KR = 64; VB = 192; QA = 32; PF = 16; SACC = 224
    vreg = {0: VB, 1: KR, 2: KR + 32, 3: KR + 64}
    TMP = KR + 96
    I("s_lshl_b32 s10, s4, 3\ns_add_u32 s10, s10, s5")
    I("s_lshl_b32 s11, s10, 21\ns_add_u32 s11, s11, %d" % (3072 * 512))
    I("s_lshl_b32 s12, s6, 15\ns_lshl_b32 s13, s3, 13\ns_add_u32 s12, s12, s13")
    I("s_sub_u32 s14, %d, s12" % 524288)
    I("s_add_u32 s12, s12, s11")
    I("s_mov_b32 s64, 0\ns_mov_b32 s65, 0x20000\ns_mov_b32 s66, 0x40000\ns_mov_b32 s67, 0x60000")
    I("v_bfe_u32 v6, v0, 2, 2\nv_lshlrev_b32 v6, 11, v6\nv_lshl_add_u32 v6, v3, 6, v6\nv_and_b32 v7, 3, v0\nv_lshl_add_u32 v6, v7, 4, v6")
    start_wait()
    srd_add(48, 18, 19, "s12", "s14")
    def bulk_setup_b():
        start_ws()
        I("s_lshl_b32 s12, s3, 15\ns_lshl_b32 s13, s6, 7\ns_add_u32 s12, s12, s13")
        I("s_sub_u32 s14, %d, s12" % 524288)
        I("s_add_u32 s12, s12, s11")
        srd_add(52, 20, 21, "s12", "s14")
        I("v_lshrrev_b32 v7, 3, v0\nv_lshlrev_b32 v7, 12, v7\nv_and_b32 v8, 7, v0\nv_lshl_add_u32 v7, v8, 4, v7")
        I("v_lshlrev_b32 v9, 11, v3\nv_lshl_add_u32 v9, v2, 3, v9")
        I("s_lshl_b32 s15, s10, 13\ns_lshl_b32 s12, s6, 9\ns_add_u32 s15, s15, s12\ns_lshl_b32 s12, s3, 7\ns_add_u32 s15, s15, s12\ns_add_u32 s15, s15, %d" % SBUF)
        I("v_bfe_u32 v10, v0, 2, 1\nv_lshlrev_b32 v10, 9, v10\nv_lshl_add_u32 v10, v3, 6, v10\nv_and_b32 v11, 3, v0\nv_lshl_add_u32 v10, v11, 4, v10\nv_add_u32 v10, %d, v10" % QL)
        I("v_bfe_u32 v11, v0, 1, 1\nv_lshlrev_b32 v11, 11, v11\nv_lshl_add_u32 v11, v3, 5, v11\nv_and_b32 v12, 1, v0\nv_lshl_add_u32 v11, v12, 4, v11")
        I("s_lshl_b32 s12, s3, 7\ns_add_u32 s12, s12, %d\nv_add_u32 v11, s12, v11" % PL)
        I("v_and_b32 v12, 7, v0\nv_lshlrev_b32 v12, 5, v12\ns_lshl_b32 s12, s3, 9\ns_add_u32 s12, s12, %d\nv_add_u32 v12, s12, v12" % OA)
        I("v_lshlrev_b32 v14, 2, v0\ns_lshl_b32 s12, s3, 8\ns_add_u32 s12, s12, %d\nv_add_u32 v14, s12, v14" % SL)
        I("s_mov_b32 s68, 0x05040100\ns_mov_b32 s69, 0x07060302")
        I("s_mov_b32 s47, 0")
        I("s_mov_b32 s16, 0xffff0000\ns_mov_b32 s17, 0\ns_mov_b32 s18, 0\ns_mov_b32 s19, 0x0000ffff\ns_mov_b32 s20, 0\ns_mov_b32 s21, 0xffff0000")
        I("s_mov_b32 s22, 0x22222222\ns_mov_b32 s23, 0x22222222\ns_mov_b32 s24, 0x44444444\ns_mov_b32 s25, 0x44444444\ns_mov_b32 s26, 0x88888888\ns_mov_b32 s27, 0x88888888")
        start_bar()
    sched = cfg.sched or default_sched(cfg)
    ops = []
    def outstanding_after(opid):
        return len(ops) - 1 - ops.index(opid)
    def wait_op(opid):
        n = outstanding_after(opid)
        I("s_waitcnt vmcnt(%d)" % min(n, 63))
    tag_ready = [False]
    def ensure_tag():
        if not tag_ready[0]:
            I("s_waitcnt lgkmcnt(0)")
            I("s_mul_i32 s44, s44, 1664525\ns_add_u32 s44, s44, 1013904223")
            I("v_mov_b32 v%d, s44" % (SACC + 5))
            tag_ready[0] = True
    DQ = QA + 8
    def score_tile(T):
        C("scores tile %d" % T)
        wait_op(('K', T, 7))
        for hf in range(2):
            for G in range(4):
                c = "0" if hf == 0 else "v[%d:%d]" % (DQ + 4 * G, DQ + 4 * G + 3)
                r = KR + 32 * T + 4 * (2 * G + hf)
                I("v_mfma_f32_16x16x32_bf16 v[%d:%d], v[%d:%d], v[%d:%d], %s" % (DQ + 4 * G, DQ + 4 * G + 3, QA + 4 * hf, QA + 4 * hf + 3, r, r + 3, c))
        t = QA + 24
        for G in range(4):
            I("v_mov_b32_dpp v%d, v%d quad_perm:[0,0,0,0] row_mask:0xf bank_mask:0xf" % (t + G, DQ + 4 * G))
        for c in range(1, 4):
            for G in range(4):
                I("v_add_f32_dpp v%d, v%d, v%d quad_perm:[%d,%d,%d,%d] row_mask:0xf bank_mask:0xf" % (t + G, DQ + 4 * G + c, t + G, c, c, c, c))
        I("v_cndmask_b32 v%d, v%d, v%d, s[22:23]" % (t, t, t + 1))
        I("v_cndmask_b32 v%d, v%d, v%d, s[24:25]" % (t, t, t + 2))
        I("v_cndmask_b32 v%d, v%d, v%d, s[26:27]" % (t, t, t + 3))
        I("v_mov_b32 v%d, v%d" % (t + 1, t))
        I("v_permlane16_swap_b32 v%d, v%d" % (t, t + 1))
        I("v_cvt_pk_bf16_f32 v%d, v%d, v%d" % (SACC + T, t, t + 1))
        if T == 3:
            I("v_cndmask_b32 v%d, v%d, v%d, s[16:17]" % (SACC + 4, SACC, SACC + 1))
            I("v_cndmask_b32 v%d, v%d, v%d, s[18:19]" % (SACC + 4, SACC + 4, SACC + 2))
            I("v_cndmask_b32 v%d, v%d, v%d, s[20:21]" % (SACC + 4, SACC + 4, SACC + 3))
            I("buffer_store_dwordx2 v[%d:%d], v9, s[60:63], s15 offen @STAs@" % (SACC + 4, SACC + 5))
            if 's' in lh: I("ds_write_b32 v14, v%d" % (SACC + 4))
            ops.append(('S', T))
    first_v = min(i for i, o in enumerate(sched) if o[0] == 'V')
    last_k = max(i for i, o in enumerate(sched) if o[0] == 'K')
    qpos = cfg.qpos
    tiles_done = 0
    scores_flagged = False
    wo_flagged = False
    for si, o in enumerate(sched):
        win = cfg.wk if si <= last_k else cfg.wv
        if si == cfg.wk_pre:
            I("s_branch L_bulk_main"); SEC("bulkmain"); L("L_bulk_main")
            bulk_setup_b()
        if cfg.late_win and si == cfg.late_slot:
            I("ds_read_b32 v13, v4 offset:%d" % FO(F_LATE))
            I("s_waitcnt lgkmcnt(0)")
            I("v_readfirstlane_b32 s40, v13")
        if len(ops) >= win and not (qpos < si <= qpos + 3):
            sk = None
            late = cfg.late_win and si > cfg.late_slot
            if scores_flagged or late:
                sk = lab("sk")
            if scores_flagged:
                I("s_cmp_lg_u32 s47, 0")
                I("s_cbranch_scc1 %s" % sk)
            if late:
                sk2 = lab("sl")
                if len(ops) >= cfg.late_win: I("s_waitcnt vmcnt(%d)" % (cfg.late_win - 1))
                I("s_cmp_lg_u32 s40, 0")
                I("s_cbranch_scc1 %s" % sk2)
            I("s_waitcnt vmcnt(%d)" % (win - 1))
            if late: L(sk2)
            if scores_flagged and si > cfg.t2 and not cfg.nofree:
                I("ds_read_b32 v13, v4 offset:%d" % FO(eval(cfg.free_flag)))
                I("s_waitcnt lgkmcnt(0)")
                I("v_readfirstlane_b32 s46, v13")
                I("s_lshr_b32 s47, s46, 6")
            if sk: L(sk)
        if si == cfg.t1:
            set_flag_add(4, FO(F_T1), 5); STAMP_(10)
        if si == qpos:
            C("wait q")
            STAMP_(2)
            ensure_tag()
            wait_flag(4, FO(F_Q), 1, 13)
            for hf in range(2):
                I("ds_read_b128 v[%d:%d], v10 offset:%d" % (QA + 4 * hf, QA + 4 * hf + 3, 256 * hf))
            I("s_waitcnt lgkmcnt(0)")
            STAMP_(3)
        if si >= qpos and tiles_done < 4:
            T = tiles_done
            score_tile(T); tiles_done += 1
            if tiles_done == 4:
                set_flag_add(4, FO(F_S), 5); scores_flagged = True
                STAMP_(4)
        if si == cfg.t2:
            set_flag_add(4, FO(F_T2), 5); STAMP_(11)
        if o[0] == 'K':
            _, T, t = o
            I("buffer_load_dwordx4 v[%d:%d], v6, s[48:51], s%d offen offset:%d%s" % (KR + 32 * T + 4 * t, KR + 32 * T + 4 * t + 3, 64 + T, 512 * (t // 2) + 256 * (t % 2), cfg.nt_kv))
            if si == cfg.kflag_slot:
                set_flag_add(4, FO(F_K), 5)
            if si == last_k: STAMP_(12)
        elif o[0] == 'V':
            _, T, j = o
            if T >= 1: assert tiles_done > T - 1, "V tile overwrites K tile not yet consumed"
            r = vreg[T] + 4 * j
            I("buffer_load_dwordx4 v[%d:%d], v7, s[52:55], s%d offen offset:%d%s" % (r, r + 3, 64 + T, 512 * j, cfg.nt_kv))
        else:
            i = o[1]
            if i >= 21: assert si > qpos, "wo chunk overlays x before q flag"
            if i % 4 == 0:
                I("s_add_u32 m0, s13, %d" % (i * 1024))
                I("s_mov_b32 s14, %d" % (i * 1024))
            I("buffer_load_dwordx4 v8, s[56:59], s14 offen offset:%d%s lds" % ((i % 4) * 1024, cfg.nt_wo))
        ops.append(o)
    assert tiles_done == 4
    STAMP_(6)
    dstT = {0: TMP, 1: VB, 2: KR, 3: KR + 32}
    def pv_perm(T):
        C("transpose V tile %d" % T)
        wait_op(('V', T, 7))
        R = vreg[T]; Dd = dstT[T]
        for jp in range(8):
            sel = "s68" if jp % 2 == 0 else "s69"
            for i in range(4):
                I("v_perm_b32 v%d, v%d, v%d, %s" % (Dd + 4 * jp + i, R + 4 * (2 * i + 1) + jp // 2, R + 4 * (2 * i) + jp // 2, sel))
    def pv_mfma(T):
        for q in range(8):
            c = "0" if T == 0 else "v[%d:%d]" % (QA + 4 * q, QA + 4 * q + 3)
            I("v_mfma_f32_16x16x32_bf16 v[%d:%d], v[%d:%d], v[%d:%d], %s" % (QA + 4 * q, QA + 4 * q + 3, PF + 4 * T, PF + 4 * T + 3, dstT[T] + 4 * q, dstT[T] + 4 * q + 3, c))
    for T in range(3): pv_perm(T)
    I("ds_read_b32 v13, v4 offset:%d" % FO(F_P))
    I("s_waitcnt lgkmcnt(0)")
    I("v_readfirstlane_b32 s46, v13")
    I("s_lshr_b32 s47, s46, 7")
    if cfg.hack_nop: I("s_mov_b32 s47, 1")
    I("s_cmp_lg_u32 s47, 0")
    I("s_cbranch_scc1 L_p_early")
    pv_perm(3)
    C("wait p")
    wait_flag(4, FO(F_P), 128, 13)
    L("L_p_early")
    for T in range(4):
        I("ds_read_b128 v[%d:%d], v11 offset:%d" % (PF + 4 * T, PF + 4 * T + 3, 512 * T))
    STAMP_(7)
    for T in range(3):
        I("s_waitcnt lgkmcnt(%d)" % (3 - T))
        pv_mfma(T)
    I("s_cmp_lg_u32 s47, 0")
    I("s_cbranch_scc0 L_p_late")
    pv_perm(3)
    L("L_p_late")
    I("s_waitcnt lgkmcnt(0)")
    pv_mfma(3)
    STAMP_(8)
    C("u-sum, pack, write OA")
    OS = 64
    for h in range(2):
        for jp in range(8):
            I("v_add_f32_dpp v%d, v%d, v%d row_ror:8 row_mask:0xf bank_mask:0xf" % (OS + 8 * h + jp, QA + 4 * jp + 2 * h + 1, QA + 4 * jp + 2 * h))
    I("s_mov_b64 exec, 0xff")
    for h in range(2):
        I("ds_write_b128 v12, v[%d:%d] offset:%d" % (OS + 8 * h, OS + 8 * h + 3, 256 * h))
        I("ds_write_b128 v12, v[%d:%d] offset:%d" % (OS + 8 * h + 4, OS + 8 * h + 7, 256 * h + 16))
    I("s_mov_b64 exec, -1")
    I("s_waitcnt lgkmcnt(0)")
    I("s_barrier")
    STAMP_(9)
    stamps_out()
    I("s_endpgm")

    SEC("svc")
    L("L_service")
    if cfg.prio: I("s_setprio %d" % cfg.prio)
    I("s_mov_b32 s14, 0x00ff00ff\ns_mov_b32 s15, 0x00ff00ff")
    I("v_cmp_gt_u32 vcc, 8, v2")
    I("v_lshrrev_b32 v6, 2, v2\nv_lshl_add_u32 v6, v3, 3, v6")
    I("v_and_b32 v7, 3, v2\nv_lshlrev_b32 v7, 3, v7")
    I("v_mul_u32_u24 v8, 896, v6\nv_add_u32 v8, v8, v7")
    I("v_lshl_add_u32 v6, v6, 5, v7")
    I("s_cmp_eq_u32 s3, 7\ns_cbranch_scc1 L_s3")
    I("s_cmp_eq_u32 s3, 6\ns_cbranch_scc1 L_s2_pre")
    I("s_cmp_eq_u32 s3, 5\ns_cbranch_scc1 L_s1")

    XF = 64; AF = 128
    L("L_s0")
    C("S0: wq tile DMA (even idx), gate_w, b2")
    I("v_lshrrev_b32 v9, 2, v0\nv_and_b32 v10, 3, v0\nv_lshlrev_b32 v10, 4, v10")
    I("v_lshl_add_u32 v11, v9, 13, v10")
    tq_calc("s11")
    I("s_lshl_b32 s10, s8, 10\ns_lshl_b32 s11, s11, 6\ns_add_u32 s10, s10, s11")
    I("s_sub_u32 s11, %d, s10" % (448 * 8192))
    I("s_mov_b32 s12, 0\ns_mov_b32 m0, %d" % WQT)
    start_wait()
    if cfg.dbg_start: STAMP_(12)
    I("s_bitcmp1_b32 s9, 0\ns_cbranch_scc1 L_s0_noq1")
    srd_add(48, 22, 23, "s10", "s11")
    dma_loop(28, 11, 48, 0x20000, cfg.nt_w)
    L("L_s0_noq1")
    start_ws()
    if cfg.dbg_start: STAMP_(13)
    start_bar()
    I("s_branch L_s0_main"); SEC("s0main"); L("L_s0_main")
    I("v_mov_b32 v13, %d" % OOB)
    srd(52, 36, 37, "896")
    I("v_lshlrev_b32 v14, 4, v0\nv_cmp_gt_u32 vcc, 56, v0\nv_cndmask_b32 v14, v13, v14, vcc")
    I("buffer_load_dwordx4 v[36:39], v14, s[52:55], 0 offen")
    srd(56, 34, 35, "896")
    I("v_and_b32 v15, 7, v0\nv_lshlrev_b32 v15, 2, v15\ns_lshl_b32 s10, s7, 5")
    I("buffer_load_dword v52, v15, s[56:59], s10 offen")
    wait_flag(4, FO(F_X), 1, 26)
    I("v_and_b32 v12, 7, v2\nv_mul_u32_u24 v12, 896, v12\nv_lshl_add_u32 v12, v3, 4, v12\nv_add_u32 v12, %d, v12" % XL)
    for t in range(14):
        I("ds_read_b128 v[%d:%d], v12 offset:%d" % (XF + 4 * t, XF + 4 * t + 3, 64 * t))
    I("s_mul_i32 s10, s4, 896\ns_add_u32 s10, s10, %d" % XL)
    I("v_min_u32 v14, 55, v0\nv_lshlrev_b32 v14, 4, v14\nv_add_u32 v14, s10, v14")
    I("ds_read_b128 v[32:35], v14")
    I("s_waitcnt vmcnt(0) lgkmcnt(0)")
    STAMP_(2)
    I("s_mul_i32 s44, s44, 1664525\ns_add_u32 s44, s44, 1013904223")
    I("s_bitcmp1_b32 s9, 0\ns_cbranch_scc1 L_s0_noq2")
    I("v_lshrrev_b32 v15, 2, v2\nv_lshl_add_u32 v15, v3, 3, v15\nv_lshlrev_b32 v15, 6, v15\nv_add_u32 v15, v15, v7\nv_add_u32 v15, %d, v15" % WQT)
    for t in range(14):
        for ct in range(2):
            r = AF + 8 * t + 4 * ct
            I("ds_read_b64_tr_b16 v[%d:%d], v15 offset:%d" % (r, r + 1, 2048 * t + 32 * ct))
            I("ds_read_b64_tr_b16 v[%d:%d], v15 offset:%d" % (r + 2, r + 3, 2048 * t + 32 * ct + 256))
    I("s_waitcnt lgkmcnt(0)")
    for t in range(14):
        for ct in range(2):
            d = 16 + 4 * ct
            c = "0" if t == 0 else "v[%d:%d]" % (d, d + 3)
            r = AF + 8 * t + 4 * ct
            I("v_mfma_f32_16x16x32_bf16 v[%d:%d], v[%d:%d], v[%d:%d], %s" % (d, d + 3, r, r + 3, XF + 4 * t, XF + 4 * t + 3, c))
    I("v_lshlrev_b32 v14, 6, v2\nv_lshl_add_u32 v14, v3, 3, v14\nv_add_u32 v14, %d, v14" % OG)
    I("v_cvt_pk_bf16_f32 v56, v16, v17\nv_cvt_pk_bf16_f32 v57, v18, v19\nv_cvt_pk_bf16_f32 v58, v20, v21\nv_cvt_pk_bf16_f32 v59, v22, v23")
    I("ds_write_b64 v14, v[56:57]\nds_write_b64 v14, v[58:59] offset:32")
    I("v_lshlrev_b32 v14, 3, v0\nv_add_u32 v14, %d, v14" % OG)
    I("ds_read_b64 v[60:61], v14")
    I("v_lshrrev_b32 v14, 3, v0\nv_lshlrev_b32 v14, 11, v14\nv_and_b32 v15, 7, v0\nv_lshl_add_u32 v14, v15, 4, v14")
    tq_calc("s11")
    I("s_lshl_b32 s10, s8, 14\ns_lshl_b32 s11, s11, 7\ns_add_u32 s10, s10, s11\ns_add_u32 s10, s10, %d" % QBUF)
    I("v_mov_b32 v57, s44\nv_mov_b32 v59, s44")
    I("s_waitcnt lgkmcnt(0)")
    I("v_mov_b32 v56, v60\nv_mov_b32 v58, v61")
    I("buffer_store_dwordx4 v[56:59], v14, s[60:63], s10 offen @STAq@")
    if cfg.qh_cond: sk_ = if_not_local(26)
    I("s_add_u32 s11, s10, %d" % DUP)
    I("buffer_store_dwordx4 v[56:59], v14, s[60:63], s11 offen @ST@")
    if cfg.qh_cond: L(sk_)
    L("L_s0_noq2")
    STAMP_(3)
    C("gate (lanes >= 56 have gate_w = 0)")
    for q in range(4):
        I("v_lshlrev_b32 v%d, 16, v%d\nv_and_b32 v%d, 0xffff0000, v%d" % (24 + 2 * q, 32 + q, 25 + 2 * q, 32 + q))
        I("v_lshlrev_b32 v%d, 16, v%d\nv_and_b32 v%d, 0xffff0000, v%d" % (40 + 2 * q, 36 + q, 41 + 2 * q, 36 + q))
    for k in range(8): I("v_mul_f32 v%d, v%d, v%d" % (24 + k, 24 + k, 40 + k))
    for q in range(4): rnd_pair(24 + 2 * q, 25 + 2 * q, 24 + 2 * q, 25 + 2 * q, 32)
    I("v_add_f32 v24, v24, v25\nv_add_f32 v26, v26, v27\nv_add_f32 v28, v28, v29\nv_add_f32 v30, v30, v31")
    I("v_add_f32 v24, v24, v26\nv_add_f32 v28, v28, v30\nv_add_f32 v24, v24, v28")
    wave_reduce("v_add_f32", 24, 25)
    rnd_pair(24, 25, 24, 24, 26)
    I("v_mul_f32 v24, 0x%08x, v24" % f2u(-1.4426950408889634))
    I("v_exp_f32 v24, v24\nv_add_f32 v24, 1.0, v24\nv_rcp_f32 v24, v24")
    rnd_pair(50, 25, 24, 24, 26)
    I("v_sub_f32 v24, 1.0, v50")
    rnd_pair(51, 25, 24, 24, 26)
    STAMP_(4)
    C("q gather")
    wait_flag(4, FO(F_T1), 256, 26)
    I("s_lshl_b32 s10, s5, 3\ns_add_u32 s10, s10, s4\ns_lshl_b32 s10, s10, 11\ns_add_u32 s10, s10, %d" % QBUF)
    I("v_lshlrev_b32 v14, 4, v0")
    STAMP_(5)
    def iss():
        I("buffer_load_dwordx4 v[16:19], v14, s[60:63], s10 offen @LD@")
        I("buffer_load_dwordx4 v[20:23], v14, s[60:63], s10 offen offset:1024 @LD@")
    poll(iss, [17, 19, 21, 23], 26, 27, dual=(['s10'] if 'q' in lh else None))
    if cfg.stamps:
        I("s_sub_u32 s86, %d, s45\ns_mov_b32 s87, 0" % (cfg.maxpoll + 1))
    I("v_lshlrev_b32 v15, 3, v0\nv_add_u32 v15, %d, v15" % QL)
    I("ds_write2_b32 v15, v16, v18 offset0:0 offset1:1")
    I("ds_write2_b32 v15, v20, v22 offset0:128 offset1:129")
    set_flag_add(4, FO(F_Q), 5)
    STAMP_(6)
    if cfg.wo_by == 'S0':
        wo_tile('L_s0_wo')
        L('L_s0_wo')
        set_flag_add(4, FO(F_WO), 5)
    C("MLP partial gather (owners)")
    I("s_cmp_ge_u32 s7, 28\ns_cbranch_scc1 L_s0_nomlp")
    wait_flag(4, FO(F_T2), 256, 26)
    I("s_mul_i32 s10, s4, 28\ns_add_u32 s10, s10, s7\ns_lshl_b32 s10, s10, 11\ns_add_u32 s10, s10, %d" % MBUF)
    I("v_lshlrev_b32 v14, 4, v0")
    def iss():
        I("buffer_load_dwordx4 v[16:19], v14, s[60:63], s10 offen @LD@")
        I("buffer_load_dwordx4 v[20:23], v14, s[60:63], s10 offen offset:1024 @LD@")
    poll(iss, [17, 19, 21, 23], 26, 27)
    I("v_add_f32 v16, v16, v20\nv_add_f32 v18, v18, v22")
    def red8(v, t):
        I("v_add_f32_dpp v%d, v%d, v%d row_ror:8 row_mask:0xf bank_mask:0xf" % (v, v, v))
        for sw in ("v_permlane16_swap_b32", "v_permlane32_swap_b32"):
            I("v_mov_b32 v%d, v%d" % (t, v)); I("%s v%d, v%d" % (sw, v, t)); I("v_add_f32 v%d, v%d, v%d" % (v, v, t))
    red8(16, 24); red8(18, 25)
    rnd_pair(16, 18, 16, 18, 26)
    I("v_lshlrev_b32 v24, 16, v52\nv_and_b32 v25, 0xffff0000, v52")
    I("v_add_f32 v16, v16, v24\nv_add_f32 v18, v18, v25")
    rnd_pair(16, 18, 16, 18, 26)
    I("v_mul_f32 v16, v16, v51\nv_mul_f32 v18, v18, v51")
    rnd_pair(53, 54, 16, 18, 26)
    L("L_s0_nomlp")
    STAMP_(7)
    I("s_branch L_outproj")

    SEC("s1start")
    L("L_s1")
    code_prefetch()
    start_sync()
    if cfg.local:
        C("publish this workgroup's die id")
    if cfg.local:
        I("s_getreg_b32 s67, hwreg(HW_REG_XCC_ID)")
    if cfg.local:
        I("v_mov_b32 v13, %d\nv_mov_b32 v18, 0\nv_cmp_eq_u32 vcc, 0, v0\nv_cndmask_b32 v18, v13, v18, vcc" % OOB)
    if cfg.local:
        I("s_lshl_b32 s10, s8, 9\ns_lshl_b32 s11, s9, 3\ns_add_u32 s11, s11, s10\ns_add_u32 s11, s11, %d" % XBUF)
    I("s_waitcnt lgkmcnt(0)")
    I("s_mul_i32 s44, s44, 1664525\ns_add_u32 s44, s44, 1013904223")
    if cfg.local:
        I("v_mov_b32 v16, s67\nv_mov_b32 v17, s44")
    if cfg.local:
        I("buffer_store_dwordx2 v[16:17], v18, s[60:63], s11 offen @ST@")
    if cfg.late_win:
        C("the first workgroup of each die group announces its start")
        I("s_cmp_eq_u32 s9, 0\ns_cbranch_scc0 L_s1_nolead")
        I("v_mov_b32 v13, %d\nv_mov_b32 v18, 0\nv_cmp_eq_u32 vcc, 0, v0\nv_cndmask_b32 v18, v13, v18, vcc" % OOB)
        I("s_lshl_b32 s11, s8, 7\ns_add_u32 s11, s11, %d\nv_mov_b32 v16, s44\nv_mov_b32 v17, s44" % TBUF)
        I("buffer_store_dwordx2 v[16:17], v18, s[60:63], s11 offen @ST@")
        L("L_s1_nolead")
    start_bar()
    I("s_branch L_s1_main"); SEC("s1main"); L("L_s1_main")
    if cfg.late_win:
        C("a workgroup that already sees several other groups' announcements started late and gets a wider load window")
        I("v_mov_b32 v13, %d\nv_lshlrev_b32 v19, 7, v0\nv_cmp_gt_u32 vcc, 8, v0\nv_cndmask_b32 v19, v13, v19, vcc" % OOB)
        I("s_mov_b32 s11, %d" % TBUF)
        I("buffer_load_dwordx2 v[20:21], v19, s[60:63], s11 offen @LD@")
        I("s_waitcnt vmcnt(0)")
        I("v_cmp_eq_u32 vcc, s44, v21")
        I("s_and_b32 s10, vcc_lo, 0xff\ns_bcnt1_i32_b32 s10, s10\ns_cmp_ge_u32 s10, %d\ns_cbranch_scc0 L_s1_early" % cfg.late_cnt)
        set_flag_add(4, FO(F_LATE), 5)
        L("L_s1_early")
        if cfg.stamps: I("s_mov_b32 s86, s10\ns_mov_b32 s87, 0")
    if cfg.die_by == 'S1':
        die_check("a")
        STAMP_(7)
    I("s_cmp_ge_u32 s9, 28\ns_cbranch_scc1 L_s1_none")
    C("M2: w2 tile [112 rows x 32 columns]; s12 = k range (0..15), s13 = column tile (0..13)")
    I("s_cmp_ge_u32 s9, 14\ns_cselect_b32 s12, 1, 0\ns_mul_i32 s13, s12, 14\ns_sub_u32 s13, s9, s13\ns_lshl_b32 s11, s8, 1\ns_add_u32 s12, s12, s11")
    I("s_mov_b32 s68, s12\ns_mov_b32 s69, s13")
    I("s_mul_i32 s10, s12, %d\ns_lshl_b32 s11, s13, 6\ns_add_u32 s10, s10, s11" % (112 * 896))
    I("s_sub_u32 s11, %d, s10" % (1792 * 896))
    srd_add(48, 32, 33, "s10", "s11")
    I("v_lshrrev_b32 v9, 2, v0\nv_and_b32 v10, 3, v0\nv_lshlrev_b32 v10, 4, v10")
    I("v_mul_u32_u24 v11, 896, v9\nv_add_u32 v11, v11, v10")
    if cfg.w2_trig: wait_flag(4, FO(eval(cfg.w2_trig)), 256, 26)
    I("s_mov_b32 s12, 0\ns_mov_b32 m0, %d" % W2T)
    for i in range(7):
        if i >= cfg.w2_win: I("s_waitcnt vmcnt(%d)" % (cfg.w2_win - 1))
        I("buffer_load_dwordx4 v11, s[48:51], s12 offen%s lds" % cfg.nt_w)
        if i < 6: I("s_add_u32 m0, m0, 1024\ns_add_u32 s12, s12, %d" % (16 * 896))
    I("s_waitcnt vmcnt(0) lgkmcnt(0)")
    I("v_lshrrev_b32 v15, 2, v2\nv_lshl_add_u32 v15, v3, 3, v15\nv_lshlrev_b32 v15, 6, v15\nv_add_u32 v15, v15, v7\nv_add_u32 v15, %d, v15" % W2T)
    I("v_and_b32 v12, 1, v3\nv_lshrrev_b32 v14, 2, v2\nv_lshl_add_u32 v14, v12, 3, v14\nv_lshlrev_b32 v14, 6, v14\nv_add_u32 v14, v14, v7\nv_add_u32 v14, %d, v14" % W2T)
    for t in range(4):
        for ct in range(2):
            r = 160 + 8 * t + 4 * ct
            a_ = 15 if t < 3 else 14
            I("ds_read_b64_tr_b16 v[%d:%d], v%d offset:%d" % (r, r + 1, a_, 2048 * t + 32 * ct))
            I("ds_read_b64_tr_b16 v[%d:%d], v%d offset:%d" % (r + 2, r + 3, a_, 2048 * t + 32 * ct + 256))
    I("s_waitcnt lgkmcnt(0)")
    STAMP_(2)
    wait_flag(4, FO(eval(cfg.h_trig)), 256, 26)
    STAMP_(3)
    I("v_mov_b32 v13, %d" % OOB)
    I("v_lshrrev_b32 v9, 3, v0\nv_and_b32 v10, 7, v0\nv_mul_u32_u24 v14, 7168, v9\nv_lshl_add_u32 v14, v10, 4, v14")
    I("v_cmp_gt_u32 vcc, 4, v10\nv_cndmask_b32 v12, v13, v14, vcc")
    I("s_mul_i32 s10, s68, 448\ns_add_u32 s10, s10, %d" % HBUF)
    I("s_mov_b32 s14, 0x0f0f0f0f\ns_mov_b32 s15, 0x0f0f0f0f")
    def iss():
        for i in range(3):
            r = 64 + 4 * i
            I("buffer_load_dwordx4 v[%d:%d], v14, s[60:63], s10 offen offset:%d @LD@" % (r, r + 3, 128 * i))
        I("buffer_load_dwordx4 v[76:79], v12, s[60:63], s10 offen offset:384 @LD@")
    lp = lab("pl"); dn = lab("pld")
    I("s_mov_b32 s45, %d" % cfg.maxpoll)
    dual_init(['s10'] if 'h' in lh else None)
    L(lp)
    iss()
    I("s_waitcnt vmcnt(0)")
    I("v_mov_b32 v28, s44")
    I("v_cndmask_b32 v77, v28, v77, s[14:15]\nv_cndmask_b32 v79, v28, v79, s[14:15]")
    check_tags([65, 67, 69, 71, 73, 75, 77, 79], 26, 27)
    I("s_cbranch_scc1 %s" % dn)
    if cfg.backoff: I("s_sleep %d" % cfg.backoff)
    I("s_sub_u32 s45, s45, 1")
    dual_next(['s10'] if 'h' in lh else None)
    I("s_cmp_lg_u32 s45, 0\ns_cbranch_scc1 %s" % lp)
    L(dn)
    STAMP_(4)
    I("v_mul_u32_u24 v15, 272, v9\nv_lshl_add_u32 v15, v10, 3, v15\nv_add_u32 v15, %d, v15" % HL)
    for i in range(4):
        I("ds_write2_b32 v15, v%d, v%d offset0:%d offset1:%d" % (64 + 4 * i, 64 + 4 * i + 2, 16 * i, 16 * i + 1))
    I("v_and_b32 v15, 7, v2\nv_mul_u32_u24 v15, 272, v15\nv_lshl_add_u32 v15, v3, 4, v15\nv_add_u32 v15, %d, v15" % HL)
    I("s_waitcnt lgkmcnt(0)")
    for t in range(4):
        I("ds_read_b128 v[%d:%d], v15 offset:%d" % (128 + 4 * t, 128 + 4 * t + 3, 64 * t))
    I("s_waitcnt lgkmcnt(0)")
    for t in range(4):
        for ct in range(2):
            d = 16 + 4 * ct
            c = "0" if t == 0 else "v[%d:%d]" % (d, d + 3)
            r = 160 + 8 * t + 4 * ct
            I("v_mfma_f32_16x16x32_bf16 v[%d:%d], v[%d:%d], v[%d:%d], %s" % (d, d + 3, 128 + 4 * t, 128 + 4 * t + 3, r, r + 3, c))
    I("v_and_b32 v14, 1, v3\nv_mul_u32_u24 v14, %d, v14\nv_lshrrev_b32 v16 + 0, 1, v3" .replace("v16 + 0", "v24") % (4 * 28 * 2048))
    I("v_lshl_add_u32 v14, v24, 11, v14\nv_lshl_add_u32 v14, v2, 3, v14")
    I("s_lshl_b32 s10, s69, 12\ns_lshl_b32 s11, s68, 7\ns_add_u32 s10, s10, s11\ns_add_u32 s10, s10, %d" % MBUF)
    I("s_mov_b32 s48, 0\ns_mov_b32 s49, -1")
    for r in range(4):
        I("v_mov_b32 v%d, s44" % (33 + 2 * r))
        I("v_cndmask_b32 v%d, v%d, v%d, s[48:49]" % (32 + 2 * r, 16 + r, 20 + r))
    for r in range(4):
        I("s_add_u32 s11, s10, %d" % (r * 28 * 2048))
        I("buffer_store_dwordx2 v[%d:%d], v14, s[60:63], s11 offen @ST@" % (32 + 2 * r, 33 + 2 * r))
    STAMP_(5)
    L("L_s1_none")
    if cfg.wo_by == 'S1':
        wo_tile('L_s1_wo')
        L('L_s1_wo')
        set_flag_add(4, FO(F_WO), 5)
        STAMP_(6)
    I("s_branch L_outproj")

    SEC("s3start")
    L("L_s3")
    C("wave 7: x -> LDS, then the wo tile (128 rows x 64 columns; batch b < 7 takes column block b)")
    I("v_lshlrev_b32 v9, 4, v0\ns_mov_b32 m0, %d\ns_mov_b32 s12, 0" % XL)
    start_sync()
    srd(48, 16, 17, "7168")
    if cfg.x_late: start_bar()
    for i in range(7):
        if i == 4: I("s_mov_b32 m0, %d\ns_mov_b32 s12, 4096" % (XL + 4096))
        I("buffer_load_dwordx4 v9, s[48:51], s12 offen offset:%d lds" % ((i % 4) * 1024))
    if not cfg.x_late: start_bar()
    I("s_branch L_s3_main"); SEC("s3main"); L("L_s3_main")
    I("s_waitcnt vmcnt(0)")
    set_flag_add(4, FO(F_X), 5)
    STAMP_(2)
    I("s_waitcnt lgkmcnt(0)")
    I("s_mul_i32 s44, s44, 1664525\ns_add_u32 s44, s44, 1013904223")
    if cfg.wo_by == 'S3': wo_tile('L_s3_fin')
    L("L_s3_fin")
    if cfg.wo_by == 'S3': set_flag_add(4, FO(F_WO), 5)
    I("s_branch L_softmax")
    SEC("s2start")
    L("L_s2_pre")
    C("wave 6: zero flags, w1 tile")
    I("v_lshlrev_b32 v9, 2, v0\nv_add_u32 v9, %d, v9\nv_mov_b32 v10, 0" % FLG)
    I("s_mov_b64 exec, 0xffff\nds_write_b32 v9, v10\ns_mov_b64 exec, -1")
    I("v_lshrrev_b32 v9, 1, v0\nv_and_b32 v10, 1, v0\nv_lshlrev_b32 v10, 4, v10")
    I("v_mul_u32_u24 v14, 3584, v9\nv_add_u32 v14, v14, v10")
    I("v_lshlrev_b32 v15, 3, v3")
    I("s_lshr_b32 s10, s9, 1\ns_mul_i32 s11, s8, 14\ns_add_u32 s10, s10, s11")
    I("s_mov_b32 s69, s10")
    I("s_lshl_b32 s10, s10, 5\ns_sub_u32 s11, %d, s10" % (448 * 3584))
    I("s_mov_b32 s12, 0\ns_mov_b32 m0, %d" % W1T)
    start_wait()
    I("s_bitcmp0_b32 s9, 0\ns_cbranch_scc1 L_s2_nom1\ns_cmp_ge_u32 s9, 28\ns_cbranch_scc1 L_s2_nom1")
    srd_add(56, 28, 29, "s10", "s11")
    dma_loop(14, 14, 56, 32 * 3584, cfg.nt_w)
    srd(64, 30, 31, "3584")
    I("buffer_load_dwordx2 v[24:25], v15, s[64:67], s10 offen")
    L("L_s2_nom1")
    start_ws()
    start_bar()
    I("s_branch L_s2_main"); SEC("s2main"); L("L_s2_main")
    I("s_waitcnt lgkmcnt(0)")
    I("s_mul_i32 s44, s44, 1664525\ns_add_u32 s44, s44, 1013904223")
    I("s_bitcmp0_b32 s9, 0\ns_cbranch_scc1 L_softmax\ns_cmp_ge_u32 s9, 28\ns_cbranch_scc1 L_softmax")
    wait_flag(4, FO(F_X), 1, 26)
    C("LayerNorm (wave 6, M1 workgroups)")
    I("v_lshrrev_b32 v9, 3, v0\nv_and_b32 v10, 7, v0\nv_lshlrev_b32 v10, 4, v10")
    I("v_mul_u32_u24 v11, 896, v9\nv_add_u32 v11, v11, v10\nv_add_u32 v11, %d, v11" % XL)
    for i in range(7):
        I("ds_read_b128 v[%d:%d], v11 offset:%d" % (64 + 4 * i, 64 + 4 * i + 3, 128 * i))
    I("v_mul_u32_u24 v12, 912, v9\nv_add_u32 v12, v12, v10\nv_add_u32 v12, %d, v12" % YL)
    I("s_waitcnt lgkmcnt(0)")
    set_flag_add(4, FO(F_Y), 5)
    F = 128
    for k in range(28):
        I("v_lshlrev_b32 v%d, 16, v%d\nv_and_b32 v%d, 0xffff0000, v%d" % (F + 2 * k, 64 + k, F + 2 * k + 1, 64 + k))
    I("v_pk_add_f32 v[16:17], v[%d:%d], v[%d:%d]" % (F, F + 1, F + 2, F + 3))
    for k in range(2, 28):
        I("v_pk_add_f32 v[16:17], v[16:17], v[%d:%d]" % (F + 2 * k, F + 2 * k + 1))
    I("v_add_f32 v16, v16, v17")
    def red_p(v):
        for mod in ("quad_perm:[1,0,3,2]", "quad_perm:[2,3,0,1]", "row_half_mirror"):
            I("v_add_f32_dpp v%d, v%d, v%d %s row_mask:0xf bank_mask:0xf" % (v, v, v, mod))
    red_p(16)
    I("v_mul_f32 v16, 0x%08x, v16" % f2u(1.0 / 448))
    rnd_pair(18, 19, 16, 16, 17)
    I("v_sub_f32 v20, v16, v18")
    I("v_sub_f32 v18, 0, v18\nv_mov_b32 v19, v18")
    for k in range(28):
        I("v_pk_add_f32 v[%d:%d], v[%d:%d], v[18:19]" % (F + 2 * k, F + 2 * k + 1, F + 2 * k, F + 2 * k + 1))
    I("v_pk_mul_f32 v[16:17], v[%d:%d], v[%d:%d]" % (F, F + 1, F, F + 1))
    for k in range(1, 28):
        I("v_pk_fma_f32 v[16:17], v[%d:%d], v[%d:%d], v[16:17]" % (F + 2 * k, F + 2 * k + 1, F + 2 * k, F + 2 * k + 1))
    I("v_add_f32 v16, v16, v17")
    red_p(16)
    I("v_mul_f32 v16, 0x%08x, v16" % f2u(1.0 / 448))
    I("v_fma_f32 v16, -v20, v20, v16\nv_max_f32 v16, 0, v16")
    rnd_pair(16, 17, 16, 16, 21)
    I("v_add_f32 v16, 0x%08x, v16" % f2u(1e-5))
    rnd_pair(16, 17, 16, 16, 21)
    I("v_sqrt_f32 v16, v16")
    rnd_pair(16, 17, 16, 16, 21)
    I("v_rcp_f32 v16, v16")
    I("v_mov_b32 v17, v16")
    for k in range(28):
        I("v_pk_mul_f32 v[%d:%d], v[%d:%d], v[16:17]" % (F + 2 * k, F + 2 * k + 1, F + 2 * k, F + 2 * k + 1))
    for k in range(28):
        I("v_cvt_pk_bf16_f32 v%d, v%d, v%d" % (64 + k, F + 2 * k, F + 2 * k + 1))
    for i in range(7):
        I("ds_write_b128 v12, v[%d:%d] offset:%d" % (64 + 4 * i, 64 + 4 * i + 3, 128 * i))
    STAMP_(2)
    C("M1: h tile")
    I("s_waitcnt vmcnt(0) lgkmcnt(0)")
    I("v_mov_b32 v13, %d" % OOB)
    I("v_and_b32 v15, 7, v2\nv_mul_u32_u24 v15, 912, v15\nv_lshl_add_u32 v15, v3, 4, v15\nv_add_u32 v15, %d, v15" % YL)
    for t in range(14):
        I("ds_read_b128 v[%d:%d], v15 offset:%d" % (XF + 4 * t, XF + 4 * t + 3, 64 * t))
    I("v_add_u32 v15, %d, v6" % W1T)
    for t in range(14):
        I("ds_read_b64_tr_b16 v[%d:%d], v15 offset:%d" % (AF + 4 * t, AF + 4 * t + 1, 1024 * t))
        I("ds_read_b64_tr_b16 v[%d:%d], v15 offset:%d" % (AF + 4 * t + 2, AF + 4 * t + 3, 1024 * t + 128))
    I("s_waitcnt lgkmcnt(0)")
    for t in range(14):
        c = "0" if t == 0 else "v[16:19]"
        I("v_mfma_f32_16x16x32_bf16 v[16:19], v[%d:%d], v[%d:%d], %s" % (AF + 4 * t, AF + 4 * t + 3, XF + 4 * t, XF + 4 * t + 3, c))
    rnd_pair(16, 17, 16, 17, 26)
    rnd_pair(18, 19, 18, 19, 27)
    I("v_lshlrev_b32 v28, 16, v24\nv_and_b32 v29, 0xffff0000, v24\nv_lshlrev_b32 v30, 16, v25\nv_and_b32 v31, 0xffff0000, v25")
    for r in range(4): I("v_add_f32 v%d, v%d, v%d" % (16 + r, 16 + r, 28 + r))
    rnd_pair(16, 17, 16, 17, 26)
    rnd_pair(18, 19, 18, 19, 27)
    k0 = -2.0 * 0.7978845608028654 * 1.4426950408889634
    k1 = k0 * 0.044715
    I("s_mov_b32 s10, 0x%08x\ns_mov_b32 s11, 0x%08x" % (f2u(k0), f2u(k1)))
    I("v_mov_b32 v32, s10")
    for r in range(4):
        I("v_mul_f32 v%d, v%d, v%d" % (28 + r, 16 + r, 16 + r))
        I("v_fma_f32 v%d, v%d, s11, v32" % (28 + r, 28 + r))
        I("v_mul_f32 v%d, v%d, v%d" % (28 + r, 28 + r, 16 + r))
    for r in range(4): I("v_exp_f32 v%d, v%d" % (28 + r, 28 + r))
    for r in range(4): I("v_add_f32 v%d, 1.0, v%d" % (28 + r, 28 + r))
    for r in range(4): I("v_rcp_f32 v%d, v%d" % (28 + r, 28 + r))
    for r in range(4): I("v_mul_f32 v%d, v%d, v%d" % (16 + r, 16 + r, 28 + r))
    I("v_cvt_pk_bf16_f32 v20, v16, v17\nv_cvt_pk_bf16_f32 v21, v18, v19")
    I("v_lshlrev_b32 v14, 5, v2\nv_lshl_add_u32 v14, v3, 3, v14\nv_add_u32 v14, %d, v14" % SG)
    I("ds_write_b64 v14, v[20:21]")
    I("v_lshlrev_b32 v14, 3, v0\nv_add_u32 v14, %d, v14" % SG)
    I("ds_read_b64 v[24:25], v14")
    I("v_lshrrev_b32 v14, 2, v0\nv_mul_u32_u24 v14, 7168, v14\nv_and_b32 v15, 3, v0\nv_lshl_add_u32 v14, v15, 4, v14\nv_cmp_gt_u32 vcc, 32, v0\nv_cndmask_b32 v14, v13, v14, vcc")
    I("s_lshl_b32 s10, s69, 6\ns_add_u32 s10, s10, %d" % HBUF)
    I("v_mov_b32 v21, s44\nv_mov_b32 v23, s44")
    I("s_waitcnt lgkmcnt(0)")
    I("v_mov_b32 v20, v24\nv_mov_b32 v22, v25")
    I("buffer_store_dwordx4 v[20:23], v14, s[60:63], s10 offen @STAh@")
    if cfg.qh_cond: sk_ = if_not_local(26)
    I("s_add_u32 s11, s10, %d" % DUP)
    I("buffer_store_dwordx4 v[20:23], v14, s[60:63], s11 offen @ST@")
    if cfg.qh_cond: L(sk_)
    STAMP_(6)
    L("L_softmax")
    C("softmax for head (wave-6); wave 6 gathers the scores and hands the raw words to wave 7 through LDS")
    I("v_lshlrev_b32 v15, 4, v0\nv_add_u32 v15, %d, v15" % SG)
    I("s_cmp_eq_u32 s3, 6\ns_cbranch_scc0 L_sm_w7")
    wait_flag(4, FO(F_T2), 256, 26)
    STAMP_(3)
    I("s_lshl_b32 s10, s4, 3\ns_add_u32 s10, s10, s5\ns_lshl_b32 s10, s10, 13\ns_add_u32 s10, s10, %d\ns_add_u32 s11, s10, 4096" % SBUF)
    I("v_lshlrev_b32 v14, 4, v0")
    def iss():
        for i in range(8):
            I("buffer_load_dwordx4 v[%d:%d], v14, s[60:63], s%d offen offset:%d @LD@" % (64 + 4 * i, 64 + 4 * i + 3, 10 + i // 4, (i % 4) * 1024))
    tags = []
    for k in range(8): tags += [64 + 4 * k + 1, 64 + 4 * k + 3]
    poll(iss, tags, 26, 27, after_first=lambda: (STAMP_(7), set_flag_add(4, FO(F_SP), 5)), dual=(['s10', 's11'] if 's' in lh else None))
    if cfg.stamps:
        I("s_sub_u32 s86, %d, s45\ns_mov_b32 s87, 0" % (cfg.maxpoll + 1))
    for i in range(8):
        I("v_mov_b32 v%d, v%d\nv_mov_b32 v%d, v%d" % (96 + 2 * i, 64 + 4 * i, 96 + 2 * i + 1, 64 + 4 * i + 2))
    for q in range(4):
        I("ds_write_b128 v15, v[%d:%d] offset:%d" % (96 + 4 * q, 96 + 4 * q + 3, 1024 * q))
    set_flag_add(4, FO(F_G), 5)
    I("s_branch L_sm_go")
    L("L_sm_w7")
    if cfg.local:
        C("wave 7 checks whether the hand-off group sits on one die")
        wait_flag(4, FO(F_T1), 256, 26)
        if cfg.die_by == 'S3': die_check("a")
    if 's' in lh:
        C("write-through copy of this workgroup's scores (unless the group is on one die)")
        skw7 = if_not_local(26)
        wait_flag(4, FO(F_S), 256, 26)
        I("v_lshlrev_b32 v9, 2, v0\nv_add_u32 v9, %d, v9" % SL)
        for w in range(4): I("ds_read_b32 v%d, v9 offset:%d" % (32 + 2 * w, 256 * w))
        I("v_lshlrev_b32 v10, 11, v3\nv_lshl_add_u32 v10, v2, 3, v10")
        I("s_lshl_b32 s10, s4, 3\ns_add_u32 s10, s10, s5\ns_lshl_b32 s10, s10, 13\ns_lshl_b32 s11, s6, 9\ns_add_u32 s10, s10, s11\ns_add_u32 s10, s10, %d" % (SBUF + DUP))
        for w in range(4): I("v_mov_b32 v%d, s44" % (33 + 2 * w))
        I("s_waitcnt lgkmcnt(0)")
        for w in range(4):
            I("buffer_store_dwordx2 v[%d:%d], v10, s[60:63], s10 offen offset:%d @ST@" % (32 + 2 * w, 33 + 2 * w, 128 * w))
        L(skw7)
    wait_flag(4, FO(F_G), 1, 26)
    for q in range(4):
        I("ds_read_b128 v[%d:%d], v15 offset:%d" % (96 + 4 * q, 96 + 4 * q + 3, 1024 * q))
    I("s_waitcnt lgkmcnt(0)")
    L("L_sm_go")
    STAMP_(4)
    I("s_mov_b32 s12, 0x01000c0c\ns_cmp_eq_u32 s3, 6\ns_cselect_b32 s12, s12, 0x03020c0c")
    F = 128
    for i in range(16):
        I("v_perm_b32 v%d, v%d, v%d, s12" % (F + i, 96 + i, 96 + i))
    I("v_max3_f32 v16, v%d, v%d, v%d" % (F, F + 1, F + 2))
    for k in range(3, 15, 2): I("v_max3_f32 v16, v16, v%d, v%d" % (F + k, F + k + 1))
    I("v_max_f32 v16, v16, v%d" % (F + 15))
    wave_reduce("v_max_f32", 16, 17)
    cexp = 1.4426950408889634 / 16.0
    I("s_mov_b32 s13, 0x%08x" % f2u(cexp))
    I("v_mul_f32 v16, s13, v16\nv_sub_f32 v16, 0, v16")
    for k in range(16): I("v_fma_f32 v%d, v%d, s13, v16" % (F + k, F + k))
    for k in range(16): I("v_exp_f32 v%d, v%d" % (F + k, F + k))
    I("v_add_f32 v17, v%d, v%d" % (F, F + 1))
    I("v_add_f32 v18, v%d, v%d" % (F + 2, F + 3))
    for k in range(4, 16, 2):
        I("v_add_f32 v17, v17, v%d\nv_add_f32 v18, v18, v%d" % (F + k, F + k + 1))
    I("v_add_f32 v17, v17, v18")
    wave_reduce("v_add_f32", 17, 18)
    I("v_rcp_f32 v17, v17")
    for k in range(16): I("v_mul_f32 v%d, v%d, v17" % (F + k, F + k))
    for i in range(8): I("v_cvt_pk_bf16_f32 v%d, v%d, v%d" % (64 + i, F + 2 * i, F + 2 * i + 1))
    I("s_sub_u32 s12, s3, 6\ns_lshl_b32 s12, s12, 11\ns_add_u32 s12, s12, %d" % PL)
    I("v_lshlrev_b32 v15, 2, v0\nv_add_u32 v15, s12, v15")
    for i in range(8): I("ds_write_b32 v15, v%d offset:%d" % (64 + i, 256 * i))
    set_flag_add(4, FO(F_P), 5)
    STAMP_(5)

    L("L_outproj")
    BF = 128
    I("s_cmp_eq_u32 s3, 5\ns_cbranch_scc1 L_s1_tail")
    I("s_cmp_ge_u32 s3, 6\ns_cbranch_scc1 L_s23_end")
    C("wave 4: preload wo fragments for four 16-column tiles")
    wait_flag(4, FO(F_WO), 1, 26)
    I("v_lshrrev_b32 v8, 2, v2\nv_lshl_add_u32 v8, v3, 3, v8\nv_lshlrev_b32 v8, 7, v8\nv_add_u32 v8, v8, v7")
    if WOT: I("v_add_u32 v8, %d, v8" % WOT)
    for t in range(4):
        for tt in range(4):
            r = BF + 4 * (t * 4 + tt)
            I("ds_read_b64_tr_b16 v[%d:%d], v8 offset:%d" % (r, r + 1, t * 4096 + tt * 32))
            I("ds_read_b64_tr_b16 v[%d:%d], v8 offset:%d" % (r + 2, r + 3, t * 4096 + tt * 32 + 512))
    I("v_mov_b32 v13, %d" % OOB)
    I("v_lshlrev_b32 v10, 4, v0")
    I("s_lshl_b32 s10, s7, 12\ns_add_u32 s10, s10, %d" % OBUF)
    I("s_lshl_b32 s11, s4, 9\nv_add_u32 v11, s11, v10\nv_cmp_gt_u32 vcc, 32, v0\nv_cndmask_b32 v11, v13, v11, vcc")
    I("v_and_b32 v12, 31, v0\nv_lshlrev_b32 v12, 4, v12\nv_add_u32 v12, %d, v12" % OA)
    I("v_lshrrev_b32 v9, 5, v0\nv_mul_u32_u24 v9, 272, v9\nv_and_b32 v15, 31, v0\nv_lshl_add_u32 v9, v15, 3, v9\nv_add_u32 v9, %d, v9" % OG)
    I("v_and_b32 v15, 7, v2\nv_mul_u32_u24 v15, 272, v15\nv_lshl_add_u32 v15, v3, 4, v15\nv_add_u32 v15, %d, v15" % OG)
    I("v_and_b32 v14, 1, v3\nv_mul_u32_u24 v14, %d, v14\nv_lshrrev_b32 v16, 1, v3\nv_lshl_add_u32 v14, v16, 12, v14\nv_lshl_add_u32 v14, v2, 3, v14" % (4 * 28 * 4096))
    I("s_lshl_b32 s11, s4, 14\ns_lshl_b32 s13, s7, 7\ns_add_u32 s11, s11, s13\ns_add_u32 s11, s11, %d" % PBUF)
    I("s_mov_b32 s48, 0\ns_mov_b32 s49, -1")
    for k in range(8): I("v_mov_b32 v%d, s44" % (193 + 2 * k))
    I("v_mov_b32 v57, s44\nv_mov_b32 v59, s44")
    I("v_mov_b32 v60, v50\nv_mov_b32 v61, v53\nv_mov_b32 v62, v54\nv_mov_b32 v63, 0\nv_lshlrev_b32 v16, 4, v0\nv_add_u32 v16, %d, v16" % FIN)
    I("s_mov_b64 exec, 0xff\nds_write_b128 v16, v[60:63]\ns_mov_b64 exec, -1")
    I("s_waitcnt lgkmcnt(0)")
    STAMP_(9)
    I("s_barrier")
    STAMP_(10)
    C("reduce the four o partials, round, publish")
    for w in range(4):
        I("ds_read_b128 v[%d:%d], v12 offset:%d" % (64 + 4 * w, 64 + 4 * w + 3, 512 * w))
    I("s_waitcnt lgkmcnt(2)")
    I("v_pk_add_f32 v[64:65], v[64:65], v[68:69]\nv_pk_add_f32 v[66:67], v[66:67], v[70:71]")
    I("s_waitcnt lgkmcnt(0)")
    I("v_pk_add_f32 v[72:73], v[72:73], v[76:77]\nv_pk_add_f32 v[74:75], v[74:75], v[78:79]")
    I("v_pk_add_f32 v[64:65], v[64:65], v[72:73]\nv_pk_add_f32 v[66:67], v[66:67], v[74:75]")
    I("v_cvt_pk_bf16_f32 v56, v64, v65\nv_cvt_pk_bf16_f32 v58, v66, v67")
    I("buffer_store_dwordx4 v[56:59], v11, s[60:63], s10 offen @STAo@")
    STAMP_(11)
    I("s_cmp_eq_u32 s4, 7\ns_cbranch_scc1 L_noproj")
    def iss():
        for k in range(4):
            I("buffer_load_dwordx4 v[%d:%d], v10, s[60:63], s10 offen offset:%d @LD@" % (64 + 4 * k, 64 + 4 * k + 3, 1024 * k))
    tags = []
    for k in range(4): tags += [64 + 4 * k + 1, 64 + 4 * k + 3]
    poll(iss, tags, 26, 27, backoff=cfg.tail_backoff, dual=(['s10'] if 'o' in lh else None))
    if not cfg.dbg_start: STAMP_(12)
    for k in range(4):
        I("ds_write2_b32 v9, v%d, v%d offset0:%d offset1:%d" % (64 + 4 * k, 64 + 4 * k + 2, 136 * k, 136 * k + 1) if 136 * k + 1 < 256 else
          "v_add_u32 v9, %d, v9\nds_write2_b32 v9, v%d, v%d offset0:%d offset1:%d" % (544 * 2 if k == 2 else 0, 64 + 4 * k, 64 + 4 * k + 2, 136 * (k - 2), 136 * (k - 2) + 1) if k == 2 else
          "ds_write2_b32 v9, v%d, v%d offset0:%d offset1:%d" % (64 + 4 * k, 64 + 4 * k + 2, 136 * (k - 2), 136 * (k - 2) + 1))
    I("s_waitcnt lgkmcnt(0)")
    for t in range(4):
        I("ds_read_b128 v[%d:%d], v15 offset:%d" % (96 + 4 * t, 96 + 4 * t + 3, 64 * t))
    for t in range(4):
        I("s_waitcnt lgkmcnt(%d)" % (3 - t))
        for tt in range(4):
            r = BF + 4 * (t * 4 + tt); d = 16 + 4 * tt
            c = "0" if t == 0 else "v[%d:%d]" % (d, d + 3)
            I("v_mfma_f32_16x16x32_bf16 v[%d:%d], v[%d:%d], v[%d:%d], %s" % (d, d + 3, 96 + 4 * t, 96 + 4 * t + 3, r, r + 3, c))
    for p in range(2):
        for r in range(4):
            k = p * 4 + r
            I("v_cndmask_b32 v%d, v%d, v%d, s[48:49]" % (192 + 2 * k, 16 + 8 * p + r, 16 + 8 * p + 4 + r))
        for r in range(4):
            k = p * 4 + r
            I("s_add_u32 s13, s11, %d" % (r * 28 * 4096 + p * 2 * 4096))
            I("buffer_store_dwordx2 v[%d:%d], v14, s[60:63], s13 offen @ST@" % (192 + 2 * k, 193 + 2 * k))
    L("L_noproj")
    set_flag_add(4, FO(F_PUB), 5)
    if not cfg.dbg_start: STAMP_(13)
    I("s_branch L_sdone")
    L("L_s1_tail")
    I("v_mov_b32 v13, %d" % OOB)
    if 'o' in lh:
        I("v_lshlrev_b32 v10, 4, v0\ns_lshl_b32 s10, s7, 12\ns_add_u32 s10, s10, %d" % (OBUF + DUP))
        I("s_lshl_b32 s11, s4, 9\nv_add_u32 v11, s11, v10\nv_cmp_gt_u32 vcc, 32, v0\nv_cndmask_b32 v11, v13, v11, vcc")
        I("v_and_b32 v12, 31, v0\nv_lshlrev_b32 v12, 4, v12\nv_add_u32 v12, %d, v12" % OA)
        I("v_mov_b32 v57, s44\nv_mov_b32 v59, s44")
    I("s_mul_i32 s12, s4, 28\ns_add_u32 s12, s12, s7\ns_lshl_b32 s12, s12, 12\ns_add_u32 s12, s12, %d" % PBUF)
    I("v_lshlrev_b32 v14, 4, v0")
    I("v_and_b32 v15, 7, v0\nv_lshlrev_b32 v15, 4, v15\nv_add_u32 v15, %d, v15" % FIN)
    srd(48, 38, 39, "7168")
    I("v_lshlrev_b32 v9, 2, v0\nv_cmp_gt_u32 vcc, 8, v0\nv_cndmask_b32 v9, v13, v9, vcc")
    I("s_mul_i32 s13, s4, 896\ns_lshl_b32 s14, s7, 5\ns_add_u32 s13, s13, s14")
    I("s_waitcnt vmcnt(0) lgkmcnt(0)")
    I("s_barrier")
    if 'o' in lh:
        C("write-through copy of o (unless the group is on one die)")
        sk_ = if_not_local(26)
        for w in range(4):
            I("ds_read_b128 v[%d:%d], v12 offset:%d" % (64 + 4 * w, 64 + 4 * w + 3, 512 * w))
        I("s_waitcnt lgkmcnt(0)")
        I("v_pk_add_f32 v[64:65], v[64:65], v[68:69]\nv_pk_add_f32 v[66:67], v[66:67], v[70:71]")
        I("v_pk_add_f32 v[72:73], v[72:73], v[76:77]\nv_pk_add_f32 v[74:75], v[74:75], v[78:79]")
        I("v_pk_add_f32 v[64:65], v[64:65], v[72:73]\nv_pk_add_f32 v[66:67], v[66:67], v[74:75]")
        I("v_cvt_pk_bf16_f32 v56, v64, v65\nv_cvt_pk_bf16_f32 v58, v66, v67")
        I("buffer_store_dwordx4 v[56:59], v11, s[60:63], s10 offen @ST@")
        I("s_waitcnt vmcnt(0)")
        L(sk_)
    I("s_cmp_ge_u32 s7, 28\ns_cbranch_scc1 L_sdone")
    I("ds_read_b128 v[48:51], v15")
    if cfg.pub_wait: wait_flag(4, FO(F_PUB), 1, 26)
    C("final gather: two register sets polled alternately")
    def iss(base):
        for i in range(4):
            I("buffer_load_dwordx4 v[%d:%d], v14, s[60:63], s12 offen offset:%d @LD@" % (base + 4 * i, base + 4 * i + 3, 1024 * i))
    I("s_mov_b32 s45, %d" % cfg.maxpoll)
    iss(64)
    if cfg.stagger: I("s_sleep %d" % cfg.stagger)
    L("L_fin_loop")
    iss(80)
    I("s_waitcnt vmcnt(4)")
    check_tags([65, 67, 69, 71, 73, 75, 77, 79], 26, 27)
    I("s_cbranch_scc1 L_fin_ok")
    iss(64)
    I("s_waitcnt vmcnt(4)")
    check_tags([81, 83, 85, 87, 89, 91, 93, 95], 26, 27)
    I("s_cbranch_scc1 L_fin_ok1")
    I("s_sub_u32 s45, s45, 1\ns_cmp_lg_u32 s45, 0\ns_cbranch_scc1 L_fin_loop")
    I("s_branch L_fin_ok")
    L("L_fin_ok1")
    I("v_add_f32 v16, v80, v84\nv_add_f32 v18, v82, v86\nv_add_f32 v17, v88, v92\nv_add_f32 v19, v90, v94")
    I("s_branch L_fin_sum")
    L("L_fin_ok")
    I("v_add_f32 v16, v64, v68\nv_add_f32 v18, v66, v70\nv_add_f32 v17, v72, v76\nv_add_f32 v19, v74, v78")
    L("L_fin_sum")
    STAMP_(14)
    I("v_add_f32 v16, v16, v17\nv_add_f32 v18, v18, v19")
    red8(16, 24); red8(18, 25)
    rnd_pair(16, 18, 16, 18, 26)
    I("s_waitcnt lgkmcnt(0)")
    I("v_mul_f32 v16, v16, v48\nv_mul_f32 v18, v18, v48")
    rnd_pair(16, 18, 16, 18, 26)
    I("v_add_f32 v16, v16, v49\nv_add_f32 v18, v18, v50")
    I("v_cvt_pk_bf16_f32 v16, v16, v18")
    I("buffer_store_dword v16, v9, s[48:51], s13 offen")
    C("epoch update by workgroup 0")
    I("s_cmp_eq_u32 s2, 0\ns_cbranch_scc0 L_sdone")
    I("v_mov_b32 v16, s44\nv_mov_b32 v14, %d\nv_cmp_eq_u32 vcc, 0, v0\nv_cndmask_b32 v14, v13, v14, vcc" % EPOCH)
    I("buffer_store_dword v16, v14, s[60:63], 0 offen @ST@")
    I("s_branch L_sdone")
    L("L_s23_end")
    I("s_barrier")
    L("L_sdone")
    STAMP_(15)
    stamps_out()
    L("L_end")
    I("s_endpgm")

    secs = {}; order_seen = []; cur = "entry"; secs[cur] = []; order_seen.append(cur)
    for ln in e.lines:
        if ln.startswith(";@SEC "):
            cur = ln[6:].strip(); secs[cur] = []; order_seen.append(cur)
        else: secs[cur].append(ln)
    first = ["entry", "svc", "s3start", "s2start", "s1start"]
    rest = [x for x in order_seen if x not in first]
    e.lines = []
    for x in first + rest: e.lines += secs[x]
    if cfg.noB:
        def dropB(l):
            if '@ST@' not in l: return False
            if 'q' in cfg.noB and ('v[56:59], v14' in l): return True
            if 'h' in cfg.noB and 'v[20:23], v14' in l: return True
            if 's' in cfg.noB and 'v10, s[60:63], s10 offen offset' in l: return True
            if 'o' in cfg.noB and 'v[56:59], v11' in l: return True
            return False
        e.lines = [l for l in e.lines if not dropB(l)]
    e.lines = [l.replace('@LD@', cfg.ldf).replace('@STAq@', cfg.stl if 'q' in lh else cfg.stf).replace('@STAh@', cfg.stl if 'h' in lh else cfg.stf).replace('@STAs@', cfg.stl if 's' in lh else cfg.stf).replace('@STAo@', cfg.stl if 'o' in lh else cfg.stf).replace('@ST@', cfg.stf).rstrip() for l in e.lines]
    body = e.finalize()
    hdr = open('gated_mix__sliding_block_cached__mixer_channel_mlp__decode.s.ref').read().split('\n')
    head = [l for l in hdr if l.startswith(';') and '@launch' not in l and 'Override launch' not in l]
    txt = "\n".join(head) + "\n; @launch grid=(256,1,1) block=(512,1,1) lds=%d\n" % LDS_SIZE
    txt += '.amdgcn_target "amdgcn-amd-amdhsa--gfx950"\n.text\n.globl %s\n.p2align 8\n.type %s,@function\n%s:\n' % (NAME, NAME, NAME)
    txt += body
    txt += '.section .rodata,"a"\n.p2align 6\n.amdhsa_kernel %s\n' % NAME
    txt += "  .amdhsa_next_free_vgpr 256\n  .amdhsa_next_free_sgpr 102\n  .amdhsa_accum_offset 256\n  .amdhsa_group_segment_fixed_size 0\n  .amdhsa_kernarg_size 112\n  .amdhsa_user_sgpr_count 2\n  .amdhsa_user_sgpr_kernarg_segment_ptr 1\n  .amdhsa_system_sgpr_workgroup_id_x 1\n.end_amdhsa_kernel\n"
    return txt

if __name__ == "__main__":
    cfg = Cfg()
    out = sys.argv[1] if len(sys.argv) > 1 else "gated_mix__sliding_block_cached__mixer_channel_mlp__decode.s"
    for a in sys.argv[2:]:
        k, v = a.split("=")
        setattr(cfg, k, eval(v))
    open(out, "w").write(gen(cfg))
    print("written", out)
```

```python
import sys, struct
from emit import Emitter

NAME = "gated_mix__sliding_block_cached__mixer_channel_mlp__decode_kernel"

WOT  = 0
WQT  = 16384
W1T  = WQT + 14336
W2T  = WQT + 28672
XL   = W2T + 7168
YL   = XL + 7168
QL   = YL + 7296
PL   = QL + 1024
OA   = PL + 4096
HL   = OA + 2048
OG   = HL + 2176
SG   = OG + 2176
SL   = SG + 4096
FIN  = SL + 1024
FLG  = FIN + 128
F_Q, F_Y, F_S, F_P, F_WO, F_T1, F_T2, F_X, F_SP, F_K, F_G, F_LOC, F_LATE, F_PUB = [FLG + 4 * i for i in range(14)]
LDS_SIZE = FLG + 64
EPOCH = 0
QBUF = 4096
HBUF = QBUF + 131072
SBUF = 0x30000
MBUF = 0xB0000
PBUF = 0x120000
OBUF = 0x200000
XBUF = 0x220000
TBUF = 0x228000
STAMP = 0x230000
DUP = 0x400000
WS_RANGE = 0x800000
OOB = 0x7FFF0000

def f2u(x): return struct.unpack('<I', struct.pack('<f', x))[0]

class Cfg:
    wk = 9
    wv = 6
    nt_kv = " nt"
    nt_w = " nt"
    nt_wo = " nt"
    stamps = False
    qpos = 38
    sched = None
    pat = 'VW' * 8 + 'WWV' * 10 + 'V' * 14
    maxpoll = 20001
    prio = 3
    fin_mask = False
    fin_sleep = 0
    out_fl = ''
    pub_wait = True
    stagger = 6
    lh = 'o'
    late_win = 0
    late_slot = 10
    late_cnt = 5
    x_late = False
    dbg_start = False
    hack_nop = False
    local = True
    qh_cond = False
    die_by = 'S3'
    perm = False
    die_tries = 4
    bper = 16
    noB = ''
    free_flag = 'F_G'
    nofree = False
    ldf = 'sc1'
    stf = 'sc1'
    stl = ''
    code_pf = 0
    pf_mask = 31
    pf_skip = 1024
    wo_by = 'S1'
    tq_swap = True
    w2_win = 7
    wo_win = 6
    w2_trig = None
    wo_trig = None
    kflag_slot = 31
    pretouch = False
    tail_backoff = 0
    wo_rot = True
    s0_w = 'after_q'
    mapping = 'ps'
    s0_early_bar = False
    h_trig = 'F_T1'
    wk_pre = 2
    late_tiles = True
    t1 = 20
    t2 = 46
    backoff = 4

def default_sched(cfg):
    s = [('K', n // 8, n % 8) for n in range(32)]
    s += [('V', T, j) for T in range(4) for j in range(8)]
    return s

def gen(cfg):
    lh = cfg.lh if cfg.local else ''
    if cfg.mapping != 'kx': assert 'q' not in lh and 's' not in lh
    cfg.noB = ''.join(c for c in 'qhso' if c not in lh) + cfg.noB
    cfg.local = bool(lh)
    e = Emitter(); I = e.I; L = e.L; C = e.C
    nst = [0]
    def STAMP_(i):
        if cfg.stamps: I("s_memrealtime s[%d:%d]" % (70 + 2 * i, 71 + 2 * i))
    def stamps_out():
        if not cfg.stamps: return
        I("s_waitcnt vmcnt(0) lgkmcnt(0)")
        I("s_lshl_b32 s8, s2, 3\ns_add_u32 s8, s8, s3\ns_lshl_b32 s8, s8, 7\ns_add_u32 s8, s8, %d" % STAMP)
        I("v_mov_b32 v1, 0")
        I("s_mov_b64 exec, 1")
        for k in range(8):
            for q in range(4): I("v_mov_b32 v%d, s%d" % (4 + q, 70 + 4 * k + q))
            I("buffer_store_dwordx4 v[4:7], v1, s[60:63], s8 offen offset:%d" % (16 * k))
            I("s_nop 1")
        I("s_waitcnt vmcnt(0)")
    uid = [0]
    def lab(p):
        uid[0] += 1
        return "L_%s_%d" % (p, uid[0])
    def srd(n, lo, hi, nrec):
        I("s_mov_b32 s%d, s%d\ns_mov_b32 s%d, s%d\ns_mov_b32 s%d, %s\ns_mov_b32 s%d, 0x20000" % (n, lo, n + 1, hi, n + 2, nrec, n + 3))
    def srd_add(n, lo, hi, off_sgpr, nrec):
        I("s_add_u32 s%d, s%d, %s\ns_addc_u32 s%d, s%d, 0\ns_mov_b32 s%d, %s\ns_mov_b32 s%d, 0x20000" % (n, lo, off_sgpr, n + 1, hi, n + 2, nrec, n + 3))
    def wait_flag(addr_v, off, val, tmpv, cmp="ge"):
        lp = lab("fl"); dn = lab("fld")
        I("s_mov_b32 s45, 0x100000")
        L(lp)
        I("ds_read_b32 v%d, v%d offset:%d" % (tmpv, addr_v, off))
        I("s_waitcnt lgkmcnt(0)")
        I("v_readfirstlane_b32 s46, v%d" % tmpv)
        I("s_cmp_ge_u32 s46, %d" % val)
        I("s_cbranch_scc1 %s" % dn)
        I("s_sub_u32 s45, s45, 1")
        I("s_cmp_lg_u32 s45, 0")
        I("s_cbranch_scc1 %s" % lp)
        L(dn)
    def set_flag_add(addr_v, off, onev):
        I("ds_add_u32 v%d, v%d offset:%d" % (addr_v, onev, off))
    def check_tags(tags, vmin, vmax, lanemask=None):
        t = list(tags)
        if len(t) % 2 == 1: t.append(t[-1])
        I("v_min_u32 v%d, v%d, v%d" % (vmin, t[0], t[1]))
        I("v_max_u32 v%d, v%d, v%d" % (vmax, t[0], t[1]))
        for k in range(2, len(t), 2):
            I("v_min3_u32 v%d, v%d, v%d, v%d" % (vmin, vmin, t[k], t[k + 1]))
            I("v_max3_u32 v%d, v%d, v%d, v%d" % (vmax, vmax, t[k], t[k + 1]))
        I("v_cmp_ne_u32 vcc, s44, v%d" % vmin)
        I("v_cmp_ne_u32 s[46:47], s44, v%d" % vmax)
        I("s_or_b64 vcc, vcc, s[46:47]")
        if lanemask: I("s_and_b64 vcc, vcc, %s" % lanemask)
        I("s_cmp_eq_u64 vcc, 0")
    def dual_init(bases):
        if bases: I("s_mov_b32 s64, 0")
    def dual_next(bases):
        if not bases: return
        I("s_and_b32 s65, s45, %d\ns_cmp_eq_u32 s65, 0\ns_cselect_b32 s65, %d, 0\ns_sub_u32 s66, s65, s64\ns_mov_b32 s64, s65" % (cfg.bper - 1, DUP))
        for b_ in bases: I("s_add_u32 %s, %s, s66" % (b_, b_))
    def poll(issue, tags, vmin, vmax, lanemask=None, backoff=cfg.backoff, after_first=None, dual=None):
        lp = lab("pl"); dn = lab("pld")
        I("s_mov_b32 s45, %d" % cfg.maxpoll)
        dual_init(dual)
        if after_first:
            issue(); after_first()
            I("s_branch %s_w" % lp)
        L(lp)
        issue()
        if after_first: L(lp + "_w")
        I("s_waitcnt vmcnt(0)")
        check_tags(tags, vmin, vmax, lanemask)
        I("s_cbranch_scc1 %s" % dn)
        if backoff: I("s_sleep %d" % backoff)
        I("s_sub_u32 s45, s45, 1")
        dual_next(dual)
        I("s_cmp_lg_u32 s45, 0")
        I("s_cbranch_scc1 %s" % lp)
        L(dn)
    def if_not_local(tmpv):
        sk = lab("loc")
        wait_flag(4, FO(F_LOC), 64, tmpv)
        I("s_cmp_ge_u32 s46, 128")
        I("s_cbranch_scc1 %s" % sk)
        return sk
    def rnd_pair(dst_lo, dst_hi, a, b, tmp):
        I("v_cvt_pk_bf16_f32 v%d, v%d, v%d" % (tmp, a, b))
        I("v_lshlrev_b32 v%d, 16, v%d" % (dst_lo, tmp))
        I("v_and_b32 v%d, 0xffff0000, v%d" % (dst_hi, tmp))
    def wave_reduce(op, v, t):
        for mod in ("quad_perm:[1,0,3,2]", "quad_perm:[2,3,0,1]", "row_half_mirror", "row_mirror"):
            I("%s_dpp v%d, v%d, v%d %s row_mask:0xf bank_mask:0xf" % (op, v, v, v, mod))
        for sw in ("v_permlane16_swap_b32", "v_permlane32_swap_b32"):
            I("v_mov_b32 v%d, v%d" % (t, v))
            I("%s v%d, v%d" % (sw, v, t))
            I("%s v%d, v%d, v%d" % (op, v, v, t))

    def tq_calc(dst):
        I("s_lshr_b32 %s, s9, 1" % dst)
        if cfg.tq_swap:
            I("s_and_b32 s46, %s, 6\ns_cmp_eq_u32 s46, 6\ns_cselect_b32 s46, 8, 0\ns_xor_b32 %s, %s, s46" % (dst, dst, dst))

    def wo_tile(skip):
        I("s_cmp_eq_u32 s4, 7\ns_cbranch_scc1 %s" % skip)
        I("s_lshl_b32 s10, s5, 9\ns_lshl_b32 s11, s6, 6\ns_add_u32 s10, s10, s11\ns_mul_i32 s10, s10, 896\ns_lshl_b32 s11, s4, 7\ns_add_u32 s10, s10, s11")
        I("s_sub_u32 s11, %d, s10" % (4096 * 896))
        srd_add(52, 24, 25, "s10", "s11")
        I("v_lshrrev_b32 v9, 3, v0\nv_mul_u32_u24 v9, 896, v9\nv_and_b32 v10, 7, v0\nv_lshl_add_u32 v9, v10, 4, v9")
        if cfg.wo_trig: wait_flag(4, FO(eval(cfg.wo_trig)), 256, 26)
        I("s_mov_b32 m0, %d\ns_mov_b32 s12, 0" % WOT)
        for i in range(16):
            if i >= cfg.wo_win: I("s_waitcnt vmcnt(%d)" % (cfg.wo_win - 1))
            I("buffer_load_dwordx4 v9, s[52:55], s12 offen%s lds" % cfg.nt_wo)
            if i < 15: I("s_add_u32 m0, m0, 1024\ns_add_u32 s12, s12, %d" % (8 * 896 if i != 7 else (256 - 56) * 896))
        I("s_waitcnt vmcnt(0)")

    def dma_loop(n, vreg_, srd_, step, flags, cnt="s13", win=None):
        lp = lab("dma")
        I("s_mov_b32 %s, %d" % (cnt, n))
        L(lp)
        if win: I("s_waitcnt vmcnt(%d)" % (win - 1))
        I("buffer_load_dwordx4 v%d, s[%d:%d], s12 offen%s lds" % (vreg_, srd_, srd_ + 3, flags))
        I("s_add_u32 m0, m0, 1024\ns_add_u32 s12, s12, %d\ns_sub_u32 %s, %s, 1\ns_cmp_lg_u32 %s, 0\ns_cbranch_scc1 %s" % (step, cnt, cnt, cnt, lp))
    def SEC(name): e.lines.append(";@SEC " + name)

    def code_prefetch():
        if not cfg.code_pf: return
        C("a few workgroups pull the kernel's code into L2 (reads only)")
        I("s_and_b32 s10, s9, %d\ns_cmp_eq_u32 s10, %d\ns_cbranch_scc0 L_s1_nopf" % (cfg.pf_mask, cfg.pf_mask))
        I("s_getpc_b64 s[10:11]")
        L("L_pcref")
        I("s_sub_u32 s10, s10, L_pcref-%s\ns_subb_u32 s11, s11, 0" % NAME)
        I("v_lshlrev_b32 v9, 4, v0\nv_add_u32 v9, %d, v9" % cfg.pf_skip)
        for i in range(cfg.code_pf):
            I("global_load_dwordx4 v[64:67], v9, s[10:11]")
            if i < cfg.code_pf - 1: I("v_add_u32 v9, 1024, v9")
        L("L_s1_nopf")

    def die_check(sfx):
        lp = lab("dc"); dn = lab("dcd"); ok = lab("dco")
        I("s_getreg_b32 s67, hwreg(HW_REG_XCC_ID)")
        I("s_lshl_b32 s15, s8, 9\ns_add_u32 s15, s15, %d" % XBUF)
        I("v_mov_b32 v13, %d\nv_lshlrev_b32 v19, 3, v0\nv_cmp_gt_u32 vcc, 32, v0\nv_cndmask_b32 v19, v13, v19, vcc" % OOB)
        I("s_mov_b32 s45, %d" % cfg.die_tries)
        L(lp)
        I("buffer_load_dwordx2 v[20:21], v19, s[60:63], s15 offen @LD@")
        I("s_waitcnt vmcnt(0)")
        I("v_cmp_ne_u32 vcc, s44, v21")
        I("s_cmp_eq_u32 vcc_lo, 0\ns_cbranch_scc1 %s" % ok)
        I("s_sleep 2\ns_sub_u32 s45, s45, 1\ns_cmp_lg_u32 s45, 0\ns_cbranch_scc1 %s" % lp)
        I("s_branch %s" % dn)
        L(ok)
        I("v_cmp_ne_u32 vcc, s67, v20")
        I("s_cmp_eq_u32 vcc_lo, 0\ns_cbranch_scc0 %s" % dn)
        set_flag_add(4, FO(F_LOC), 5)
        L(dn)
        set_flag_add(4, FO(F_LOC), 5)

    I("s_cmp_ge_u32 s2, 256")
    I("s_cbranch_scc1 L_end")
    if cfg.perm:
        I("s_and_b32 s4, s2, 31\ns_lshl_b32 s4, s4, 3\ns_lshr_b32 s2, s2, 5\ns_or_b32 s2, s2, s4")
    I("s_load_dwordx16 s[16:31], s[0:1], 0")
    I("s_load_dwordx8 s[32:39], s[0:1], 64")
    I("s_load_dwordx4 s[40:43], s[0:1], 96")
    if cfg.stamps:
        for k in range(70, 102): I("s_mov_b32 s%d, 0" % k)
    STAMP_(0)
    I("v_lshrrev_b32 v1, 6, v0")
    I("v_and_b32 v0, 63, v0")
    I("v_readfirstlane_b32 s3, v1")
    I("s_lshr_b32 s4, s2, 5")
    if cfg.mapping == "kx":
        I("s_and_b32 s5, s2, 7")
        I("s_bfe_u32 s6, s2, 0x20003")
    else:
        I("s_bfe_u32 s5, s2, 0x30002")
        I("s_and_b32 s6, s2, 3")
    I("s_and_b32 s7, s2, 31")
    I("s_and_b32 s8, s2, 7")
    I("s_lshr_b32 s9, s2, 3")
    I("v_and_b32 v2, 15, v0")
    I("v_lshrrev_b32 v3, 4, v0")
    I("v_mov_b32 v4, %d" % FLG)
    I("v_mov_b32 v5, 1")
    def start_sync():
        I("s_waitcnt lgkmcnt(0)")
        I("s_load_dword s44, s[42:43], %d" % EPOCH)
        srd(60, 42, 43, hex(WS_RANGE))
    def start_wait(): I("s_waitcnt lgkmcnt(0)")
    def start_ws():
        I("s_load_dword s44, s[42:43], %d" % EPOCH)
        srd(60, 42, 43, hex(WS_RANGE))
    def start_bar():
        I("s_barrier")
        STAMP_(1)
    I("s_cmp_ge_u32 s3, 4")
    I("s_cbranch_scc1 L_service")
    FO = lambda f: f - FLG

    C("bulk waves")
    KR = 64; VB = 192; QA = 32; PF = 16; SACC = 224
    vreg = {0: VB, 1: KR, 2: KR + 32, 3: KR + 64}
    TMP = KR + 96
    I("s_lshl_b32 s10, s4, 3\ns_add_u32 s10, s10, s5")
    I("s_lshl_b32 s11, s10, 21\ns_add_u32 s11, s11, %d" % (3072 * 512))
    I("s_lshl_b32 s12, s6, 15\ns_lshl_b32 s13, s3, 13\ns_add_u32 s12, s12, s13")
    I("s_sub_u32 s14, %d, s12" % 524288)
    I("s_add_u32 s12, s12, s11")
    I("s_mov_b32 s64, 0\ns_mov_b32 s65, 0x20000\ns_mov_b32 s66, 0x40000\ns_mov_b32 s67, 0x60000")
    I("v_bfe_u32 v6, v0, 2, 2\nv_lshlrev_b32 v6, 11, v6\nv_lshl_add_u32 v6, v3, 6, v6\nv_and_b32 v7, 3, v0\nv_lshl_add_u32 v6, v7, 4, v6")
    start_wait()
    srd_add(48, 18, 19, "s12", "s14")
    def bulk_setup_b():
        start_ws()
        I("s_lshl_b32 s12, s3, 15\ns_lshl_b32 s13, s6, 7\ns_add_u32 s12, s12, s13")
        I("s_sub_u32 s14, %d, s12" % 524288)
        I("s_add_u32 s12, s12, s11")
        srd_add(52, 20, 21, "s12", "s14")
        I("v_lshrrev_b32 v7, 3, v0\nv_lshlrev_b32 v7, 12, v7\nv_and_b32 v8, 7, v0\nv_lshl_add_u32 v7, v8, 4, v7")
        I("v_lshlrev_b32 v9, 11, v3\nv_lshl_add_u32 v9, v2, 3, v9")
        I("s_lshl_b32 s15, s10, 13\ns_lshl_b32 s12, s6, 9\ns_add_u32 s15, s15, s12\ns_lshl_b32 s12, s3, 7\ns_add_u32 s15, s15, s12\ns_add_u32 s15, s15, %d" % SBUF)
        I("v_bfe_u32 v10, v0, 2, 1\nv_lshlrev_b32 v10, 9, v10\nv_lshl_add_u32 v10, v3, 6, v10\nv_and_b32 v11, 3, v0\nv_lshl_add_u32 v10, v11, 4, v10\nv_add_u32 v10, %d, v10" % QL)
        I("v_bfe_u32 v11, v0, 1, 1\nv_lshlrev_b32 v11, 11, v11\nv_lshl_add_u32 v11, v3, 5, v11\nv_and_b32 v12, 1, v0\nv_lshl_add_u32 v11, v12, 4, v11")
        I("s_lshl_b32 s12, s3, 7\ns_add_u32 s12, s12, %d\nv_add_u32 v11, s12, v11" % PL)
        I("v_and_b32 v12, 7, v0\nv_lshlrev_b32 v12, 5, v12\ns_lshl_b32 s12, s3, 9\ns_add_u32 s12, s12, %d\nv_add_u32 v12, s12, v12" % OA)
        I("v_lshlrev_b32 v14, 2, v0\ns_lshl_b32 s12, s3, 8\ns_add_u32 s12, s12, %d\nv_add_u32 v14, s12, v14" % SL)
        I("s_mov_b32 s68, 0x05040100\ns_mov_b32 s69, 0x07060302")
        I("s_mov_b32 s47, 0")
        I("s_mov_b32 s16, 0xffff0000\ns_mov_b32 s17, 0\ns_mov_b32 s18, 0\ns_mov_b32 s19, 0x0000ffff\ns_mov_b32 s20, 0\ns_mov_b32 s21, 0xffff0000")
        I("s_mov_b32 s22, 0x22222222\ns_mov_b32 s23, 0x22222222\ns_mov_b32 s24, 0x44444444\ns_mov_b32 s25, 0x44444444\ns_mov_b32 s26, 0x88888888\ns_mov_b32 s27, 0x88888888")
        start_bar()
    sched = cfg.sched or default_sched(cfg)
    ops = []
    def outstanding_after(opid):
        return len(ops) - 1 - ops.index(opid)
    def wait_op(opid):
        n = outstanding_after(opid)
        I("s_waitcnt vmcnt(%d)" % min(n, 63))
    tag_ready = [False]
    def ensure_tag():
        if not tag_ready[0]:
            I("s_waitcnt lgkmcnt(0)")
            I("s_mul_i32 s44, s44, 1664525\ns_add_u32 s44, s44, 1013904223")
            I("v_mov_b32 v%d, s44" % (SACC + 5))
            tag_ready[0] = True
    DQ = QA + 8
    def score_tile(T):
        C("scores tile %d" % T)
        wait_op(('K', T, 7))
        for hf in range(2):
            for G in range(4):
                c = "0" if hf == 0 else "v[%d:%d]" % (DQ + 4 * G, DQ + 4 * G + 3)
                r = KR + 32 * T + 4 * (2 * G + hf)
                I("v_mfma_f32_16x16x32_bf16 v[%d:%d], v[%d:%d], v[%d:%d], %s" % (DQ + 4 * G, DQ + 4 * G + 3, QA + 4 * hf, QA + 4 * hf + 3, r, r + 3, c))
        t = QA + 24
        for G in range(4):
            I("v_mov_b32_dpp v%d, v%d quad_perm:[0,0,0,0] row_mask:0xf bank_mask:0xf" % (t + G, DQ + 4 * G))
        for c in range(1, 4):
            for G in range(4):
                I("v_add_f32_dpp v%d, v%d, v%d quad_perm:[%d,%d,%d,%d] row_mask:0xf bank_mask:0xf" % (t + G, DQ + 4 * G + c, t + G, c, c, c, c))
        I("v_cndmask_b32 v%d, v%d, v%d, s[22:23]" % (t, t, t + 1))
        I("v_cndmask_b32 v%d, v%d, v%d, s[24:25]" % (t, t, t + 2))
        I("v_cndmask_b32 v%d, v%d, v%d, s[26:27]" % (t, t, t + 3))
        I("v_mov_b32 v%d, v%d" % (t + 1, t))
        I("v_permlane16_swap_b32 v%d, v%d" % (t, t + 1))
        I("v_cvt_pk_bf16_f32 v%d, v%d, v%d" % (SACC + T, t, t + 1))
        if T == 3:
            I("v_cndmask_b32 v%d, v%d, v%d, s[16:17]" % (SACC + 4, SACC, SACC + 1))
            I("v_cndmask_b32 v%d, v%d, v%d, s[18:19]" % (SACC + 4, SACC + 4, SACC + 2))
            I("v_cndmask_b32 v%d, v%d, v%d, s[20:21]" % (SACC + 4, SACC + 4, SACC + 3))
            I("buffer_store_dwordx2 v[%d:%d], v9, s[60:63], s15 offen @STAs@" % (SACC + 4, SACC + 5))
            if 's' in lh: I("ds_write_b32 v14, v%d" % (SACC + 4))
            ops.append(('S', T))
    first_v = min(i for i, o in enumerate(sched) if o[0] == 'V')
    last_k = max(i for i, o in enumerate(sched) if o[0] == 'K')
    qpos = cfg.qpos
    tiles_done = 0
    scores_flagged = False
    wo_flagged = False
    for si, o in enumerate(sched):
        win = cfg.wk if si <= last_k else cfg.wv
        if si == cfg.wk_pre:
            I("s_branch L_bulk_main"); SEC("bulkmain"); L("L_bulk_main")
            bulk_setup_b()
        if cfg.late_win and si == cfg.late_slot:
            I("ds_read_b32 v13, v4 offset:%d" % FO(F_LATE))
            I("s_waitcnt lgkmcnt(0)")
            I("v_readfirstlane_b32 s40, v13")
        if len(ops) >= win and not (qpos < si <= qpos + 3):
            sk = None
            late = cfg.late_win and si > cfg.late_slot
            if scores_flagged or late:
                sk = lab("sk")
            if scores_flagged:
                I("s_cmp_lg_u32 s47, 0")
                I("s_cbranch_scc1 %s" % sk)
            if late:
                sk2 = lab("sl")
                if len(ops) >= cfg.late_win: I("s_waitcnt vmcnt(%d)" % (cfg.late_win - 1))
                I("s_cmp_lg_u32 s40, 0")
                I("s_cbranch_scc1 %s" % sk2)
            I("s_waitcnt vmcnt(%d)" % (win - 1))
            if late: L(sk2)
            if scores_flagged and si > cfg.t2 and not cfg.nofree:
                I("ds_read_b32 v13, v4 offset:%d" % FO(eval(cfg.free_flag)))
                I("s_waitcnt lgkmcnt(0)")
                I("v_readfirstlane_b32 s46, v13")
                I("s_lshr_b32 s47, s46, 6")
            if sk: L(sk)
        if si == cfg.t1:
            set_flag_add(4, FO(F_T1), 5); STAMP_(10)
        if si == qpos:
            C("wait q")
            STAMP_(2)
            ensure_tag()
            wait_flag(4, FO(F_Q), 1, 13)
            for hf in range(2):
                I("ds_read_b128 v[%d:%d], v10 offset:%d" % (QA + 4 * hf, QA + 4 * hf + 3, 256 * hf))
            I("s_waitcnt lgkmcnt(0)")
            STAMP_(3)
        if si >= qpos and tiles_done < 4:
            T = tiles_done
            score_tile(T); tiles_done += 1
            if tiles_done == 4:
                set_flag_add(4, FO(F_S), 5); scores_flagged = True
                STAMP_(4)
        if si == cfg.t2:
            set_flag_add(4, FO(F_T2), 5); STAMP_(11)
        if o[0] == 'K':
            _, T, t = o
            I("buffer_load_dwordx4 v[%d:%d], v6, s[48:51], s%d offen offset:%d%s" % (KR + 32 * T + 4 * t, KR + 32 * T + 4 * t + 3, 64 + T, 512 * (t // 2) + 256 * (t % 2), cfg.nt_kv))
            if si == cfg.kflag_slot:
                set_flag_add(4, FO(F_K), 5)
            if si == last_k: STAMP_(12)
        elif o[0] == 'V':
            _, T, j = o
            if T >= 1: assert tiles_done > T - 1, "V tile overwrites K tile not yet consumed"
            r = vreg[T] + 4 * j
            I("buffer_load_dwordx4 v[%d:%d], v7, s[52:55], s%d offen offset:%d%s" % (r, r + 3, 64 + T, 512 * j, cfg.nt_kv))
        else:
            i = o[1]
            if i >= 21: assert si > qpos, "wo chunk overlays x before q flag"
            if i % 4 == 0:
                I("s_add_u32 m0, s13, %d" % (i * 1024))
                I("s_mov_b32 s14, %d" % (i * 1024))
            I("buffer_load_dwordx4 v8, s[56:59], s14 offen offset:%d%s lds" % ((i % 4) * 1024, cfg.nt_wo))
        ops.append(o)
    assert tiles_done == 4
    STAMP_(6)
    dstT = {0: TMP, 1: VB, 2: KR, 3: KR + 32}
    def pv_perm(T):
        C("transpose V tile %d" % T)
        wait_op(('V', T, 7))
        R = vreg[T]; Dd = dstT[T]
        for jp in range(8):
            sel = "s68" if jp % 2 == 0 else "s69"
            for i in range(4):
                I("v_perm_b32 v%d, v%d, v%d, %s" % (Dd + 4 * jp + i, R + 4 * (2 * i + 1) + jp // 2, R + 4 * (2 * i) + jp // 2, sel))
    def pv_mfma(T):
        for q in range(8):
            c = "0" if T == 0 else "v[%d:%d]" % (QA + 4 * q, QA + 4 * q + 3)
            I("v_mfma_f32_16x16x32_bf16 v[%d:%d], v[%d:%d], v[%d:%d], %s" % (QA + 4 * q, QA + 4 * q + 3, PF + 4 * T, PF + 4 * T + 3, dstT[T] + 4 * q, dstT[T] + 4 * q + 3, c))
    for T in range(3): pv_perm(T)
    I("ds_read_b32 v13, v4 offset:%d" % FO(F_P))
    I("s_waitcnt lgkmcnt(0)")
    I("v_readfirstlane_b32 s46, v13")
    I("s_lshr_b32 s47, s46, 7")
    if cfg.hack_nop: I("s_mov_b32 s47, 1")
    I("s_cmp_lg_u32 s47, 0")
    I("s_cbranch_scc1 L_p_early")
    pv_perm(3)
    C("wait p")
    wait_flag(4, FO(F_P), 128, 13)
    L("L_p_early")
    for T in range(4):
        I("ds_read_b128 v[%d:%d], v11 offset:%d" % (PF + 4 * T, PF + 4 * T + 3, 512 * T))
    STAMP_(7)
    for T in range(3):
        I("s_waitcnt lgkmcnt(%d)" % (3 - T))
        pv_mfma(T)
    I("s_cmp_lg_u32 s47, 0")
    I("s_cbranch_scc0 L_p_late")
    pv_perm(3)
    L("L_p_late")
    I("s_waitcnt lgkmcnt(0)")
    pv_mfma(3)
    STAMP_(8)
    C("u-sum, pack, write OA")
    OS = 64
    for h in range(2):
        for jp in range(8):
            I("v_add_f32_dpp v%d, v%d, v%d row_ror:8 row_mask:0xf bank_mask:0xf" % (OS + 8 * h + jp, QA + 4 * jp + 2 * h + 1, QA + 4 * jp + 2 * h))
    I("s_mov_b64 exec, 0xff")
    for h in range(2):
        I("ds_write_b128 v12, v[%d:%d] offset:%d" % (OS + 8 * h, OS + 8 * h + 3, 256 * h))
        I("ds_write_b128 v12, v[%d:%d] offset:%d" % (OS + 8 * h + 4, OS + 8 * h + 7, 256 * h + 16))
    I("s_mov_b64 exec, -1")
    I("s_waitcnt lgkmcnt(0)")
    I("s_barrier")
    STAMP_(9)
    stamps_out()
    I("s_endpgm")

    SEC("svc")
    L("L_service")
    if cfg.prio: I("s_setprio %d" % cfg.prio)
    I("s_mov_b32 s14, 0x00ff00ff\ns_mov_b32 s15, 0x00ff00ff")
    I("v_cmp_gt_u32 vcc, 8, v2")
    I("v_lshrrev_b32 v6, 2, v2\nv_lshl_add_u32 v6, v3, 3, v6")
    I("v_and_b32 v7, 3, v2\nv_lshlrev_b32 v7, 3, v7")
    I("v_mul_u32_u24 v8, 896, v6\nv_add_u32 v8, v8, v7")
    I("v_lshl_add_u32 v6, v6, 5, v7")
    I("s_cmp_eq_u32 s3, 7\ns_cbranch_scc1 L_s3")
    I("s_cmp_eq_u32 s3, 6\ns_cbranch_scc1 L_s2_pre")
    I("s_cmp_eq_u32 s3, 5\ns_cbranch_scc1 L_s1")

    XF = 64; AF = 128
    L("L_s0")
    C("S0: wq tile DMA (even idx), gate_w, b2")
    I("v_lshrrev_b32 v9, 2, v0\nv_and_b32 v10, 3, v0\nv_lshlrev_b32 v10, 4, v10")
    I("v_lshl_add_u32 v11, v9, 13, v10")
    tq_calc("s11")
    I("s_lshl_b32 s10, s8, 10\ns_lshl_b32 s11, s11, 6\ns_add_u32 s10, s10, s11")
    I("s_sub_u32 s11, %d, s10" % (448 * 8192))
    I("s_mov_b32 s12, 0\ns_mov_b32 m0, %d" % WQT)
    start_wait()
    if cfg.dbg_start: STAMP_(12)
    I("s_bitcmp1_b32 s9, 0\ns_cbranch_scc1 L_s0_noq1")
    srd_add(48, 22, 23, "s10", "s11")
    dma_loop(28, 11, 48, 0x20000, cfg.nt_w)
    L("L_s0_noq1")
    start_ws()
    if cfg.dbg_start: STAMP_(13)
    start_bar()
    I("s_branch L_s0_main"); SEC("s0main"); L("L_s0_main")
    I("v_mov_b32 v13, %d" % OOB)
    wait_flag(4, FO(F_X), 1, 26)
    I("v_and_b32 v12, 7, v2\nv_mul_u32_u24 v12, 896, v12\nv_lshl_add_u32 v12, v3, 4, v12\nv_add_u32 v12, %d, v12" % XL)
    for t in range(14):
        I("ds_read_b128 v[%d:%d], v12 offset:%d" % (XF + 4 * t, XF + 4 * t + 3, 64 * t))
    I("s_mul_i32 s10, s4, 896\ns_add_u32 s10, s10, %d" % XL)
    I("v_min_u32 v14, 55, v0\nv_lshlrev_b32 v14, 4, v14\nv_add_u32 v14, s10, v14")
    I("ds_read_b128 v[32:35], v14")
    I("s_waitcnt vmcnt(0) lgkmcnt(0)")
    STAMP_(2)
    srd(52, 36, 37, "896")
    I("v_lshlrev_b32 v14, 4, v0\nv_cmp_gt_u32 vcc, 56, v0\nv_cndmask_b32 v14, v13, v14, vcc")
    I("buffer_load_dwordx4 v[36:39], v14, s[52:55], 0 offen")
    srd(56, 34, 35, "896")
    I("v_and_b32 v15, 7, v0\nv_lshlrev_b32 v15, 2, v15\ns_lshl_b32 s10, s7, 5")
    I("buffer_load_dword v52, v15, s[56:59], s10 offen")
    I("s_mul_i32 s44, s44, 1664525\ns_add_u32 s44, s44, 1013904223")
    I("s_bitcmp1_b32 s9, 0\ns_cbranch_scc1 L_s0_noq2")
    I("v_lshrrev_b32 v15, 2, v2\nv_lshl_add_u32 v15, v3, 3, v15\nv_lshlrev_b32 v15, 6, v15\nv_add_u32 v15, v15, v7\nv_add_u32 v15, %d, v15" % WQT)
    for t in range(14):
        for ct in range(2):
            r = AF + 8 * t + 4 * ct
            I("ds_read_b64_tr_b16 v[%d:%d], v15 offset:%d" % (r, r + 1, 2048 * t + 32 * ct))
            I("ds_read_b64_tr_b16 v[%d:%d], v15 offset:%d" % (r + 2, r + 3, 2048 * t + 32 * ct + 256))
    I("s_waitcnt lgkmcnt(0)")
    for t in range(14):
        for ct in range(2):
            d = 16 + 4 * ct
            c = "0" if t == 0 else "v[%d:%d]" % (d, d + 3)
            r = AF + 8 * t + 4 * ct
            I("v_mfma_f32_16x16x32_bf16 v[%d:%d], v[%d:%d], v[%d:%d], %s" % (d, d + 3, r, r + 3, XF + 4 * t, XF + 4 * t + 3, c))
    I("v_lshlrev_b32 v14, 6, v2\nv_lshl_add_u32 v14, v3, 3, v14\nv_add_u32 v14, %d, v14" % OG)
    I("v_cvt_pk_bf16_f32 v56, v16, v17\nv_cvt_pk_bf16_f32 v57, v18, v19\nv_cvt_pk_bf16_f32 v58, v20, v21\nv_cvt_pk_bf16_f32 v59, v22, v23")
    I("ds_write_b64 v14, v[56:57]\nds_write_b64 v14, v[58:59] offset:32")
    I("v_lshlrev_b32 v14, 3, v0\nv_add_u32 v14, %d, v14" % OG)
    I("ds_read_b64 v[60:61], v14")
    I("v_lshrrev_b32 v14, 3, v0\nv_lshlrev_b32 v14, 11, v14\nv_and_b32 v15, 7, v0\nv_lshl_add_u32 v14, v15, 4, v14")
    tq_calc("s11")
    I("s_lshl_b32 s10, s8, 14\ns_lshl_b32 s11, s11, 7\ns_add_u32 s10, s10, s11\ns_add_u32 s10, s10, %d" % QBUF)
    I("v_mov_b32 v57, s44\nv_mov_b32 v59, s44")
    I("s_waitcnt lgkmcnt(0)")
    I("v_mov_b32 v56, v60\nv_mov_b32 v58, v61")
    I("buffer_store_dwordx4 v[56:59], v14, s[60:63], s10 offen @STAq@")
    if cfg.qh_cond: sk_ = if_not_local(26)
    I("s_add_u32 s11, s10, %d" % DUP)
    I("buffer_store_dwordx4 v[56:59], v14, s[60:63], s11 offen @ST@")
    if cfg.qh_cond: L(sk_)
    L("L_s0_noq2")
    STAMP_(3)
    C("gate (lanes >= 56 have gate_w = 0)")
    I("s_waitcnt vmcnt(1)" if False else "s_waitcnt vmcnt(0)")
    for q in range(4):
        I("v_lshlrev_b32 v%d, 16, v%d\nv_and_b32 v%d, 0xffff0000, v%d" % (24 + 2 * q, 32 + q, 25 + 2 * q, 32 + q))
        I("v_lshlrev_b32 v%d, 16, v%d\nv_and_b32 v%d, 0xffff0000, v%d" % (40 + 2 * q, 36 + q, 41 + 2 * q, 36 + q))
    for k in range(8): I("v_mul_f32 v%d, v%d, v%d" % (24 + k, 24 + k, 40 + k))
    for q in range(4): rnd_pair(24 + 2 * q, 25 + 2 * q, 24 + 2 * q, 25 + 2 * q, 32)
    I("v_add_f32 v24, v24, v25\nv_add_f32 v26, v26, v27\nv_add_f32 v28, v28, v29\nv_add_f32 v30, v30, v31")
    I("v_add_f32 v24, v24, v26\nv_add_f32 v28, v28, v30\nv_add_f32 v24, v24, v28")
    wave_reduce("v_add_f32", 24, 25)
    rnd_pair(24, 25, 24, 24, 26)
    I("v_mul_f32 v24, 0x%08x, v24" % f2u(-1.4426950408889634))
    I("v_exp_f32 v24, v24\nv_add_f32 v24, 1.0, v24\nv_rcp_f32 v24, v24")
    rnd_pair(50, 25, 24, 24, 26)
    I("v_sub_f32 v24, 1.0, v50")
    rnd_pair(51, 25, 24, 24, 26)
    STAMP_(4)
    C("q gather")
    wait_flag(4, FO(F_T1), 256, 26)
    I("s_lshl_b32 s10, s5, 3\ns_add_u32 s10, s10, s4\ns_lshl_b32 s10, s10, 11\ns_add_u32 s10, s10, %d" % QBUF)
    I("v_lshlrev_b32 v14, 4, v0")
    STAMP_(5)
    def iss():
        I("buffer_load_dwordx4 v[16:19], v14, s[60:63], s10 offen @LD@")
        I("buffer_load_dwordx4 v[20:23], v14, s[60:63], s10 offen offset:1024 @LD@")
    poll(iss, [17, 19, 21, 23], 26, 27, dual=(['s10'] if 'q' in lh else None))
    if cfg.stamps:
        I("s_sub_u32 s86, %d, s45\ns_mov_b32 s87, 0" % (cfg.maxpoll + 1))
    I("v_lshlrev_b32 v15, 3, v0\nv_add_u32 v15, %d, v15" % QL)
    I("ds_write2_b32 v15, v16, v18 offset0:0 offset1:1")
    I("ds_write2_b32 v15, v20, v22 offset0:128 offset1:129")
    set_flag_add(4, FO(F_Q), 5)
    STAMP_(6)
    if cfg.wo_by == 'S0':
        wo_tile('L_s0_wo')
        L('L_s0_wo')
        set_flag_add(4, FO(F_WO), 5)
    C("MLP partial gather (owners)")
    I("s_cmp_ge_u32 s7, 28\ns_cbranch_scc1 L_s0_nomlp")
    wait_flag(4, FO(F_T2), 256, 26)
    I("s_mul_i32 s10, s4, 28\ns_add_u32 s10, s10, s7\ns_lshl_b32 s10, s10, 11\ns_add_u32 s10, s10, %d" % MBUF)
    I("v_lshlrev_b32 v14, 4, v0")
    def iss():
        I("buffer_load_dwordx4 v[16:19], v14, s[60:63], s10 offen @LD@")
        I("buffer_load_dwordx4 v[20:23], v14, s[60:63], s10 offen offset:1024 @LD@")
    poll(iss, [17, 19, 21, 23], 26, 27)
    I("v_add_f32 v16, v16, v20\nv_add_f32 v18, v18, v22")
    def red8(v, t):
        I("v_add_f32_dpp v%d, v%d, v%d row_ror:8 row_mask:0xf bank_mask:0xf" % (v, v, v))
        for sw in ("v_permlane16_swap_b32", "v_permlane32_swap_b32"):
            I("v_mov_b32 v%d, v%d" % (t, v)); I("%s v%d, v%d" % (sw, v, t)); I("v_add_f32 v%d, v%d, v%d" % (v, v, t))
    red8(16, 24); red8(18, 25)
    rnd_pair(16, 18, 16, 18, 26)
    I("v_lshlrev_b32 v24, 16, v52\nv_and_b32 v25, 0xffff0000, v52")
    I("v_add_f32 v16, v16, v24\nv_add_f32 v18, v18, v25")
    rnd_pair(16, 18, 16, 18, 26)
    I("v_mul_f32 v16, v16, v51\nv_mul_f32 v18, v18, v51")
    rnd_pair(53, 54, 16, 18, 26)
    L("L_s0_nomlp")
    STAMP_(7)
    I("s_branch L_outproj")

    SEC("s1start")
    L("L_s1")
    code_prefetch()
    start_sync()
    if cfg.local:
        C("publish this workgroup's die id")
    if cfg.local:
        I("s_getreg_b32 s67, hwreg(HW_REG_XCC_ID)")
    if cfg.local:
        I("v_mov_b32 v13, %d\nv_mov_b32 v18, 0\nv_cmp_eq_u32 vcc, 0, v0\nv_cndmask_b32 v18, v13, v18, vcc" % OOB)
    if cfg.local:
        I("s_lshl_b32 s10, s8, 9\ns_lshl_b32 s11, s9, 3\ns_add_u32 s11, s11, s10\ns_add_u32 s11, s11, %d" % XBUF)
    I("s_waitcnt lgkmcnt(0)")
    I("s_mul_i32 s44, s44, 1664525\ns_add_u32 s44, s44, 1013904223")
    if cfg.local:
        I("v_mov_b32 v16, s67\nv_mov_b32 v17, s44")
    if cfg.local:
        I("buffer_store_dwordx2 v[16:17], v18, s[60:63], s11 offen @ST@")
    if cfg.late_win:
        C("the first workgroup of each die group announces its start")
        I("s_cmp_eq_u32 s9, 0\ns_cbranch_scc0 L_s1_nolead")
        I("v_mov_b32 v13, %d\nv_mov_b32 v18, 0\nv_cmp_eq_u32 vcc, 0, v0\nv_cndmask_b32 v18, v13, v18, vcc" % OOB)
        I("s_lshl_b32 s11, s8, 7\ns_add_u32 s11, s11, %d\nv_mov_b32 v16, s44\nv_mov_b32 v17, s44" % TBUF)
        I("buffer_store_dwordx2 v[16:17], v18, s[60:63], s11 offen @ST@")
        L("L_s1_nolead")
    start_bar()
    I("s_branch L_s1_main"); SEC("s1main"); L("L_s1_main")
    if cfg.late_win:
        C("a workgroup that already sees several other groups' announcements started late and gets a wider load window")
        I("v_mov_b32 v13, %d\nv_lshlrev_b32 v19, 7, v0\nv_cmp_gt_u32 vcc, 8, v0\nv_cndmask_b32 v19, v13, v19, vcc" % OOB)
        I("s_mov_b32 s11, %d" % TBUF)
        I("buffer_load_dwordx2 v[20:21], v19, s[60:63], s11 offen @LD@")
        I("s_waitcnt vmcnt(0)")
        I("v_cmp_eq_u32 vcc, s44, v21")
        I("s_and_b32 s10, vcc_lo, 0xff\ns_bcnt1_i32_b32 s10, s10\ns_cmp_ge_u32 s10, %d\ns_cbranch_scc0 L_s1_early" % cfg.late_cnt)
        set_flag_add(4, FO(F_LATE), 5)
        L("L_s1_early")
        if cfg.stamps: I("s_mov_b32 s86, s10\ns_mov_b32 s87, 0")
    if cfg.die_by == 'S1':
        die_check("a")
        STAMP_(7)
    I("s_cmp_ge_u32 s9, 28\ns_cbranch_scc1 L_s1_none")
    C("M2: w2 tile [112 rows x 32 columns]; s12 = k range (0..15), s13 = column tile (0..13)")
    I("s_cmp_ge_u32 s9, 14\ns_cselect_b32 s12, 1, 0\ns_mul_i32 s13, s12, 14\ns_sub_u32 s13, s9, s13\ns_lshl_b32 s11, s8, 1\ns_add_u32 s12, s12, s11")
    I("s_mov_b32 s68, s12\ns_mov_b32 s69, s13")
    I("s_mul_i32 s10, s12, %d\ns_lshl_b32 s11, s13, 6\ns_add_u32 s10, s10, s11" % (112 * 896))
    I("s_sub_u32 s11, %d, s10" % (1792 * 896))
    srd_add(48, 32, 33, "s10", "s11")
    I("v_lshrrev_b32 v9, 2, v0\nv_and_b32 v10, 3, v0\nv_lshlrev_b32 v10, 4, v10")
    I("v_mul_u32_u24 v11, 896, v9\nv_add_u32 v11, v11, v10")
    if cfg.w2_trig: wait_flag(4, FO(eval(cfg.w2_trig)), 256, 26)
    I("s_mov_b32 s12, 0\ns_mov_b32 m0, %d" % W2T)
    for i in range(7):
        if i >= cfg.w2_win: I("s_waitcnt vmcnt(%d)" % (cfg.w2_win - 1))
        I("buffer_load_dwordx4 v11, s[48:51], s12 offen%s lds" % cfg.nt_w)
        if i < 6: I("s_add_u32 m0, m0, 1024\ns_add_u32 s12, s12, %d" % (16 * 896))
    I("s_waitcnt vmcnt(0) lgkmcnt(0)")
    I("v_lshrrev_b32 v15, 2, v2\nv_lshl_add_u32 v15, v3, 3, v15\nv_lshlrev_b32 v15, 6, v15\nv_add_u32 v15, v15, v7\nv_add_u32 v15, %d, v15" % W2T)
    I("v_and_b32 v12, 1, v3\nv_lshrrev_b32 v14, 2, v2\nv_lshl_add_u32 v14, v12, 3, v14\nv_lshlrev_b32 v14, 6, v14\nv_add_u32 v14, v14, v7\nv_add_u32 v14, %d, v14" % W2T)
    for t in range(4):
        for ct in range(2):
            r = 160 + 8 * t + 4 * ct
            a_ = 15 if t < 3 else 14
            I("ds_read_b64_tr_b16 v[%d:%d], v%d offset:%d" % (r, r + 1, a_, 2048 * t + 32 * ct))
            I("ds_read_b64_tr_b16 v[%d:%d], v%d offset:%d" % (r + 2, r + 3, a_, 2048 * t + 32 * ct + 256))
    I("s_waitcnt lgkmcnt(0)")
    STAMP_(2)
    wait_flag(4, FO(eval(cfg.h_trig)), 256, 26)
    STAMP_(3)
    I("v_mov_b32 v13, %d" % OOB)
    I("v_lshrrev_b32 v9, 3, v0\nv_and_b32 v10, 7, v0\nv_mul_u32_u24 v14, 7168, v9\nv_lshl_add_u32 v14, v10, 4, v14")
    I("v_cmp_gt_u32 vcc, 4, v10\nv_cndmask_b32 v12, v13, v14, vcc")
    I("s_mul_i32 s10, s68, 448\ns_add_u32 s10, s10, %d" % HBUF)
    I("s_mov_b32 s14, 0x0f0f0f0f\ns_mov_b32 s15, 0x0f0f0f0f")
    def iss():
        for i in range(3):
            r = 64 + 4 * i
            I("buffer_load_dwordx4 v[%d:%d], v14, s[60:63], s10 offen offset:%d @LD@" % (r, r + 3, 128 * i))
        I("buffer_load_dwordx4 v[76:79], v12, s[60:63], s10 offen offset:384 @LD@")
    lp = lab("pl"); dn = lab("pld")
    I("s_mov_b32 s45, %d" % cfg.maxpoll)
    dual_init(['s10'] if 'h' in lh else None)
    L(lp)
    iss()
    I("s_waitcnt vmcnt(0)")
    I("v_mov_b32 v28, s44")
    I("v_cndmask_b32 v77, v28, v77, s[14:15]\nv_cndmask_b32 v79, v28, v79, s[14:15]")
    check_tags([65, 67, 69, 71, 73, 75, 77, 79], 26, 27)
    I("s_cbranch_scc1 %s" % dn)
    if cfg.backoff: I("s_sleep %d" % cfg.backoff)
    I("s_sub_u32 s45, s45, 1")
    dual_next(['s10'] if 'h' in lh else None)
    I("s_cmp_lg_u32 s45, 0\ns_cbranch_scc1 %s" % lp)
    L(dn)
    STAMP_(4)
    I("v_mul_u32_u24 v15, 272, v9\nv_lshl_add_u32 v15, v10, 3, v15\nv_add_u32 v15, %d, v15" % HL)
    for i in range(4):
        I("ds_write2_b32 v15, v%d, v%d offset0:%d offset1:%d" % (64 + 4 * i, 64 + 4 * i + 2, 16 * i, 16 * i + 1))
    I("v_and_b32 v15, 7, v2\nv_mul_u32_u24 v15, 272, v15\nv_lshl_add_u32 v15, v3, 4, v15\nv_add_u32 v15, %d, v15" % HL)
    I("s_waitcnt lgkmcnt(0)")
    for t in range(4):
        I("ds_read_b128 v[%d:%d], v15 offset:%d" % (128 + 4 * t, 128 + 4 * t + 3, 64 * t))
    I("s_waitcnt lgkmcnt(0)")
    for t in range(4):
        for ct in range(2):
            d = 16 + 4 * ct
            c = "0" if t == 0 else "v[%d:%d]" % (d, d + 3)
            r = 160 + 8 * t + 4 * ct
            I("v_mfma_f32_16x16x32_bf16 v[%d:%d], v[%d:%d], v[%d:%d], %s" % (d, d + 3, 128 + 4 * t, 128 + 4 * t + 3, r, r + 3, c))
    I("v_and_b32 v14, 1, v3\nv_mul_u32_u24 v14, %d, v14\nv_lshrrev_b32 v16 + 0, 1, v3" .replace("v16 + 0", "v24") % (4 * 28 * 2048))
    I("v_lshl_add_u32 v14, v24, 11, v14\nv_lshl_add_u32 v14, v2, 3, v14")
    I("s_lshl_b32 s10, s69, 12\ns_lshl_b32 s11, s68, 7\ns_add_u32 s10, s10, s11\ns_add_u32 s10, s10, %d" % MBUF)
    I("s_mov_b32 s48, 0\ns_mov_b32 s49, -1")
    for r in range(4):
        I("v_mov_b32 v%d, s44" % (33 + 2 * r))
        I("v_cndmask_b32 v%d, v%d, v%d, s[48:49]" % (32 + 2 * r, 16 + r, 20 + r))
    for r in range(4):
        I("s_add_u32 s11, s10, %d" % (r * 28 * 2048))
        I("buffer_store_dwordx2 v[%d:%d], v14, s[60:63], s11 offen @ST@" % (32 + 2 * r, 33 + 2 * r))
    STAMP_(5)
    L("L_s1_none")
    if cfg.wo_by == 'S1':
        wo_tile('L_s1_wo')
        L('L_s1_wo')
        set_flag_add(4, FO(F_WO), 5)
        STAMP_(6)
    I("s_branch L_outproj")

    SEC("s3start")
    L("L_s3")
    C("wave 7: x -> LDS, then the wo tile (128 rows x 64 columns; batch b < 7 takes column block b)")
    I("v_lshlrev_b32 v9, 4, v0\ns_mov_b32 m0, %d\ns_mov_b32 s12, 0" % XL)
    start_sync()
    srd(48, 16, 17, "7168")
    if cfg.x_late: start_bar()
    for i in range(7):
        if i == 4: I("s_mov_b32 m0, %d\ns_mov_b32 s12, 4096" % (XL + 4096))
        I("buffer_load_dwordx4 v9, s[48:51], s12 offen offset:%d lds" % ((i % 4) * 1024))
    if not cfg.x_late: start_bar()
    I("s_branch L_s3_main"); SEC("s3main"); L("L_s3_main")
    I("s_waitcnt vmcnt(0)")
    set_flag_add(4, FO(F_X), 5)
    STAMP_(2)
    I("s_waitcnt lgkmcnt(0)")
    I("s_mul_i32 s44, s44, 1664525\ns_add_u32 s44, s44, 1013904223")
    if cfg.wo_by == 'S3': wo_tile('L_s3_fin')
    L("L_s3_fin")
    if cfg.wo_by == 'S3': set_flag_add(4, FO(F_WO), 5)
    I("s_branch L_softmax")
    SEC("s2start")
    L("L_s2_pre")
    C("wave 6: zero flags, w1 tile")
    I("v_lshlrev_b32 v9, 2, v0\nv_add_u32 v9, %d, v9\nv_mov_b32 v10, 0" % FLG)
    I("s_mov_b64 exec, 0xffff\nds_write_b32 v9, v10\ns_mov_b64 exec, -1")
    I("v_lshrrev_b32 v9, 1, v0\nv_and_b32 v10, 1, v0\nv_lshlrev_b32 v10, 4, v10")
    I("v_mul_u32_u24 v14, 3584, v9\nv_add_u32 v14, v14, v10")
    I("v_lshlrev_b32 v15, 3, v3")
    I("s_lshr_b32 s10, s9, 1\ns_mul_i32 s11, s8, 14\ns_add_u32 s10, s10, s11")
    I("s_mov_b32 s69, s10")
    I("s_lshl_b32 s10, s10, 5\ns_sub_u32 s11, %d, s10" % (448 * 3584))
    I("s_mov_b32 s12, 0\ns_mov_b32 m0, %d" % W1T)
    start_wait()
    I("s_bitcmp0_b32 s9, 0\ns_cbranch_scc1 L_s2_nom1\ns_cmp_ge_u32 s9, 28\ns_cbranch_scc1 L_s2_nom1")
    srd_add(56, 28, 29, "s10", "s11")
    dma_loop(14, 14, 56, 32 * 3584, cfg.nt_w)
    srd(64, 30, 31, "3584")
    I("buffer_load_dwordx2 v[24:25], v15, s[64:67], s10 offen")
    L("L_s2_nom1")
    start_ws()
    start_bar()
    I("s_branch L_s2_main"); SEC("s2main"); L("L_s2_main")
    I("s_waitcnt lgkmcnt(0)")
    I("s_mul_i32 s44, s44, 1664525\ns_add_u32 s44, s44, 1013904223")
    I("s_bitcmp0_b32 s9, 0\ns_cbranch_scc1 L_softmax\ns_cmp_ge_u32 s9, 28\ns_cbranch_scc1 L_softmax")
    wait_flag(4, FO(F_X), 1, 26)
    C("LayerNorm (wave 6, M1 workgroups)")
    I("v_lshrrev_b32 v9, 3, v0\nv_and_b32 v10, 7, v0\nv_lshlrev_b32 v10, 4, v10")
    I("v_mul_u32_u24 v11, 896, v9\nv_add_u32 v11, v11, v10\nv_add_u32 v11, %d, v11" % XL)
    for i in range(7):
        I("ds_read_b128 v[%d:%d], v11 offset:%d" % (64 + 4 * i, 64 + 4 * i + 3, 128 * i))
    I("v_mul_u32_u24 v12, 912, v9\nv_add_u32 v12, v12, v10\nv_add_u32 v12, %d, v12" % YL)
    I("s_waitcnt lgkmcnt(0)")
    set_flag_add(4, FO(F_Y), 5)
    F = 128
    for k in range(28):
        I("v_lshlrev_b32 v%d, 16, v%d\nv_and_b32 v%d, 0xffff0000, v%d" % (F + 2 * k, 64 + k, F + 2 * k + 1, 64 + k))
    I("v_pk_add_f32 v[16:17], v[%d:%d], v[%d:%d]" % (F, F + 1, F + 2, F + 3))
    for k in range(2, 28):
        I("v_pk_add_f32 v[16:17], v[16:17], v[%d:%d]" % (F + 2 * k, F + 2 * k + 1))
    I("v_add_f32 v16, v16, v17")
    def red_p(v):
        for mod in ("quad_perm:[1,0,3,2]", "quad_perm:[2,3,0,1]", "row_half_mirror"):
            I("v_add_f32_dpp v%d, v%d, v%d %s row_mask:0xf bank_mask:0xf" % (v, v, v, mod))
    red_p(16)
    I("v_mul_f32 v16, 0x%08x, v16" % f2u(1.0 / 448))
    rnd_pair(18, 19, 16, 16, 17)
    I("v_sub_f32 v20, v16, v18")
    I("v_sub_f32 v18, 0, v18\nv_mov_b32 v19, v18")
    for k in range(28):
        I("v_pk_add_f32 v[%d:%d], v[%d:%d], v[18:19]" % (F + 2 * k, F + 2 * k + 1, F + 2 * k, F + 2 * k + 1))
    I("v_pk_mul_f32 v[16:17], v[%d:%d], v[%d:%d]" % (F, F + 1, F, F + 1))
    for k in range(1, 28):
        I("v_pk_fma_f32 v[16:17], v[%d:%d], v[%d:%d], v[16:17]" % (F + 2 * k, F + 2 * k + 1, F + 2 * k, F + 2 * k + 1))
    I("v_add_f32 v16, v16, v17")
    red_p(16)
    I("v_mul_f32 v16, 0x%08x, v16" % f2u(1.0 / 448))
    I("v_fma_f32 v16, -v20, v20, v16\nv_max_f32 v16, 0, v16")
    rnd_pair(16, 17, 16, 16, 21)
    I("v_add_f32 v16, 0x%08x, v16" % f2u(1e-5))
    rnd_pair(16, 17, 16, 16, 21)
    I("v_sqrt_f32 v16, v16")
    rnd_pair(16, 17, 16, 16, 21)
    I("v_rcp_f32 v16, v16")
    I("v_mov_b32 v17, v16")
    for k in range(28):
        I("v_pk_mul_f32 v[%d:%d], v[%d:%d], v[16:17]" % (F + 2 * k, F + 2 * k + 1, F + 2 * k, F + 2 * k + 1))
    for k in range(28):
        I("v_cvt_pk_bf16_f32 v%d, v%d, v%d" % (64 + k, F + 2 * k, F + 2 * k + 1))
    for i in range(7):
        I("ds_write_b128 v12, v[%d:%d] offset:%d" % (64 + 4 * i, 64 + 4 * i + 3, 128 * i))
    STAMP_(2)
    C("M1: h tile")
    I("s_waitcnt vmcnt(0) lgkmcnt(0)")
    I("v_mov_b32 v13, %d" % OOB)
    I("v_and_b32 v15, 7, v2\nv_mul_u32_u24 v15, 912, v15\nv_lshl_add_u32 v15, v3, 4, v15\nv_add_u32 v15, %d, v15" % YL)
    for t in range(14):
        I("ds_read_b128 v[%d:%d], v15 offset:%d" % (XF + 4 * t, XF + 4 * t + 3, 64 * t))
    I("v_add_u32 v15, %d, v6" % W1T)
    for t in range(14):
        I("ds_read_b64_tr_b16 v[%d:%d], v15 offset:%d" % (AF + 4 * t, AF + 4 * t + 1, 1024 * t))
        I("ds_read_b64_tr_b16 v[%d:%d], v15 offset:%d" % (AF + 4 * t + 2, AF + 4 * t + 3, 1024 * t + 128))
    I("s_waitcnt lgkmcnt(0)")
    for t in range(14):
        c = "0" if t == 0 else "v[16:19]"
        I("v_mfma_f32_16x16x32_bf16 v[16:19], v[%d:%d], v[%d:%d], %s" % (AF + 4 * t, AF + 4 * t + 3, XF + 4 * t, XF + 4 * t + 3, c))
    rnd_pair(16, 17, 16, 17, 26)
    rnd_pair(18, 19, 18, 19, 27)
    I("v_lshlrev_b32 v28, 16, v24\nv_and_b32 v29, 0xffff0000, v24\nv_lshlrev_b32 v30, 16, v25\nv_and_b32 v31, 0xffff0000, v25")
    for r in range(4): I("v_add_f32 v%d, v%d, v%d" % (16 + r, 16 + r, 28 + r))
    rnd_pair(16, 17, 16, 17, 26)
    rnd_pair(18, 19, 18, 19, 27)
    k0 = -2.0 * 0.7978845608028654 * 1.4426950408889634
    k1 = k0 * 0.044715
    I("s_mov_b32 s10, 0x%08x\ns_mov_b32 s11, 0x%08x" % (f2u(k0), f2u(k1)))
    I("v_mov_b32 v32, s10")
    for r in range(4):
        I("v_mul_f32 v%d, v%d, v%d" % (28 + r, 16 + r, 16 + r))
        I("v_fma_f32 v%d, v%d, s11, v32" % (28 + r, 28 + r))
        I("v_mul_f32 v%d, v%d, v%d" % (28 + r, 28 + r, 16 + r))
    for r in range(4): I("v_exp_f32 v%d, v%d" % (28 + r, 28 + r))
    for r in range(4): I("v_add_f32 v%d, 1.0, v%d" % (28 + r, 28 + r))
    for r in range(4): I("v_rcp_f32 v%d, v%d" % (28 + r, 28 + r))
    for r in range(4): I("v_mul_f32 v%d, v%d, v%d" % (16 + r, 16 + r, 28 + r))
    I("v_cvt_pk_bf16_f32 v20, v16, v17\nv_cvt_pk_bf16_f32 v21, v18, v19")
    I("v_lshlrev_b32 v14, 5, v2\nv_lshl_add_u32 v14, v3, 3, v14\nv_add_u32 v14, %d, v14" % SG)
    I("ds_write_b64 v14, v[20:21]")
    I("v_lshlrev_b32 v14, 3, v0\nv_add_u32 v14, %d, v14" % SG)
    I("ds_read_b64 v[24:25], v14")
    I("v_lshrrev_b32 v14, 2, v0\nv_mul_u32_u24 v14, 7168, v14\nv_and_b32 v15, 3, v0\nv_lshl_add_u32 v14, v15, 4, v14\nv_cmp_gt_u32 vcc, 32, v0\nv_cndmask_b32 v14, v13, v14, vcc")
    I("s_lshl_b32 s10, s69, 6\ns_add_u32 s10, s10, %d" % HBUF)
    I("v_mov_b32 v21, s44\nv_mov_b32 v23, s44")
    I("s_waitcnt lgkmcnt(0)")
    I("v_mov_b32 v20, v24\nv_mov_b32 v22, v25")
    I("buffer_store_dwordx4 v[20:23], v14, s[60:63], s10 offen @STAh@")
    if cfg.qh_cond: sk_ = if_not_local(26)
    I("s_add_u32 s11, s10, %d" % DUP)
    I("buffer_store_dwordx4 v[20:23], v14, s[60:63], s11 offen @ST@")
    if cfg.qh_cond: L(sk_)
    STAMP_(6)
    L("L_softmax")
    C("softmax for head (wave-6); wave 6 gathers the scores and hands the raw words to wave 7 through LDS")
    I("v_lshlrev_b32 v15, 4, v0\nv_add_u32 v15, %d, v15" % SG)
    I("s_cmp_eq_u32 s3, 6\ns_cbranch_scc0 L_sm_w7")
    wait_flag(4, FO(F_T2), 256, 26)
    STAMP_(3)
    I("s_lshl_b32 s10, s4, 3\ns_add_u32 s10, s10, s5\ns_lshl_b32 s10, s10, 13\ns_add_u32 s10, s10, %d\ns_add_u32 s11, s10, 4096" % SBUF)
    I("v_lshlrev_b32 v14, 4, v0")
    def iss():
        for i in range(8):
            I("buffer_load_dwordx4 v[%d:%d], v14, s[60:63], s%d offen offset:%d @LD@" % (64 + 4 * i, 64 + 4 * i + 3, 10 + i // 4, (i % 4) * 1024))
    tags = []
    for k in range(8): tags += [64 + 4 * k + 1, 64 + 4 * k + 3]
    poll(iss, tags, 26, 27, after_first=lambda: (STAMP_(7), set_flag_add(4, FO(F_SP), 5)), dual=(['s10', 's11'] if 's' in lh else None))
    if cfg.stamps:
        I("s_sub_u32 s86, %d, s45\ns_mov_b32 s87, 0" % (cfg.maxpoll + 1))
    for i in range(8):
        I("v_mov_b32 v%d, v%d\nv_mov_b32 v%d, v%d" % (96 + 2 * i, 64 + 4 * i, 96 + 2 * i + 1, 64 + 4 * i + 2))
    for q in range(4):
        I("ds_write_b128 v15, v[%d:%d] offset:%d" % (96 + 4 * q, 96 + 4 * q + 3, 1024 * q))
    set_flag_add(4, FO(F_G), 5)
    I("s_branch L_sm_go")
    L("L_sm_w7")
    if cfg.local:
        C("wave 7 checks whether the hand-off group sits on one die")
        wait_flag(4, FO(F_T1), 256, 26)
        if cfg.die_by == 'S3': die_check("a")
    if 's' in lh:
        C("write-through copy of this workgroup's scores (unless the group is on one die)")
        skw7 = if_not_local(26)
        wait_flag(4, FO(F_S), 256, 26)
        I("v_lshlrev_b32 v9, 2, v0\nv_add_u32 v9, %d, v9" % SL)
        for w in range(4): I("ds_read_b32 v%d, v9 offset:%d" % (32 + 2 * w, 256 * w))
        I("v_lshlrev_b32 v10, 11, v3\nv_lshl_add_u32 v10, v2, 3, v10")
        I("s_lshl_b32 s10, s4, 3\ns_add_u32 s10, s10, s5\ns_lshl_b32 s10, s10, 13\ns_lshl_b32 s11, s6, 9\ns_add_u32 s10, s10, s11\ns_add_u32 s10, s10, %d" % (SBUF + DUP))
        for w in range(4): I("v_mov_b32 v%d, s44" % (33 + 2 * w))
        I("s_waitcnt lgkmcnt(0)")
        for w in range(4):
            I("buffer_store_dwordx2 v[%d:%d], v10, s[60:63], s10 offen offset:%d @ST@" % (32 + 2 * w, 33 + 2 * w, 128 * w))
        L(skw7)
    wait_flag(4, FO(F_G), 1, 26)
    for q in range(4):
        I("ds_read_b128 v[%d:%d], v15 offset:%d" % (96 + 4 * q, 96 + 4 * q + 3, 1024 * q))
    I("s_waitcnt lgkmcnt(0)")
    L("L_sm_go")
    STAMP_(4)
    I("s_mov_b32 s12, 0x01000c0c\ns_cmp_eq_u32 s3, 6\ns_cselect_b32 s12, s12, 0x03020c0c")
    F = 128
    for i in range(16):
        I("v_perm_b32 v%d, v%d, v%d, s12" % (F + i, 96 + i, 96 + i))
    I("v_max3_f32 v16, v%d, v%d, v%d" % (F, F + 1, F + 2))
    for k in range(3, 15, 2): I("v_max3_f32 v16, v16, v%d, v%d" % (F + k, F + k + 1))
    I("v_max_f32 v16, v16, v%d" % (F + 15))
    wave_reduce("v_max_f32", 16, 17)
    cexp = 1.4426950408889634 / 16.0
    I("s_mov_b32 s13, 0x%08x" % f2u(cexp))
    I("v_mul_f32 v16, s13, v16\nv_sub_f32 v16, 0, v16")
    for k in range(16): I("v_fma_f32 v%d, v%d, s13, v16" % (F + k, F + k))
    for k in range(16): I("v_exp_f32 v%d, v%d" % (F + k, F + k))
    I("v_add_f32 v17, v%d, v%d" % (F, F + 1))
    I("v_add_f32 v18, v%d, v%d" % (F + 2, F + 3))
    for k in range(4, 16, 2):
        I("v_add_f32 v17, v17, v%d\nv_add_f32 v18, v18, v%d" % (F + k, F + k + 1))
    I("v_add_f32 v17, v17, v18")
    wave_reduce("v_add_f32", 17, 18)
    I("v_rcp_f32 v17, v17")
    for k in range(16): I("v_mul_f32 v%d, v%d, v17" % (F + k, F + k))
    for i in range(8): I("v_cvt_pk_bf16_f32 v%d, v%d, v%d" % (64 + i, F + 2 * i, F + 2 * i + 1))
    I("s_sub_u32 s12, s3, 6\ns_lshl_b32 s12, s12, 11\ns_add_u32 s12, s12, %d" % PL)
    I("v_lshlrev_b32 v15, 2, v0\nv_add_u32 v15, s12, v15")
    for i in range(8): I("ds_write_b32 v15, v%d offset:%d" % (64 + i, 256 * i))
    set_flag_add(4, FO(F_P), 5)
    STAMP_(5)

    L("L_outproj")
    BF = 128
    I("s_cmp_eq_u32 s3, 5\ns_cbranch_scc1 L_s1_tail")
    I("s_cmp_ge_u32 s3, 6\ns_cbranch_scc1 L_s23_end")
    C("wave 4: preload wo fragments for four 16-column tiles")
    wait_flag(4, FO(F_WO), 1, 26)
    I("v_lshrrev_b32 v8, 2, v2\nv_lshl_add_u32 v8, v3, 3, v8\nv_lshlrev_b32 v8, 7, v8\nv_add_u32 v8, v8, v7")
    if WOT: I("v_add_u32 v8, %d, v8" % WOT)
    for t in range(4):
        for tt in range(4):
            r = BF + 4 * (t * 4 + tt)
            I("ds_read_b64_tr_b16 v[%d:%d], v8 offset:%d" % (r, r + 1, t * 4096 + tt * 32))
            I("ds_read_b64_tr_b16 v[%d:%d], v8 offset:%d" % (r + 2, r + 3, t * 4096 + tt * 32 + 512))
    I("v_mov_b32 v13, %d" % OOB)
    I("v_lshlrev_b32 v10, 4, v0")
    I("s_lshl_b32 s10, s7, 12\ns_add_u32 s10, s10, %d" % OBUF)
    I("s_lshl_b32 s11, s4, 9\nv_add_u32 v11, s11, v10\nv_cmp_gt_u32 vcc, 32, v0\nv_cndmask_b32 v11, v13, v11, vcc")
    I("v_and_b32 v12, 31, v0\nv_lshlrev_b32 v12, 4, v12\nv_add_u32 v12, %d, v12" % OA)
    I("v_lshrrev_b32 v9, 5, v0\nv_mul_u32_u24 v9, 272, v9\nv_and_b32 v15, 31, v0\nv_lshl_add_u32 v9, v15, 3, v9\nv_add_u32 v9, %d, v9" % OG)
    I("v_and_b32 v15, 7, v2\nv_mul_u32_u24 v15, 272, v15\nv_lshl_add_u32 v15, v3, 4, v15\nv_add_u32 v15, %d, v15" % OG)
    I("v_and_b32 v14, 1, v3\nv_mul_u32_u24 v14, %d, v14\nv_lshrrev_b32 v16, 1, v3\nv_lshl_add_u32 v14, v16, 12, v14\nv_lshl_add_u32 v14, v2, 3, v14" % (4 * 28 * 4096))
    I("s_lshl_b32 s11, s4, 14\ns_lshl_b32 s13, s7, 7\ns_add_u32 s11, s11, s13\ns_add_u32 s11, s11, %d" % PBUF)
    I("s_mov_b32 s48, 0\ns_mov_b32 s49, -1")
    for k in range(8): I("v_mov_b32 v%d, s44" % (193 + 2 * k))
    I("v_mov_b32 v57, s44\nv_mov_b32 v59, s44")
    I("v_mov_b32 v60, v50\nv_mov_b32 v61, v53\nv_mov_b32 v62, v54\nv_mov_b32 v63, 0\nv_lshlrev_b32 v16, 4, v0\nv_add_u32 v16, %d, v16" % FIN)
    I("s_mov_b64 exec, 0xff\nds_write_b128 v16, v[60:63]\ns_mov_b64 exec, -1")
    I("s_waitcnt lgkmcnt(0)")
    STAMP_(9)
    I("s_barrier")
    STAMP_(10)
    C("reduce the four o partials, round, publish")
    for w in range(4):
        I("ds_read_b128 v[%d:%d], v12 offset:%d" % (64 + 4 * w, 64 + 4 * w + 3, 512 * w))
    I("s_waitcnt lgkmcnt(2)")
    I("v_pk_add_f32 v[64:65], v[64:65], v[68:69]\nv_pk_add_f32 v[66:67], v[66:67], v[70:71]")
    I("s_waitcnt lgkmcnt(0)")
    I("v_pk_add_f32 v[72:73], v[72:73], v[76:77]\nv_pk_add_f32 v[74:75], v[74:75], v[78:79]")
    I("v_pk_add_f32 v[64:65], v[64:65], v[72:73]\nv_pk_add_f32 v[66:67], v[66:67], v[74:75]")
    I("v_cvt_pk_bf16_f32 v56, v64, v65\nv_cvt_pk_bf16_f32 v58, v66, v67")
    I("buffer_store_dwordx4 v[56:59], v11, s[60:63], s10 offen @STAo@")
    STAMP_(11)
    I("s_cmp_eq_u32 s4, 7\ns_cbranch_scc1 L_noproj")
    def iss():
        for k in range(4):
            I("buffer_load_dwordx4 v[%d:%d], v10, s[60:63], s10 offen offset:%d @LD@" % (64 + 4 * k, 64 + 4 * k + 3, 1024 * k))
    tags = []
    for k in range(4): tags += [64 + 4 * k + 1, 64 + 4 * k + 3]
    poll(iss, tags, 26, 27, backoff=cfg.tail_backoff, dual=(['s10'] if 'o' in lh else None))
    if not cfg.dbg_start: STAMP_(12)
    for k in range(4):
        I("ds_write2_b32 v9, v%d, v%d offset0:%d offset1:%d" % (64 + 4 * k, 64 + 4 * k + 2, 136 * k, 136 * k + 1) if 136 * k + 1 < 256 else
          "v_add_u32 v9, %d, v9\nds_write2_b32 v9, v%d, v%d offset0:%d offset1:%d" % (544 * 2 if k == 2 else 0, 64 + 4 * k, 64 + 4 * k + 2, 136 * (k - 2), 136 * (k - 2) + 1) if k == 2 else
          "ds_write2_b32 v9, v%d, v%d offset0:%d offset1:%d" % (64 + 4 * k, 64 + 4 * k + 2, 136 * (k - 2), 136 * (k - 2) + 1))
    I("s_waitcnt lgkmcnt(0)")
    for t in range(4):
        I("ds_read_b128 v[%d:%d], v15 offset:%d" % (96 + 4 * t, 96 + 4 * t + 3, 64 * t))
    for t in range(4):
        I("s_waitcnt lgkmcnt(%d)" % (3 - t))
        for tt in range(4):
            r = BF + 4 * (t * 4 + tt); d = 16 + 4 * tt
            c = "0" if t == 0 else "v[%d:%d]" % (d, d + 3)
            I("v_mfma_f32_16x16x32_bf16 v[%d:%d], v[%d:%d], v[%d:%d], %s" % (d, d + 3, 96 + 4 * t, 96 + 4 * t + 3, r, r + 3, c))
    for p in range(2):
        for r in range(4):
            k = p * 4 + r
            I("v_cndmask_b32 v%d, v%d, v%d, s[48:49]" % (192 + 2 * k, 16 + 8 * p + r, 16 + 8 * p + 4 + r))
        for r in range(4):
            k = p * 4 + r
            I("s_add_u32 s13, s11, %d" % (r * 28 * 4096 + p * 2 * 4096))
            I("buffer_store_dwordx2 v[%d:%d], v14, s[60:63], s13 offen @ST@" % (192 + 2 * k, 193 + 2 * k))
    L("L_noproj")
    set_flag_add(4, FO(F_PUB), 5)
    if not cfg.dbg_start: STAMP_(13)
    I("s_branch L_sdone")
    L("L_s1_tail")
    I("v_mov_b32 v13, %d" % OOB)
    if 'o' in lh:
        I("v_lshlrev_b32 v10, 4, v0\ns_lshl_b32 s10, s7, 12\ns_add_u32 s10, s10, %d" % (OBUF + DUP))
        I("s_lshl_b32 s11, s4, 9\nv_add_u32 v11, s11, v10\nv_cmp_gt_u32 vcc, 32, v0\nv_cndmask_b32 v11, v13, v11, vcc")
        I("v_and_b32 v12, 31, v0\nv_lshlrev_b32 v12, 4, v12\nv_add_u32 v12, %d, v12" % OA)
        I("v_mov_b32 v57, s44\nv_mov_b32 v59, s44")
    I("s_mul_i32 s12, s4, 28\ns_add_u32 s12, s12, s7\ns_lshl_b32 s12, s12, 12\ns_add_u32 s12, s12, %d" % PBUF)
    I("v_lshlrev_b32 v14, 4, v0")
    I("v_and_b32 v15, 7, v0\nv_lshlrev_b32 v15, 4, v15\nv_add_u32 v15, %d, v15" % FIN)
    srd(48, 38, 39, "7168")
    I("v_lshlrev_b32 v9, 2, v0\nv_cmp_gt_u32 vcc, 8, v0\nv_cndmask_b32 v9, v13, v9, vcc")
    I("s_mul_i32 s13, s4, 896\ns_lshl_b32 s14, s7, 5\ns_add_u32 s13, s13, s14")
    I("s_waitcnt vmcnt(0) lgkmcnt(0)")
    I("s_barrier")
    if 'o' in lh:
        C("write-through copy of o (unless the group is on one die)")
        sk_ = if_not_local(26)
        for w in range(4):
            I("ds_read_b128 v[%d:%d], v12 offset:%d" % (64 + 4 * w, 64 + 4 * w + 3, 512 * w))
        I("s_waitcnt lgkmcnt(0)")
        I("v_pk_add_f32 v[64:65], v[64:65], v[68:69]\nv_pk_add_f32 v[66:67], v[66:67], v[70:71]")
        I("v_pk_add_f32 v[72:73], v[72:73], v[76:77]\nv_pk_add_f32 v[74:75], v[74:75], v[78:79]")
        I("v_pk_add_f32 v[64:65], v[64:65], v[72:73]\nv_pk_add_f32 v[66:67], v[66:67], v[74:75]")
        I("v_cvt_pk_bf16_f32 v56, v64, v65\nv_cvt_pk_bf16_f32 v58, v66, v67")
        I("buffer_store_dwordx4 v[56:59], v11, s[60:63], s10 offen @ST@")
        I("s_waitcnt vmcnt(0)")
        L(sk_)
    I("s_cmp_ge_u32 s7, 28\ns_cbranch_scc1 L_sdone")
    I("ds_read_b128 v[48:51], v15")
    if cfg.pub_wait: wait_flag(4, FO(F_PUB), 1, 26)
    if not cfg.fin_mask:
        C("final gather: two register sets polled alternately")
        def iss(base):
            for i in range(4):
                I("buffer_load_dwordx4 v[%d:%d], v14, s[60:63], s12 offen offset:%d @LD@" % (base + 4 * i, base + 4 * i + 3, 1024 * i))
        I("s_mov_b32 s45, %d" % cfg.maxpoll)
        iss(64)
        if cfg.stagger: I("s_sleep %d" % cfg.stagger)
        L("L_fin_loop")
        iss(80)
        I("s_waitcnt vmcnt(4)")
        check_tags([65, 67, 69, 71, 73, 75, 77, 79], 26, 27)
        I("s_cbranch_scc1 L_fin_ok")
        iss(64)
        I("s_waitcnt vmcnt(4)")
        check_tags([81, 83, 85, 87, 89, 91, 93, 95], 26, 27)
        I("s_cbranch_scc1 L_fin_ok1")
        I("s_sub_u32 s45, s45, 1\ns_cmp_lg_u32 s45, 0\ns_cbranch_scc1 L_fin_loop")
        I("s_branch L_fin_ok")
        L("L_fin_ok1")
        I("v_add_f32 v16, v80, v84\nv_add_f32 v18, v82, v86\nv_add_f32 v17, v88, v92\nv_add_f32 v19, v90, v94")
        I("s_branch L_fin_sum")
        L("L_fin_ok")
        I("v_add_f32 v16, v64, v68\nv_add_f32 v18, v66, v70\nv_add_f32 v17, v72, v76\nv_add_f32 v19, v74, v78")
    else:
        C("final gather: after the first pass only the lanes whose granules are still missing are read again")
        I("s_mov_b32 s45, %d" % cfg.maxpoll)
        for i in range(4):
            I("buffer_load_dwordx4 v[%d:%d], v14, s[60:63], s12 offen offset:%d @LD@" % (64 + 4 * i, 64 + 4 * i + 3, 1024 * i))
        L("L_fin_loop")
        I("s_waitcnt vmcnt(0)")
        for i in range(4):
            I("v_cmp_ne_u32 s[%d:%d], s44, v%d" % (16 + 4 * i, 17 + 4 * i, 65 + 4 * i))
            I("v_cmp_ne_u32 s[%d:%d], s44, v%d" % (18 + 4 * i, 19 + 4 * i, 67 + 4 * i))
        for i in range(4):
            I("s_or_b64 s[%d:%d], s[%d:%d], s[%d:%d]" % (16 + 4 * i, 17 + 4 * i, 16 + 4 * i, 17 + 4 * i, 18 + 4 * i, 19 + 4 * i))
        I("s_or_b64 s[18:19], s[16:17], s[20:21]\ns_or_b64 s[22:23], s[24:25], s[28:29]\ns_or_b64 s[18:19], s[18:19], s[22:23]")
        I("s_cbranch_scc0 L_fin_ok")
        for i in range(4):
            sk = lab("fm")
            I("s_mov_b64 exec, s[%d:%d]" % (16 + 4 * i, 17 + 4 * i))
            I("s_cbranch_execz %s" % sk)
            I("buffer_load_dwordx4 v[%d:%d], v14, s[60:63], s12 offen offset:%d @LD@" % (64 + 4 * i, 64 + 4 * i + 3, 1024 * i))
            L(sk)
        I("s_mov_b64 exec, -1")
        if cfg.fin_sleep: I("s_sleep %d" % cfg.fin_sleep)
        I("s_sub_u32 s45, s45, 1\ns_cmp_lg_u32 s45, 0\ns_cbranch_scc1 L_fin_loop")
        I("s_waitcnt vmcnt(0)")
        L("L_fin_ok")
        I("v_add_f32 v16, v64, v68\nv_add_f32 v18, v66, v70\nv_add_f32 v17, v72, v76\nv_add_f32 v19, v74, v78")
    L("L_fin_sum")
    STAMP_(14)
    I("v_add_f32 v16, v16, v17\nv_add_f32 v18, v18, v19")
    red8(16, 24); red8(18, 25)
    rnd_pair(16, 18, 16, 18, 26)
    I("s_waitcnt lgkmcnt(0)")
    I("v_mul_f32 v16, v16, v48\nv_mul_f32 v18, v18, v48")
    rnd_pair(16, 18, 16, 18, 26)
    I("v_add_f32 v16, v16, v49\nv_add_f32 v18, v18, v50")
    I("v_cvt_pk_bf16_f32 v16, v16, v18")
    I("buffer_store_dword v16, v9, s[48:51], s13 offen%s" % cfg.out_fl)
    C("epoch update by workgroup 0")
    I("s_cmp_eq_u32 s2, 0\ns_cbranch_scc0 L_sdone")
    I("v_mov_b32 v16, s44\nv_mov_b32 v14, %d\nv_cmp_eq_u32 vcc, 0, v0\nv_cndmask_b32 v14, v13, v14, vcc" % EPOCH)
    I("buffer_store_dword v16, v14, s[60:63], 0 offen @ST@")
    I("s_branch L_sdone")
    L("L_s23_end")
    I("s_barrier")
    L("L_sdone")
    STAMP_(15)
    stamps_out()
    L("L_end")
    I("s_endpgm")

    secs = {}; order_seen = []; cur = "entry"; secs[cur] = []; order_seen.append(cur)
    for ln in e.lines:
        if ln.startswith(";@SEC "):
            cur = ln[6:].strip(); secs[cur] = []; order_seen.append(cur)
        else: secs[cur].append(ln)
    first = ["entry", "svc", "s3start", "s2start", "s1start"]
    rest = [x for x in order_seen if x not in first]
    e.lines = []
    for x in first + rest: e.lines += secs[x]
    if cfg.noB:
        def dropB(l):
            if '@ST@' not in l: return False
            if 'q' in cfg.noB and ('v[56:59], v14' in l): return True
            if 'h' in cfg.noB and 'v[20:23], v14' in l: return True
            if 's' in cfg.noB and 'v10, s[60:63], s10 offen offset' in l: return True
            if 'o' in cfg.noB and 'v[56:59], v11' in l: return True
            return False
        e.lines = [l for l in e.lines if not dropB(l)]
    e.lines = [l.replace('@LD@', cfg.ldf).replace('@STAq@', cfg.stl if 'q' in lh else cfg.stf).replace('@STAh@', cfg.stl if 'h' in lh else cfg.stf).replace('@STAs@', cfg.stl if 's' in lh else cfg.stf).replace('@STAo@', cfg.stl if 'o' in lh else cfg.stf).replace('@ST@', cfg.stf).rstrip() for l in e.lines]
    body = e.finalize()
    hdr = open('gated_mix__sliding_block_cached__mixer_channel_mlp__decode.s.ref').read().split('\n')
    head = [l for l in hdr if l.startswith(';') and '@launch' not in l and 'Override launch' not in l]
    txt = "\n".join(head) + "\n; @launch grid=(256,1,1) block=(512,1,1) lds=%d\n" % LDS_SIZE
    txt += '.amdgcn_target "amdgcn-amd-amdhsa--gfx950"\n.text\n.globl %s\n.p2align 8\n.type %s,@function\n%s:\n' % (NAME, NAME, NAME)
    txt += body
    txt += '.section .rodata,"a"\n.p2align 6\n.amdhsa_kernel %s\n' % NAME
    txt += "  .amdhsa_next_free_vgpr 256\n  .amdhsa_next_free_sgpr 102\n  .amdhsa_accum_offset 256\n  .amdhsa_group_segment_fixed_size 0\n  .amdhsa_kernarg_size 112\n  .amdhsa_user_sgpr_count 2\n  .amdhsa_user_sgpr_kernarg_segment_ptr 1\n  .amdhsa_system_sgpr_workgroup_id_x 1\n.end_amdhsa_kernel\n"
    return txt

if __name__ == "__main__":
    cfg = Cfg()
    out = sys.argv[1] if len(sys.argv) > 1 else "gated_mix__sliding_block_cached__mixer_channel_mlp__decode.s"
    for a in sys.argv[2:]:
        k, v = a.split("=")
        setattr(cfg, k, eval(v))
    open(out, "w").write(gen(cfg))
    print("written", out)
```

```python
import sys, struct
from emit import Emitter

NAME = "gated_mix__sliding_block_cached__mixer_channel_mlp__decode_kernel"

WOT  = 0
WQT  = 16384
W1T  = WQT + 14336
W2T  = WQT + 28672
XL   = W2T + 7168
YL   = XL + 7168
QL   = YL + 7296
PL   = QL + 1024
OA   = PL + 4096
HL   = OA + 2048
OG   = HL + 2176
SG   = OG + 2176
SL   = SG + 4096
FIN  = SL + 1024
FLG  = FIN + 128
F_Q, F_Y, F_S, F_P, F_WO, F_T1, F_T2, F_X, F_SP, F_K, F_G, F_LOC, F_LATE, F_PUB = [FLG + 4 * i for i in range(14)]
LDS_SIZE = FLG + 64
EPOCH = 0
QBUF = 4096
HBUF = QBUF + 131072
SBUF = 0x30000
MBUF = 0xB0000
PBUF = 0x120000
OBUF = 0x200000
XBUF = 0x220000
TBUF = 0x228000
STAMP = 0x230000
DUP = 0x400000
WS_RANGE = 0x800000
OOB = 0x7FFF0000

def f2u(x): return struct.unpack('<I', struct.pack('<f', x))[0]

class Cfg:
    wk = 9
    wv = 6
    nt_kv = " nt"
    nt_w = " nt"
    nt_wo = " nt"
    stamps = False
    qpos = 38
    sched = None
    pat = 'VW' * 8 + 'WWV' * 10 + 'V' * 14
    maxpoll = 20000
    prio = 3
    fin_mask = False
    fin_sleep = 0
    out_fl = ''
    pub_wait = True
    stagger = 6
    lh = 'o'
    late_win = 0
    late_slot = 10
    late_cnt = 5
    x_late = False
    dbg_start = False
    hack_nop = False
    local = True
    qh_cond = False
    die_by = 'S3'
    perm = False
    die_tries = 4
    bper = 16
    noB = ''
    free_flag = 'F_G'
    nofree = False
    ldf = 'sc1'
    stf = 'sc1'
    stl = ''
    code_pf = 0
    pf_mask = 31
    pf_skip = 1024
    wo_by = 'S1'
    tq_swap = True
    w2_win = 7
    wo_win = 6
    w2_trig = None
    wo_trig = None
    kflag_slot = 31
    pretouch = False
    tail_backoff = 0
    wo_rot = True
    s0_w = 'after_q'
    mapping = 'ps'
    s0_early_bar = False
    h_trig = 'F_T1'
    wk_pre = 2
    late_tiles = True
    t1 = 20
    t2 = 46
    backoff = 4

def default_sched(cfg):
    s = [('K', n // 8, n % 8) for n in range(32)]
    s += [('V', T, j) for T in range(4) for j in range(8)]
    return s

def gen(cfg):
    lh = cfg.lh if cfg.local else ''
    if cfg.mapping != 'kx': assert 'q' not in lh and 's' not in lh
    cfg.noB = ''.join(c for c in 'qhso' if c not in lh) + cfg.noB
    cfg.local = bool(lh)
    e = Emitter(); I = e.I; L = e.L; C = e.C
    nst = [0]
    def STAMP_(i):
        if cfg.stamps: I("s_memrealtime s[%d:%d]" % (70 + 2 * i, 71 + 2 * i))
    def stamps_out():
        if not cfg.stamps: return
        I("s_waitcnt vmcnt(0) lgkmcnt(0)")
        I("s_lshl_b32 s8, s2, 3\ns_add_u32 s8, s8, s3\ns_lshl_b32 s8, s8, 7\ns_add_u32 s8, s8, %d" % STAMP)
        I("v_mov_b32 v1, 0")
        I("s_mov_b64 exec, 1")
        for k in range(8):
            for q in range(4): I("v_mov_b32 v%d, s%d" % (4 + q, 70 + 4 * k + q))
            I("buffer_store_dwordx4 v[4:7], v1, s[60:63], s8 offen offset:%d" % (16 * k))
            I("s_nop 1")
        I("s_waitcnt vmcnt(0)")
    uid = [0]
    def lab(p):
        uid[0] += 1
        return "L_%s_%d" % (p, uid[0])
    def srd(n, lo, hi, nrec):
        I("s_mov_b32 s%d, s%d\ns_mov_b32 s%d, s%d\ns_mov_b32 s%d, %s\ns_mov_b32 s%d, 0x20000" % (n, lo, n + 1, hi, n + 2, nrec, n + 3))
    def srd_add(n, lo, hi, off_sgpr, nrec):
        I("s_add_u32 s%d, s%d, %s\ns_addc_u32 s%d, s%d, 0\ns_mov_b32 s%d, %s\ns_mov_b32 s%d, 0x20000" % (n, lo, off_sgpr, n + 1, hi, n + 2, nrec, n + 3))
    def wait_flag(addr_v, off, val, tmpv, cmp="ge"):
        lp = lab("fl"); dn = lab("fld")
        I("s_mov_b32 s45, 0x100000")
        L(lp)
        I("ds_read_b32 v%d, v%d offset:%d" % (tmpv, addr_v, off))
        I("s_waitcnt lgkmcnt(0)")
        I("v_readfirstlane_b32 s46, v%d" % tmpv)
        I("s_cmp_ge_u32 s46, %d" % val)
        I("s_cbranch_scc1 %s" % dn)
        I("s_sub_u32 s45, s45, 1")
        I("s_cmp_lg_u32 s45, 0")
        I("s_cbranch_scc1 %s" % lp)
        L(dn)
    def set_flag_add(addr_v, off, onev):
        I("ds_add_u32 v%d, v%d offset:%d" % (addr_v, onev, off))
    def check_tags(tags, vmin, vmax, lanemask=None):
        t = list(tags)
        if len(t) % 2 == 1: t.append(t[-1])
        I("v_min_u32 v%d, v%d, v%d" % (vmin, t[0], t[1]))
        I("v_max_u32 v%d, v%d, v%d" % (vmax, t[0], t[1]))
        for k in range(2, len(t), 2):
            I("v_min3_u32 v%d, v%d, v%d, v%d" % (vmin, vmin, t[k], t[k + 1]))
            I("v_max3_u32 v%d, v%d, v%d, v%d" % (vmax, vmax, t[k], t[k + 1]))
        I("v_cmp_ne_u32 vcc, s44, v%d" % vmin)
        I("v_cmp_ne_u32 s[46:47], s44, v%d" % vmax)
        I("s_or_b64 vcc, vcc, s[46:47]")
        if lanemask: I("s_and_b64 vcc, vcc, %s" % lanemask)
        I("s_cmp_eq_u64 vcc, 0")
    def dual_pre(tmpv):
        I("ds_read_b32 v%d, v4 offset:%d" % (tmpv, FO(F_LOC)))
        I("s_waitcnt lgkmcnt(0)")
        I("v_readfirstlane_b32 s41, v%d" % tmpv)
        I("s_cmp_ge_u32 s41, 128\ns_cselect_b32 s41, %d, 1" % (cfg.bper - 1))
    def dual_init(bases, pre=True):
        if not bases: return
        I("s_mov_b32 s64, 0")
        if pre: dual_pre(26)
    def dual_next(bases):
        if not bases: return
        I("s_and_b32 s65, s45, s41\ns_cmp_eq_u32 s65, 0\ns_cselect_b32 s65, %d, 0\ns_sub_u32 s66, s65, s64\ns_mov_b32 s64, s65" % DUP)
        for b_ in bases: I("s_add_u32 %s, %s, s66" % (b_, b_))
    def poll(issue, tags, vmin, vmax, lanemask=None, backoff=cfg.backoff, after_first=None, dual=None, dual_pre_done=False):
        lp = lab("pl"); dn = lab("pld")
        I("s_mov_b32 s45, %d" % cfg.maxpoll)
        dual_init(dual, pre=not dual_pre_done)
        if after_first:
            issue(); after_first()
            I("s_branch %s_w" % lp)
        L(lp)
        issue()
        if after_first: L(lp + "_w")
        I("s_waitcnt vmcnt(0)")
        check_tags(tags, vmin, vmax, lanemask)
        I("s_cbranch_scc1 %s" % dn)
        if backoff: I("s_sleep %d" % backoff)
        I("s_sub_u32 s45, s45, 1")
        dual_next(dual)
        I("s_cmp_lg_u32 s45, 0")
        I("s_cbranch_scc1 %s" % lp)
        L(dn)
    def if_not_local(tmpv):
        sk = lab("loc")
        wait_flag(4, FO(F_LOC), 64, tmpv)
        I("s_cmp_ge_u32 s46, 128")
        I("s_cbranch_scc1 %s" % sk)
        return sk
    def rnd_pair(dst_lo, dst_hi, a, b, tmp):
        I("v_cvt_pk_bf16_f32 v%d, v%d, v%d" % (tmp, a, b))
        I("v_lshlrev_b32 v%d, 16, v%d" % (dst_lo, tmp))
        I("v_and_b32 v%d, 0xffff0000, v%d" % (dst_hi, tmp))
    def wave_reduce(op, v, t):
        for mod in ("quad_perm:[1,0,3,2]", "quad_perm:[2,3,0,1]", "row_half_mirror", "row_mirror"):
            I("%s_dpp v%d, v%d, v%d %s row_mask:0xf bank_mask:0xf" % (op, v, v, v, mod))
        for sw in ("v_permlane16_swap_b32", "v_permlane32_swap_b32"):
            I("v_mov_b32 v%d, v%d" % (t, v))
            I("%s v%d, v%d" % (sw, v, t))
            I("%s v%d, v%d, v%d" % (op, v, v, t))

    def tq_calc(dst):
        I("s_lshr_b32 %s, s9, 1" % dst)
        if cfg.tq_swap:
            I("s_and_b32 s46, %s, 6\ns_cmp_eq_u32 s46, 6\ns_cselect_b32 s46, 8, 0\ns_xor_b32 %s, %s, s46" % (dst, dst, dst))

    def wo_tile(skip):
        I("s_cmp_eq_u32 s4, 7\ns_cbranch_scc1 %s" % skip)
        I("s_lshl_b32 s10, s5, 9\ns_lshl_b32 s11, s6, 6\ns_add_u32 s10, s10, s11\ns_mul_i32 s10, s10, 896\ns_lshl_b32 s11, s4, 7\ns_add_u32 s10, s10, s11")
        I("s_sub_u32 s11, %d, s10" % (4096 * 896))
        srd_add(52, 24, 25, "s10", "s11")
        I("v_lshrrev_b32 v9, 3, v0\nv_mul_u32_u24 v9, 896, v9\nv_and_b32 v10, 7, v0\nv_lshl_add_u32 v9, v10, 4, v9")
        if cfg.wo_trig: wait_flag(4, FO(eval(cfg.wo_trig)), 256, 26)
        I("s_mov_b32 m0, %d\ns_mov_b32 s12, 0" % WOT)
        for i in range(16):
            if i >= cfg.wo_win: I("s_waitcnt vmcnt(%d)" % (cfg.wo_win - 1))
            I("buffer_load_dwordx4 v9, s[52:55], s12 offen%s lds" % cfg.nt_wo)
            if i < 15: I("s_add_u32 m0, m0, 1024\ns_add_u32 s12, s12, %d" % (8 * 896 if i != 7 else (256 - 56) * 896))
        I("s_waitcnt vmcnt(0)")

    def dma_loop(n, vreg_, srd_, step, flags, cnt="s13", win=None):
        lp = lab("dma")
        I("s_mov_b32 %s, %d" % (cnt, n))
        L(lp)
        if win: I("s_waitcnt vmcnt(%d)" % (win - 1))
        I("buffer_load_dwordx4 v%d, s[%d:%d], s12 offen%s lds" % (vreg_, srd_, srd_ + 3, flags))
        I("s_add_u32 m0, m0, 1024\ns_add_u32 s12, s12, %d\ns_sub_u32 %s, %s, 1\ns_cmp_lg_u32 %s, 0\ns_cbranch_scc1 %s" % (step, cnt, cnt, cnt, lp))
    def SEC(name): e.lines.append(";@SEC " + name)

    def code_prefetch():
        if not cfg.code_pf: return
        C("a few workgroups pull the kernel's code into L2 (reads only)")
        I("s_and_b32 s10, s9, %d\ns_cmp_eq_u32 s10, %d\ns_cbranch_scc0 L_s1_nopf" % (cfg.pf_mask, cfg.pf_mask))
        I("s_getpc_b64 s[10:11]")
        L("L_pcref")
        I("s_sub_u32 s10, s10, L_pcref-%s\ns_subb_u32 s11, s11, 0" % NAME)
        I("v_lshlrev_b32 v9, 4, v0\nv_add_u32 v9, %d, v9" % cfg.pf_skip)
        for i in range(cfg.code_pf):
            I("global_load_dwordx4 v[64:67], v9, s[10:11]")
            if i < cfg.code_pf - 1: I("v_add_u32 v9, 1024, v9")
        L("L_s1_nopf")

    def die_check(sfx):
        lp = lab("dc"); dn = lab("dcd"); ok = lab("dco")
        I("s_getreg_b32 s67, hwreg(HW_REG_XCC_ID)")
        I("s_lshl_b32 s15, s8, 9\ns_add_u32 s15, s15, %d" % XBUF)
        I("v_mov_b32 v13, %d\nv_lshlrev_b32 v19, 3, v0\nv_cmp_gt_u32 vcc, 32, v0\nv_cndmask_b32 v19, v13, v19, vcc" % OOB)
        I("s_mov_b32 s45, %d" % cfg.die_tries)
        L(lp)
        I("buffer_load_dwordx2 v[20:21], v19, s[60:63], s15 offen @LD@")
        I("s_waitcnt vmcnt(0)")
        I("v_cmp_ne_u32 vcc, s44, v21")
        I("s_cmp_eq_u32 vcc_lo, 0\ns_cbranch_scc1 %s" % ok)
        I("s_sleep 2\ns_sub_u32 s45, s45, 1\ns_cmp_lg_u32 s45, 0\ns_cbranch_scc1 %s" % lp)
        I("s_branch %s" % dn)
        L(ok)
        I("v_cmp_ne_u32 vcc, s67, v20")
        I("s_cmp_eq_u32 vcc_lo, 0\ns_cbranch_scc0 %s" % dn)
        set_flag_add(4, FO(F_LOC), 5)
        L(dn)
        set_flag_add(4, FO(F_LOC), 5)

    I("s_cmp_ge_u32 s2, 256")
    I("s_cbranch_scc1 L_end")
    if cfg.perm:
        I("s_and_b32 s4, s2, 31\ns_lshl_b32 s4, s4, 3\ns_lshr_b32 s2, s2, 5\ns_or_b32 s2, s2, s4")
    I("s_load_dwordx16 s[16:31], s[0:1], 0")
    I("s_load_dwordx8 s[32:39], s[0:1], 64")
    I("s_load_dwordx4 s[40:43], s[0:1], 96")
    if cfg.stamps:
        for k in range(70, 102): I("s_mov_b32 s%d, 0" % k)
    STAMP_(0)
    I("v_lshrrev_b32 v1, 6, v0")
    I("v_and_b32 v0, 63, v0")
    I("v_readfirstlane_b32 s3, v1")
    I("s_lshr_b32 s4, s2, 5")
    if cfg.mapping == "kx":
        I("s_and_b32 s5, s2, 7")
        I("s_bfe_u32 s6, s2, 0x20003")
    else:
        I("s_bfe_u32 s5, s2, 0x30002")
        I("s_and_b32 s6, s2, 3")
    I("s_and_b32 s7, s2, 31")
    I("s_and_b32 s8, s2, 7")
    I("s_lshr_b32 s9, s2, 3")
    I("v_and_b32 v2, 15, v0")
    I("v_lshrrev_b32 v3, 4, v0")
    I("v_mov_b32 v4, %d" % FLG)
    I("v_mov_b32 v5, 1")
    def start_sync():
        I("s_waitcnt lgkmcnt(0)")
        I("s_load_dword s44, s[42:43], %d" % EPOCH)
        srd(60, 42, 43, hex(WS_RANGE))
    def start_wait(): I("s_waitcnt lgkmcnt(0)")
    def start_ws():
        I("s_load_dword s44, s[42:43], %d" % EPOCH)
        srd(60, 42, 43, hex(WS_RANGE))
    def start_bar():
        I("s_barrier")
        STAMP_(1)
    I("s_cmp_ge_u32 s3, 4")
    I("s_cbranch_scc1 L_service")
    FO = lambda f: f - FLG

    C("bulk waves")
    KR = 64; VB = 192; QA = 32; PF = 16; SACC = 224
    vreg = {0: VB, 1: KR, 2: KR + 32, 3: KR + 64}
    TMP = KR + 96
    I("s_lshl_b32 s10, s4, 3\ns_add_u32 s10, s10, s5")
    I("s_lshl_b32 s11, s10, 21\ns_add_u32 s11, s11, %d" % (3072 * 512))
    I("s_lshl_b32 s12, s6, 15\ns_lshl_b32 s13, s3, 13\ns_add_u32 s12, s12, s13")
    I("s_sub_u32 s14, %d, s12" % 524288)
    I("s_add_u32 s12, s12, s11")
    I("s_mov_b32 s64, 0\ns_mov_b32 s65, 0x20000\ns_mov_b32 s66, 0x40000\ns_mov_b32 s67, 0x60000")
    I("v_bfe_u32 v6, v0, 2, 2\nv_lshlrev_b32 v6, 11, v6\nv_lshl_add_u32 v6, v3, 6, v6\nv_and_b32 v7, 3, v0\nv_lshl_add_u32 v6, v7, 4, v6")
    start_wait()
    srd_add(48, 18, 19, "s12", "s14")
    def bulk_setup_b():
        start_ws()
        I("s_lshl_b32 s12, s3, 15\ns_lshl_b32 s13, s6, 7\ns_add_u32 s12, s12, s13")
        I("s_sub_u32 s14, %d, s12" % 524288)
        I("s_add_u32 s12, s12, s11")
        srd_add(52, 20, 21, "s12", "s14")
        I("v_lshrrev_b32 v7, 3, v0\nv_lshlrev_b32 v7, 12, v7\nv_and_b32 v8, 7, v0\nv_lshl_add_u32 v7, v8, 4, v7")
        I("v_lshlrev_b32 v9, 11, v3\nv_lshl_add_u32 v9, v2, 3, v9")
        I("s_lshl_b32 s15, s10, 13\ns_lshl_b32 s12, s6, 9\ns_add_u32 s15, s15, s12\ns_lshl_b32 s12, s3, 7\ns_add_u32 s15, s15, s12\ns_add_u32 s15, s15, %d" % SBUF)
        I("v_bfe_u32 v10, v0, 2, 1\nv_lshlrev_b32 v10, 9, v10\nv_lshl_add_u32 v10, v3, 6, v10\nv_and_b32 v11, 3, v0\nv_lshl_add_u32 v10, v11, 4, v10\nv_add_u32 v10, %d, v10" % QL)
        I("v_bfe_u32 v11, v0, 1, 1\nv_lshlrev_b32 v11, 11, v11\nv_lshl_add_u32 v11, v3, 5, v11\nv_and_b32 v12, 1, v0\nv_lshl_add_u32 v11, v12, 4, v11")
        I("s_lshl_b32 s12, s3, 7\ns_add_u32 s12, s12, %d\nv_add_u32 v11, s12, v11" % PL)
        I("v_and_b32 v12, 7, v0\nv_lshlrev_b32 v12, 5, v12\ns_lshl_b32 s12, s3, 9\ns_add_u32 s12, s12, %d\nv_add_u32 v12, s12, v12" % OA)
        I("v_lshlrev_b32 v14, 2, v0\ns_lshl_b32 s12, s3, 8\ns_add_u32 s12, s12, %d\nv_add_u32 v14, s12, v14" % SL)
        I("s_mov_b32 s68, 0x05040100\ns_mov_b32 s69, 0x07060302")
        I("s_mov_b32 s47, 0")
        I("s_mov_b32 s16, 0xffff0000\ns_mov_b32 s17, 0\ns_mov_b32 s18, 0\ns_mov_b32 s19, 0x0000ffff\ns_mov_b32 s20, 0\ns_mov_b32 s21, 0xffff0000")
        I("s_mov_b32 s22, 0x22222222\ns_mov_b32 s23, 0x22222222\ns_mov_b32 s24, 0x44444444\ns_mov_b32 s25, 0x44444444\ns_mov_b32 s26, 0x88888888\ns_mov_b32 s27, 0x88888888")
        start_bar()
    sched = cfg.sched or default_sched(cfg)
    ops = []
    def outstanding_after(opid):
        return len(ops) - 1 - ops.index(opid)
    def wait_op(opid):
        n = outstanding_after(opid)
        I("s_waitcnt vmcnt(%d)" % min(n, 63))
    tag_ready = [False]
    def ensure_tag():
        if not tag_ready[0]:
            I("s_waitcnt lgkmcnt(0)")
            I("s_mul_i32 s44, s44, 1664525\ns_add_u32 s44, s44, 1013904223")
            I("v_mov_b32 v%d, s44" % (SACC + 5))
            tag_ready[0] = True
    DQ = QA + 8
    def score_tile(T):
        C("scores tile %d" % T)
        wait_op(('K', T, 7))
        for hf in range(2):
            for G in range(4):
                c = "0" if hf == 0 else "v[%d:%d]" % (DQ + 4 * G, DQ + 4 * G + 3)
                r = KR + 32 * T + 4 * (2 * G + hf)
                I("v_mfma_f32_16x16x32_bf16 v[%d:%d], v[%d:%d], v[%d:%d], %s" % (DQ + 4 * G, DQ + 4 * G + 3, QA + 4 * hf, QA + 4 * hf + 3, r, r + 3, c))
        t = QA + 24
        for G in range(4):
            I("v_mov_b32_dpp v%d, v%d quad_perm:[0,0,0,0] row_mask:0xf bank_mask:0xf" % (t + G, DQ + 4 * G))
        for c in range(1, 4):
            for G in range(4):
                I("v_add_f32_dpp v%d, v%d, v%d quad_perm:[%d,%d,%d,%d] row_mask:0xf bank_mask:0xf" % (t + G, DQ + 4 * G + c, t + G, c, c, c, c))
        I("v_cndmask_b32 v%d, v%d, v%d, s[22:23]" % (t, t, t + 1))
        I("v_cndmask_b32 v%d, v%d, v%d, s[24:25]" % (t, t, t + 2))
        I("v_cndmask_b32 v%d, v%d, v%d, s[26:27]" % (t, t, t + 3))
        I("v_mov_b32 v%d, v%d" % (t + 1, t))
        I("v_permlane16_swap_b32 v%d, v%d" % (t, t + 1))
        I("v_cvt_pk_bf16_f32 v%d, v%d, v%d" % (SACC + T, t, t + 1))
        if T == 3:
            I("v_cndmask_b32 v%d, v%d, v%d, s[16:17]" % (SACC + 4, SACC, SACC + 1))
            I("v_cndmask_b32 v%d, v%d, v%d, s[18:19]" % (SACC + 4, SACC + 4, SACC + 2))
            I("v_cndmask_b32 v%d, v%d, v%d, s[20:21]" % (SACC + 4, SACC + 4, SACC + 3))
            I("buffer_store_dwordx2 v[%d:%d], v9, s[60:63], s15 offen @STAs@" % (SACC + 4, SACC + 5))
            if 's' in lh: I("ds_write_b32 v14, v%d" % (SACC + 4))
            ops.append(('S', T))
    first_v = min(i for i, o in enumerate(sched) if o[0] == 'V')
    last_k = max(i for i, o in enumerate(sched) if o[0] == 'K')
    qpos = cfg.qpos
    tiles_done = 0
    scores_flagged = False
    wo_flagged = False
    for si, o in enumerate(sched):
        win = cfg.wk if si <= last_k else cfg.wv
        if si == cfg.wk_pre:
            I("s_branch L_bulk_main"); SEC("bulkmain"); L("L_bulk_main")
            bulk_setup_b()
        if cfg.late_win and si == cfg.late_slot:
            I("ds_read_b32 v13, v4 offset:%d" % FO(F_LATE))
            I("s_waitcnt lgkmcnt(0)")
            I("v_readfirstlane_b32 s40, v13")
        if len(ops) >= win and not (qpos < si <= qpos + 3):
            sk = None
            late = cfg.late_win and si > cfg.late_slot
            if scores_flagged or late:
                sk = lab("sk")
            if scores_flagged:
                I("s_cmp_lg_u32 s47, 0")
                I("s_cbranch_scc1 %s" % sk)
            if late:
                sk2 = lab("sl")
                if len(ops) >= cfg.late_win: I("s_waitcnt vmcnt(%d)" % (cfg.late_win - 1))
                I("s_cmp_lg_u32 s40, 0")
                I("s_cbranch_scc1 %s" % sk2)
            I("s_waitcnt vmcnt(%d)" % (win - 1))
            if late: L(sk2)
            if scores_flagged and si > cfg.t2 and not cfg.nofree:
                I("ds_read_b32 v13, v4 offset:%d" % FO(eval(cfg.free_flag)))
                I("s_waitcnt lgkmcnt(0)")
                I("v_readfirstlane_b32 s46, v13")
                I("s_lshr_b32 s47, s46, 6")
            if sk: L(sk)
        if si == cfg.t1:
            set_flag_add(4, FO(F_T1), 5); STAMP_(10)
        if si == qpos:
            C("wait q")
            STAMP_(2)
            ensure_tag()
            wait_flag(4, FO(F_Q), 1, 13)
            for hf in range(2):
                I("ds_read_b128 v[%d:%d], v10 offset:%d" % (QA + 4 * hf, QA + 4 * hf + 3, 256 * hf))
            I("s_waitcnt lgkmcnt(0)")
            STAMP_(3)
        if si >= qpos and tiles_done < 4:
            T = tiles_done
            score_tile(T); tiles_done += 1
            if tiles_done == 4:
                set_flag_add(4, FO(F_S), 5); scores_flagged = True
                STAMP_(4)
        if si == cfg.t2:
            set_flag_add(4, FO(F_T2), 5); STAMP_(11)
        if o[0] == 'K':
            _, T, t = o
            I("buffer_load_dwordx4 v[%d:%d], v6, s[48:51], s%d offen offset:%d%s" % (KR + 32 * T + 4 * t, KR + 32 * T + 4 * t + 3, 64 + T, 512 * (t // 2) + 256 * (t % 2), cfg.nt_kv))
            if si == cfg.kflag_slot:
                set_flag_add(4, FO(F_K), 5)
            if si == last_k: STAMP_(12)
        elif o[0] == 'V':
            _, T, j = o
            if T >= 1: assert tiles_done > T - 1, "V tile overwrites K tile not yet consumed"
            r = vreg[T] + 4 * j
            I("buffer_load_dwordx4 v[%d:%d], v7, s[52:55], s%d offen offset:%d%s" % (r, r + 3, 64 + T, 512 * j, cfg.nt_kv))
        else:
            i = o[1]
            if i >= 21: assert si > qpos, "wo chunk overlays x before q flag"
            if i % 4 == 0:
                I("s_add_u32 m0, s13, %d" % (i * 1024))
                I("s_mov_b32 s14, %d" % (i * 1024))
            I("buffer_load_dwordx4 v8, s[56:59], s14 offen offset:%d%s lds" % ((i % 4) * 1024, cfg.nt_wo))
        ops.append(o)
    assert tiles_done == 4
    STAMP_(6)
    dstT = {0: TMP, 1: VB, 2: KR, 3: KR + 32}
    def pv_perm(T):
        C("transpose V tile %d" % T)
        wait_op(('V', T, 7))
        R = vreg[T]; Dd = dstT[T]
        for jp in range(8):
            sel = "s68" if jp % 2 == 0 else "s69"
            for i in range(4):
                I("v_perm_b32 v%d, v%d, v%d, %s" % (Dd + 4 * jp + i, R + 4 * (2 * i + 1) + jp // 2, R + 4 * (2 * i) + jp // 2, sel))
    def pv_mfma(T):
        for q in range(8):
            c = "0" if T == 0 else "v[%d:%d]" % (QA + 4 * q, QA + 4 * q + 3)
            I("v_mfma_f32_16x16x32_bf16 v[%d:%d], v[%d:%d], v[%d:%d], %s" % (QA + 4 * q, QA + 4 * q + 3, PF + 4 * T, PF + 4 * T + 3, dstT[T] + 4 * q, dstT[T] + 4 * q + 3, c))
    for T in range(3): pv_perm(T)
    I("ds_read_b32 v13, v4 offset:%d" % FO(F_P))
    I("s_waitcnt lgkmcnt(0)")
    I("v_readfirstlane_b32 s46, v13")
    I("s_lshr_b32 s47, s46, 7")
    if cfg.hack_nop: I("s_mov_b32 s47, 1")
    I("s_cmp_lg_u32 s47, 0")
    I("s_cbranch_scc1 L_p_early")
    pv_perm(3)
    C("wait p")
    wait_flag(4, FO(F_P), 128, 13)
    L("L_p_early")
    for T in range(4):
        I("ds_read_b128 v[%d:%d], v11 offset:%d" % (PF + 4 * T, PF + 4 * T + 3, 512 * T))
    STAMP_(7)
    for T in range(3):
        I("s_waitcnt lgkmcnt(%d)" % (3 - T))
        pv_mfma(T)
    I("s_cmp_lg_u32 s47, 0")
    I("s_cbranch_scc0 L_p_late")
    pv_perm(3)
    L("L_p_late")
    I("s_waitcnt lgkmcnt(0)")
    pv_mfma(3)
    STAMP_(8)
    C("u-sum, pack, write OA")
    OS = 64
    for h in range(2):
        for jp in range(8):
            I("v_add_f32_dpp v%d, v%d, v%d row_ror:8 row_mask:0xf bank_mask:0xf" % (OS + 8 * h + jp, QA + 4 * jp + 2 * h + 1, QA + 4 * jp + 2 * h))
    I("s_mov_b64 exec, 0xff")
    for h in range(2):
        I("ds_write_b128 v12, v[%d:%d] offset:%d" % (OS + 8 * h, OS + 8 * h + 3, 256 * h))
        I("ds_write_b128 v12, v[%d:%d] offset:%d" % (OS + 8 * h + 4, OS + 8 * h + 7, 256 * h + 16))
    I("s_mov_b64 exec, -1")
    I("s_waitcnt lgkmcnt(0)")
    I("s_barrier")
    STAMP_(9)
    stamps_out()
    I("s_endpgm")

    SEC("svc")
    L("L_service")
    if cfg.prio: I("s_setprio %d" % cfg.prio)
    I("s_mov_b32 s14, 0x00ff00ff\ns_mov_b32 s15, 0x00ff00ff")
    I("v_cmp_gt_u32 vcc, 8, v2")
    I("v_lshrrev_b32 v6, 2, v2\nv_lshl_add_u32 v6, v3, 3, v6")
    I("v_and_b32 v7, 3, v2\nv_lshlrev_b32 v7, 3, v7")
    I("v_mul_u32_u24 v8, 896, v6\nv_add_u32 v8, v8, v7")
    I("v_lshl_add_u32 v6, v6, 5, v7")
    I("s_cmp_eq_u32 s3, 7\ns_cbranch_scc1 L_s3")
    I("s_cmp_eq_u32 s3, 6\ns_cbranch_scc1 L_s2_pre")
    I("s_cmp_eq_u32 s3, 5\ns_cbranch_scc1 L_s1")

    XF = 64; AF = 128
    L("L_s0")
    C("S0: wq tile DMA (even idx), gate_w, b2")
    I("v_lshrrev_b32 v9, 2, v0\nv_and_b32 v10, 3, v0\nv_lshlrev_b32 v10, 4, v10")
    I("v_lshl_add_u32 v11, v9, 13, v10")
    tq_calc("s11")
    I("s_lshl_b32 s10, s8, 10\ns_lshl_b32 s11, s11, 6\ns_add_u32 s10, s10, s11")
    I("s_sub_u32 s11, %d, s10" % (448 * 8192))
    I("s_mov_b32 s12, 0\ns_mov_b32 m0, %d" % WQT)
    start_wait()
    if cfg.dbg_start: STAMP_(12)
    I("s_bitcmp1_b32 s9, 0\ns_cbranch_scc1 L_s0_noq1")
    srd_add(48, 22, 23, "s10", "s11")
    dma_loop(28, 11, 48, 0x20000, cfg.nt_w)
    L("L_s0_noq1")
    start_ws()
    if cfg.dbg_start: STAMP_(13)
    start_bar()
    I("s_branch L_s0_main"); SEC("s0main"); L("L_s0_main")
    I("v_mov_b32 v13, %d" % OOB)
    wait_flag(4, FO(F_X), 1, 26)
    I("v_and_b32 v12, 7, v2\nv_mul_u32_u24 v12, 896, v12\nv_lshl_add_u32 v12, v3, 4, v12\nv_add_u32 v12, %d, v12" % XL)
    for t in range(14):
        I("ds_read_b128 v[%d:%d], v12 offset:%d" % (XF + 4 * t, XF + 4 * t + 3, 64 * t))
    I("s_mul_i32 s10, s4, 896\ns_add_u32 s10, s10, %d" % XL)
    I("v_min_u32 v14, 55, v0\nv_lshlrev_b32 v14, 4, v14\nv_add_u32 v14, s10, v14")
    I("ds_read_b128 v[32:35], v14")
    I("s_waitcnt vmcnt(0) lgkmcnt(0)")
    STAMP_(2)
    srd(52, 36, 37, "896")
    I("v_lshlrev_b32 v14, 4, v0\nv_cmp_gt_u32 vcc, 56, v0\nv_cndmask_b32 v14, v13, v14, vcc")
    I("buffer_load_dwordx4 v[36:39], v14, s[52:55], 0 offen")
    srd(56, 34, 35, "896")
    I("v_and_b32 v15, 7, v0\nv_lshlrev_b32 v15, 2, v15\ns_lshl_b32 s10, s7, 5")
    I("buffer_load_dword v52, v15, s[56:59], s10 offen")
    I("s_mul_i32 s44, s44, 1664525\ns_add_u32 s44, s44, 1013904223")
    I("s_bitcmp1_b32 s9, 0\ns_cbranch_scc1 L_s0_noq2")
    I("v_lshrrev_b32 v15, 2, v2\nv_lshl_add_u32 v15, v3, 3, v15\nv_lshlrev_b32 v15, 6, v15\nv_add_u32 v15, v15, v7\nv_add_u32 v15, %d, v15" % WQT)
    for t in range(14):
        for ct in range(2):
            r = AF + 8 * t + 4 * ct
            I("ds_read_b64_tr_b16 v[%d:%d], v15 offset:%d" % (r, r + 1, 2048 * t + 32 * ct))
            I("ds_read_b64_tr_b16 v[%d:%d], v15 offset:%d" % (r + 2, r + 3, 2048 * t + 32 * ct + 256))
    I("s_waitcnt lgkmcnt(0)")
    for t in range(14):
        for ct in range(2):
            d = 16 + 4 * ct
            c = "0" if t == 0 else "v[%d:%d]" % (d, d + 3)
            r = AF + 8 * t + 4 * ct
            I("v_mfma_f32_16x16x32_bf16 v[%d:%d], v[%d:%d], v[%d:%d], %s" % (d, d + 3, r, r + 3, XF + 4 * t, XF + 4 * t + 3, c))
    I("v_lshlrev_b32 v14, 6, v2\nv_lshl_add_u32 v14, v3, 3, v14\nv_add_u32 v14, %d, v14" % OG)
    I("v_cvt_pk_bf16_f32 v56, v16, v17\nv_cvt_pk_bf16_f32 v57, v18, v19\nv_cvt_pk_bf16_f32 v58, v20, v21\nv_cvt_pk_bf16_f32 v59, v22, v23")
    I("ds_write_b64 v14, v[56:57]\nds_write_b64 v14, v[58:59] offset:32")
    I("v_lshlrev_b32 v14, 3, v0\nv_add_u32 v14, %d, v14" % OG)
    I("ds_read_b64 v[60:61], v14")
    I("v_lshrrev_b32 v14, 3, v0\nv_lshlrev_b32 v14, 11, v14\nv_and_b32 v15, 7, v0\nv_lshl_add_u32 v14, v15, 4, v14")
    tq_calc("s11")
    I("s_lshl_b32 s10, s8, 14\ns_lshl_b32 s11, s11, 7\ns_add_u32 s10, s10, s11\ns_add_u32 s10, s10, %d" % QBUF)
    I("v_mov_b32 v57, s44\nv_mov_b32 v59, s44")
    I("s_waitcnt lgkmcnt(0)")
    I("v_mov_b32 v56, v60\nv_mov_b32 v58, v61")
    I("buffer_store_dwordx4 v[56:59], v14, s[60:63], s10 offen @STAq@")
    if cfg.qh_cond: sk_ = if_not_local(26)
    I("s_add_u32 s11, s10, %d" % DUP)
    I("buffer_store_dwordx4 v[56:59], v14, s[60:63], s11 offen @ST@")
    if cfg.qh_cond: L(sk_)
    L("L_s0_noq2")
    STAMP_(3)
    C("gate (lanes >= 56 have gate_w = 0)")
    I("s_waitcnt vmcnt(1)" if False else "s_waitcnt vmcnt(0)")
    for q in range(4):
        I("v_lshlrev_b32 v%d, 16, v%d\nv_and_b32 v%d, 0xffff0000, v%d" % (24 + 2 * q, 32 + q, 25 + 2 * q, 32 + q))
        I("v_lshlrev_b32 v%d, 16, v%d\nv_and_b32 v%d, 0xffff0000, v%d" % (40 + 2 * q, 36 + q, 41 + 2 * q, 36 + q))
    for k in range(8): I("v_mul_f32 v%d, v%d, v%d" % (24 + k, 24 + k, 40 + k))
    for q in range(4): rnd_pair(24 + 2 * q, 25 + 2 * q, 24 + 2 * q, 25 + 2 * q, 32)
    I("v_add_f32 v24, v24, v25\nv_add_f32 v26, v26, v27\nv_add_f32 v28, v28, v29\nv_add_f32 v30, v30, v31")
    I("v_add_f32 v24, v24, v26\nv_add_f32 v28, v28, v30\nv_add_f32 v24, v24, v28")
    wave_reduce("v_add_f32", 24, 25)
    rnd_pair(24, 25, 24, 24, 26)
    I("v_mul_f32 v24, 0x%08x, v24" % f2u(-1.4426950408889634))
    I("v_exp_f32 v24, v24\nv_add_f32 v24, 1.0, v24\nv_rcp_f32 v24, v24")
    rnd_pair(50, 25, 24, 24, 26)
    I("v_sub_f32 v24, 1.0, v50")
    rnd_pair(51, 25, 24, 24, 26)
    STAMP_(4)
    C("q gather")
    wait_flag(4, FO(F_T1), 256, 26)
    I("s_lshl_b32 s10, s5, 3\ns_add_u32 s10, s10, s4\ns_lshl_b32 s10, s10, 11\ns_add_u32 s10, s10, %d" % QBUF)
    I("v_lshlrev_b32 v14, 4, v0")
    STAMP_(5)
    def iss():
        I("buffer_load_dwordx4 v[16:19], v14, s[60:63], s10 offen @LD@")
        I("buffer_load_dwordx4 v[20:23], v14, s[60:63], s10 offen offset:1024 @LD@")
    poll(iss, [17, 19, 21, 23], 26, 27, dual=(['s10'] if 'q' in lh else None))
    if cfg.stamps:
        I("s_sub_u32 s86, %d, s45\ns_mov_b32 s87, 0" % (cfg.maxpoll + 1))
    I("v_lshlrev_b32 v15, 3, v0\nv_add_u32 v15, %d, v15" % QL)
    I("ds_write2_b32 v15, v16, v18 offset0:0 offset1:1")
    I("ds_write2_b32 v15, v20, v22 offset0:128 offset1:129")
    set_flag_add(4, FO(F_Q), 5)
    STAMP_(6)
    if cfg.wo_by == 'S0':
        wo_tile('L_s0_wo')
        L('L_s0_wo')
        set_flag_add(4, FO(F_WO), 5)
    C("MLP partial gather (owners)")
    I("s_cmp_ge_u32 s7, 28\ns_cbranch_scc1 L_s0_nomlp")
    wait_flag(4, FO(F_T2), 256, 26)
    I("s_mul_i32 s10, s4, 28\ns_add_u32 s10, s10, s7\ns_lshl_b32 s10, s10, 11\ns_add_u32 s10, s10, %d" % MBUF)
    I("v_lshlrev_b32 v14, 4, v0")
    def iss():
        I("buffer_load_dwordx4 v[16:19], v14, s[60:63], s10 offen @LD@")
        I("buffer_load_dwordx4 v[20:23], v14, s[60:63], s10 offen offset:1024 @LD@")
    poll(iss, [17, 19, 21, 23], 26, 27)
    I("v_add_f32 v16, v16, v20\nv_add_f32 v18, v18, v22")
    def red8(v, t):
        I("v_add_f32_dpp v%d, v%d, v%d row_ror:8 row_mask:0xf bank_mask:0xf" % (v, v, v))
        for sw in ("v_permlane16_swap_b32", "v_permlane32_swap_b32"):
            I("v_mov_b32 v%d, v%d" % (t, v)); I("%s v%d, v%d" % (sw, v, t)); I("v_add_f32 v%d, v%d, v%d" % (v, v, t))
    red8(16, 24); red8(18, 25)
    rnd_pair(16, 18, 16, 18, 26)
    I("v_lshlrev_b32 v24, 16, v52\nv_and_b32 v25, 0xffff0000, v52")
    I("v_add_f32 v16, v16, v24\nv_add_f32 v18, v18, v25")
    rnd_pair(16, 18, 16, 18, 26)
    I("v_mul_f32 v16, v16, v51\nv_mul_f32 v18, v18, v51")
    rnd_pair(53, 54, 16, 18, 26)
    L("L_s0_nomlp")
    STAMP_(7)
    I("s_branch L_outproj")

    SEC("s1start")
    L("L_s1")
    code_prefetch()
    start_sync()
    if cfg.local:
        C("publish this workgroup's die id")
    if cfg.local:
        I("s_getreg_b32 s67, hwreg(HW_REG_XCC_ID)")
    if cfg.local:
        I("v_mov_b32 v13, %d\nv_mov_b32 v18, 0\nv_cmp_eq_u32 vcc, 0, v0\nv_cndmask_b32 v18, v13, v18, vcc" % OOB)
    if cfg.local:
        I("s_lshl_b32 s10, s8, 9\ns_lshl_b32 s11, s9, 3\ns_add_u32 s11, s11, s10\ns_add_u32 s11, s11, %d" % XBUF)
    I("s_waitcnt lgkmcnt(0)")
    I("s_mul_i32 s44, s44, 1664525\ns_add_u32 s44, s44, 1013904223")
    if cfg.local:
        I("v_mov_b32 v16, s67\nv_mov_b32 v17, s44")
    if cfg.local:
        I("buffer_store_dwordx2 v[16:17], v18, s[60:63], s11 offen @ST@")
    if cfg.late_win:
        C("the first workgroup of each die group announces its start")
        I("s_cmp_eq_u32 s9, 0\ns_cbranch_scc0 L_s1_nolead")
        I("v_mov_b32 v13, %d\nv_mov_b32 v18, 0\nv_cmp_eq_u32 vcc, 0, v0\nv_cndmask_b32 v18, v13, v18, vcc" % OOB)
        I("s_lshl_b32 s11, s8, 7\ns_add_u32 s11, s11, %d\nv_mov_b32 v16, s44\nv_mov_b32 v17, s44" % TBUF)
        I("buffer_store_dwordx2 v[16:17], v18, s[60:63], s11 offen @ST@")
        L("L_s1_nolead")
    start_bar()
    I("s_branch L_s1_main"); SEC("s1main"); L("L_s1_main")
    if cfg.late_win:
        C("a workgroup that already sees several other groups' announcements started late and gets a wider load window")
        I("v_mov_b32 v13, %d\nv_lshlrev_b32 v19, 7, v0\nv_cmp_gt_u32 vcc, 8, v0\nv_cndmask_b32 v19, v13, v19, vcc" % OOB)
        I("s_mov_b32 s11, %d" % TBUF)
        I("buffer_load_dwordx2 v[20:21], v19, s[60:63], s11 offen @LD@")
        I("s_waitcnt vmcnt(0)")
        I("v_cmp_eq_u32 vcc, s44, v21")
        I("s_and_b32 s10, vcc_lo, 0xff\ns_bcnt1_i32_b32 s10, s10\ns_cmp_ge_u32 s10, %d\ns_cbranch_scc0 L_s1_early" % cfg.late_cnt)
        set_flag_add(4, FO(F_LATE), 5)
        L("L_s1_early")
        if cfg.stamps: I("s_mov_b32 s86, s10\ns_mov_b32 s87, 0")
    if cfg.die_by == 'S1':
        die_check("a")
        STAMP_(7)
    I("s_cmp_ge_u32 s9, 28\ns_cbranch_scc1 L_s1_none")
    C("M2: w2 tile [112 rows x 32 columns]; s12 = k range (0..15), s13 = column tile (0..13)")
    I("s_cmp_ge_u32 s9, 14\ns_cselect_b32 s12, 1, 0\ns_mul_i32 s13, s12, 14\ns_sub_u32 s13, s9, s13\ns_lshl_b32 s11, s8, 1\ns_add_u32 s12, s12, s11")
    I("s_mov_b32 s68, s12\ns_mov_b32 s69, s13")
    I("s_mul_i32 s10, s12, %d\ns_lshl_b32 s11, s13, 6\ns_add_u32 s10, s10, s11" % (112 * 896))
    I("s_sub_u32 s11, %d, s10" % (1792 * 896))
    srd_add(48, 32, 33, "s10", "s11")
    I("v_lshrrev_b32 v9, 2, v0\nv_and_b32 v10, 3, v0\nv_lshlrev_b32 v10, 4, v10")
    I("v_mul_u32_u24 v11, 896, v9\nv_add_u32 v11, v11, v10")
    if cfg.w2_trig: wait_flag(4, FO(eval(cfg.w2_trig)), 256, 26)
    I("s_mov_b32 s12, 0\ns_mov_b32 m0, %d" % W2T)
    for i in range(7):
        if i >= cfg.w2_win: I("s_waitcnt vmcnt(%d)" % (cfg.w2_win - 1))
        I("buffer_load_dwordx4 v11, s[48:51], s12 offen%s lds" % cfg.nt_w)
        if i < 6: I("s_add_u32 m0, m0, 1024\ns_add_u32 s12, s12, %d" % (16 * 896))
    I("s_waitcnt vmcnt(0) lgkmcnt(0)")
    I("v_lshrrev_b32 v15, 2, v2\nv_lshl_add_u32 v15, v3, 3, v15\nv_lshlrev_b32 v15, 6, v15\nv_add_u32 v15, v15, v7\nv_add_u32 v15, %d, v15" % W2T)
    I("v_and_b32 v12, 1, v3\nv_lshrrev_b32 v14, 2, v2\nv_lshl_add_u32 v14, v12, 3, v14\nv_lshlrev_b32 v14, 6, v14\nv_add_u32 v14, v14, v7\nv_add_u32 v14, %d, v14" % W2T)
    for t in range(4):
        for ct in range(2):
            r = 160 + 8 * t + 4 * ct
            a_ = 15 if t < 3 else 14
            I("ds_read_b64_tr_b16 v[%d:%d], v%d offset:%d" % (r, r + 1, a_, 2048 * t + 32 * ct))
            I("ds_read_b64_tr_b16 v[%d:%d], v%d offset:%d" % (r + 2, r + 3, a_, 2048 * t + 32 * ct + 256))
    I("s_waitcnt lgkmcnt(0)")
    STAMP_(2)
    wait_flag(4, FO(eval(cfg.h_trig)), 256, 26)
    STAMP_(3)
    I("v_mov_b32 v13, %d" % OOB)
    I("v_lshrrev_b32 v9, 3, v0\nv_and_b32 v10, 7, v0\nv_mul_u32_u24 v14, 7168, v9\nv_lshl_add_u32 v14, v10, 4, v14")
    I("v_cmp_gt_u32 vcc, 4, v10\nv_cndmask_b32 v12, v13, v14, vcc")
    I("s_mul_i32 s10, s68, 448\ns_add_u32 s10, s10, %d" % HBUF)
    I("s_mov_b32 s14, 0x0f0f0f0f\ns_mov_b32 s15, 0x0f0f0f0f")
    def iss():
        for i in range(3):
            r = 64 + 4 * i
            I("buffer_load_dwordx4 v[%d:%d], v14, s[60:63], s10 offen offset:%d @LD@" % (r, r + 3, 128 * i))
        I("buffer_load_dwordx4 v[76:79], v12, s[60:63], s10 offen offset:384 @LD@")
    lp = lab("pl"); dn = lab("pld")
    I("s_mov_b32 s45, %d" % cfg.maxpoll)
    dual_init(['s10'] if 'h' in lh else None)
    L(lp)
    iss()
    I("s_waitcnt vmcnt(0)")
    I("v_mov_b32 v28, s44")
    I("v_cndmask_b32 v77, v28, v77, s[14:15]\nv_cndmask_b32 v79, v28, v79, s[14:15]")
    check_tags([65, 67, 69, 71, 73, 75, 77, 79], 26, 27)
    I("s_cbranch_scc1 %s" % dn)
    if cfg.backoff: I("s_sleep %d" % cfg.backoff)
    I("s_sub_u32 s45, s45, 1")
    dual_next(['s10'] if 'h' in lh else None)
    I("s_cmp_lg_u32 s45, 0\ns_cbranch_scc1 %s" % lp)
    L(dn)
    STAMP_(4)
    I("v_mul_u32_u24 v15, 272, v9\nv_lshl_add_u32 v15, v10, 3, v15\nv_add_u32 v15, %d, v15" % HL)
    for i in range(4):
        I("ds_write2_b32 v15, v%d, v%d offset0:%d offset1:%d" % (64 + 4 * i, 64 + 4 * i + 2, 16 * i, 16 * i + 1))
    I("v_and_b32 v15, 7, v2\nv_mul_u32_u24 v15, 272, v15\nv_lshl_add_u32 v15, v3, 4, v15\nv_add_u32 v15, %d, v15" % HL)
    I("s_waitcnt lgkmcnt(0)")
    for t in range(4):
        I("ds_read_b128 v[%d:%d], v15 offset:%d" % (128 + 4 * t, 128 + 4 * t + 3, 64 * t))
    I("s_waitcnt lgkmcnt(0)")
    for t in range(4):
        for ct in range(2):
            d = 16 + 4 * ct
            c = "0" if t == 0 else "v[%d:%d]" % (d, d + 3)
            r = 160 + 8 * t + 4 * ct
            I("v_mfma_f32_16x16x32_bf16 v[%d:%d], v[%d:%d], v[%d:%d], %s" % (d, d + 3, 128 + 4 * t, 128 + 4 * t + 3, r, r + 3, c))
    I("v_and_b32 v14, 1, v3\nv_mul_u32_u24 v14, %d, v14\nv_lshrrev_b32 v16 + 0, 1, v3" .replace("v16 + 0", "v24") % (4 * 28 * 2048))
    I("v_lshl_add_u32 v14, v24, 11, v14\nv_lshl_add_u32 v14, v2, 3, v14")
    I("s_lshl_b32 s10, s69, 12\ns_lshl_b32 s11, s68, 7\ns_add_u32 s10, s10, s11\ns_add_u32 s10, s10, %d" % MBUF)
    I("s_mov_b32 s48, 0\ns_mov_b32 s49, -1")
    for r in range(4):
        I("v_mov_b32 v%d, s44" % (33 + 2 * r))
        I("v_cndmask_b32 v%d, v%d, v%d, s[48:49]" % (32 + 2 * r, 16 + r, 20 + r))
    for r in range(4):
        I("s_add_u32 s11, s10, %d" % (r * 28 * 2048))
        I("buffer_store_dwordx2 v[%d:%d], v14, s[60:63], s11 offen @ST@" % (32 + 2 * r, 33 + 2 * r))
    STAMP_(5)
    L("L_s1_none")
    if cfg.wo_by == 'S1':
        wo_tile('L_s1_wo')
        L('L_s1_wo')
        set_flag_add(4, FO(F_WO), 5)
        STAMP_(6)
    I("s_branch L_outproj")

    SEC("s3start")
    L("L_s3")
    C("wave 7: x -> LDS, then the wo tile (128 rows x 64 columns; batch b < 7 takes column block b)")
    I("v_lshlrev_b32 v9, 4, v0\ns_mov_b32 m0, %d\ns_mov_b32 s12, 0" % XL)
    start_sync()
    srd(48, 16, 17, "7168")
    if cfg.x_late: start_bar()
    for i in range(7):
        if i == 4: I("s_mov_b32 m0, %d\ns_mov_b32 s12, 4096" % (XL + 4096))
        I("buffer_load_dwordx4 v9, s[48:51], s12 offen offset:%d lds" % ((i % 4) * 1024))
    if not cfg.x_late: start_bar()
    I("s_branch L_s3_main"); SEC("s3main"); L("L_s3_main")
    I("s_waitcnt vmcnt(0)")
    set_flag_add(4, FO(F_X), 5)
    STAMP_(2)
    I("s_waitcnt lgkmcnt(0)")
    I("s_mul_i32 s44, s44, 1664525\ns_add_u32 s44, s44, 1013904223")
    if cfg.wo_by == 'S3': wo_tile('L_s3_fin')
    L("L_s3_fin")
    if cfg.wo_by == 'S3': set_flag_add(4, FO(F_WO), 5)
    I("s_branch L_softmax")
    SEC("s2start")
    L("L_s2_pre")
    C("wave 6: zero flags, w1 tile")
    I("v_lshlrev_b32 v9, 2, v0\nv_add_u32 v9, %d, v9\nv_mov_b32 v10, 0" % FLG)
    I("s_mov_b64 exec, 0xffff\nds_write_b32 v9, v10\ns_mov_b64 exec, -1")
    I("v_lshrrev_b32 v9, 1, v0\nv_and_b32 v10, 1, v0\nv_lshlrev_b32 v10, 4, v10")
    I("v_mul_u32_u24 v14, 3584, v9\nv_add_u32 v14, v14, v10")
    I("v_lshlrev_b32 v15, 3, v3")
    I("s_lshr_b32 s10, s9, 1\ns_mul_i32 s11, s8, 14\ns_add_u32 s10, s10, s11")
    I("s_mov_b32 s69, s10")
    I("s_lshl_b32 s10, s10, 5\ns_sub_u32 s11, %d, s10" % (448 * 3584))
    I("s_mov_b32 s12, 0\ns_mov_b32 m0, %d" % W1T)
    start_wait()
    I("s_bitcmp0_b32 s9, 0\ns_cbranch_scc1 L_s2_nom1\ns_cmp_ge_u32 s9, 28\ns_cbranch_scc1 L_s2_nom1")
    srd_add(56, 28, 29, "s10", "s11")
    dma_loop(14, 14, 56, 32 * 3584, cfg.nt_w)
    srd(64, 30, 31, "3584")
    I("buffer_load_dwordx2 v[24:25], v15, s[64:67], s10 offen")
    L("L_s2_nom1")
    start_ws()
    start_bar()
    I("s_branch L_s2_main"); SEC("s2main"); L("L_s2_main")
    I("s_waitcnt lgkmcnt(0)")
    I("s_mul_i32 s44, s44, 1664525\ns_add_u32 s44, s44, 1013904223")
    I("s_bitcmp0_b32 s9, 0\ns_cbranch_scc1 L_softmax\ns_cmp_ge_u32 s9, 28\ns_cbranch_scc1 L_softmax")
    wait_flag(4, FO(F_X), 1, 26)
    C("LayerNorm (wave 6, M1 workgroups)")
    I("v_lshrrev_b32 v9, 3, v0\nv_and_b32 v10, 7, v0\nv_lshlrev_b32 v10, 4, v10")
    I("v_mul_u32_u24 v11, 896, v9\nv_add_u32 v11, v11, v10\nv_add_u32 v11, %d, v11" % XL)
    for i in range(7):
        I("ds_read_b128 v[%d:%d], v11 offset:%d" % (64 + 4 * i, 64 + 4 * i + 3, 128 * i))
    I("v_mul_u32_u24 v12, 912, v9\nv_add_u32 v12, v12, v10\nv_add_u32 v12, %d, v12" % YL)
    I("s_waitcnt lgkmcnt(0)")
    set_flag_add(4, FO(F_Y), 5)
    F = 128
    for k in range(28):
        I("v_lshlrev_b32 v%d, 16, v%d\nv_and_b32 v%d, 0xffff0000, v%d" % (F + 2 * k, 64 + k, F + 2 * k + 1, 64 + k))
    I("v_pk_add_f32 v[16:17], v[%d:%d], v[%d:%d]" % (F, F + 1, F + 2, F + 3))
    for k in range(2, 28):
        I("v_pk_add_f32 v[16:17], v[16:17], v[%d:%d]" % (F + 2 * k, F + 2 * k + 1))
    I("v_add_f32 v16, v16, v17")
    def red_p(v):
        for mod in ("quad_perm:[1,0,3,2]", "quad_perm:[2,3,0,1]", "row_half_mirror"):
            I("v_add_f32_dpp v%d, v%d, v%d %s row_mask:0xf bank_mask:0xf" % (v, v, v, mod))
    red_p(16)
    I("v_mul_f32 v16, 0x%08x, v16" % f2u(1.0 / 448))
    rnd_pair(18, 19, 16, 16, 17)
    I("v_sub_f32 v20, v16, v18")
    I("v_sub_f32 v18, 0, v18\nv_mov_b32 v19, v18")
    for k in range(28):
        I("v_pk_add_f32 v[%d:%d], v[%d:%d], v[18:19]" % (F + 2 * k, F + 2 * k + 1, F + 2 * k, F + 2 * k + 1))
    I("v_pk_mul_f32 v[16:17], v[%d:%d], v[%d:%d]" % (F, F + 1, F, F + 1))
    for k in range(1, 28):
        I("v_pk_fma_f32 v[16:17], v[%d:%d], v[%d:%d], v[16:17]" % (F + 2 * k, F + 2 * k + 1, F + 2 * k, F + 2 * k + 1))
    I("v_add_f32 v16, v16, v17")
    red_p(16)
    I("v_mul_f32 v16, 0x%08x, v16" % f2u(1.0 / 448))
    I("v_fma_f32 v16, -v20, v20, v16\nv_max_f32 v16, 0, v16")
    rnd_pair(16, 17, 16, 16, 21)
    I("v_add_f32 v16, 0x%08x, v16" % f2u(1e-5))
    rnd_pair(16, 17, 16, 16, 21)
    I("v_sqrt_f32 v16, v16")
    rnd_pair(16, 17, 16, 16, 21)
    I("v_rcp_f32 v16, v16")
    I("v_mov_b32 v17, v16")
    for k in range(28):
        I("v_pk_mul_f32 v[%d:%d], v[%d:%d], v[16:17]" % (F + 2 * k, F + 2 * k + 1, F + 2 * k, F + 2 * k + 1))
    for k in range(28):
        I("v_cvt_pk_bf16_f32 v%d, v%d, v%d" % (64 + k, F + 2 * k, F + 2 * k + 1))
    for i in range(7):
        I("ds_write_b128 v12, v[%d:%d] offset:%d" % (64 + 4 * i, 64 + 4 * i + 3, 128 * i))
    STAMP_(2)
    C("M1: h tile")
    I("s_waitcnt vmcnt(0) lgkmcnt(0)")
    I("v_mov_b32 v13, %d" % OOB)
    I("v_and_b32 v15, 7, v2\nv_mul_u32_u24 v15, 912, v15\nv_lshl_add_u32 v15, v3, 4, v15\nv_add_u32 v15, %d, v15" % YL)
    for t in range(14):
        I("ds_read_b128 v[%d:%d], v15 offset:%d" % (XF + 4 * t, XF + 4 * t + 3, 64 * t))
    I("v_add_u32 v15, %d, v6" % W1T)
    for t in range(14):
        I("ds_read_b64_tr_b16 v[%d:%d], v15 offset:%d" % (AF + 4 * t, AF + 4 * t + 1, 1024 * t))
        I("ds_read_b64_tr_b16 v[%d:%d], v15 offset:%d" % (AF + 4 * t + 2, AF + 4 * t + 3, 1024 * t + 128))
    I("s_waitcnt lgkmcnt(0)")
    for t in range(14):
        c = "0" if t == 0 else "v[16:19]"
        I("v_mfma_f32_16x16x32_bf16 v[16:19], v[%d:%d], v[%d:%d], %s" % (AF + 4 * t, AF + 4 * t + 3, XF + 4 * t, XF + 4 * t + 3, c))
    rnd_pair(16, 17, 16, 17, 26)
    rnd_pair(18, 19, 18, 19, 27)
    I("v_lshlrev_b32 v28, 16, v24\nv_and_b32 v29, 0xffff0000, v24\nv_lshlrev_b32 v30, 16, v25\nv_and_b32 v31, 0xffff0000, v25")
    for r in range(4): I("v_add_f32 v%d, v%d, v%d" % (16 + r, 16 + r, 28 + r))
    rnd_pair(16, 17, 16, 17, 26)
    rnd_pair(18, 19, 18, 19, 27)
    k0 = -2.0 * 0.7978845608028654 * 1.4426950408889634
    k1 = k0 * 0.044715
    I("s_mov_b32 s10, 0x%08x\ns_mov_b32 s11, 0x%08x" % (f2u(k0), f2u(k1)))
    I("v_mov_b32 v32, s10")
    for r in range(4):
        I("v_mul_f32 v%d, v%d, v%d" % (28 + r, 16 + r, 16 + r))
        I("v_fma_f32 v%d, v%d, s11, v32" % (28 + r, 28 + r))
        I("v_mul_f32 v%d, v%d, v%d" % (28 + r, 28 + r, 16 + r))
    for r in range(4): I("v_exp_f32 v%d, v%d" % (28 + r, 28 + r))
    for r in range(4): I("v_add_f32 v%d, 1.0, v%d" % (28 + r, 28 + r))
    for r in range(4): I("v_rcp_f32 v%d, v%d" % (28 + r, 28 + r))
    for r in range(4): I("v_mul_f32 v%d, v%d, v%d" % (16 + r, 16 + r, 28 + r))
    I("v_cvt_pk_bf16_f32 v20, v16, v17\nv_cvt_pk_bf16_f32 v21, v18, v19")
    I("v_lshlrev_b32 v14, 5, v2\nv_lshl_add_u32 v14, v3, 3, v14\nv_add_u32 v14, %d, v14" % SG)
    I("ds_write_b64 v14, v[20:21]")
    I("v_lshlrev_b32 v14, 3, v0\nv_add_u32 v14, %d, v14" % SG)
    I("ds_read_b64 v[24:25], v14")
    I("v_lshrrev_b32 v14, 2, v0\nv_mul_u32_u24 v14, 7168, v14\nv_and_b32 v15, 3, v0\nv_lshl_add_u32 v14, v15, 4, v14\nv_cmp_gt_u32 vcc, 32, v0\nv_cndmask_b32 v14, v13, v14, vcc")
    I("s_lshl_b32 s10, s69, 6\ns_add_u32 s10, s10, %d" % HBUF)
    I("v_mov_b32 v21, s44\nv_mov_b32 v23, s44")
    I("s_waitcnt lgkmcnt(0)")
    I("v_mov_b32 v20, v24\nv_mov_b32 v22, v25")
    I("buffer_store_dwordx4 v[20:23], v14, s[60:63], s10 offen @STAh@")
    if cfg.qh_cond: sk_ = if_not_local(26)
    I("s_add_u32 s11, s10, %d" % DUP)
    I("buffer_store_dwordx4 v[20:23], v14, s[60:63], s11 offen @ST@")
    if cfg.qh_cond: L(sk_)
    STAMP_(6)
    L("L_softmax")
    C("softmax for head (wave-6); wave 6 gathers the scores and hands the raw words to wave 7 through LDS")
    I("v_lshlrev_b32 v15, 4, v0\nv_add_u32 v15, %d, v15" % SG)
    I("s_cmp_eq_u32 s3, 6\ns_cbranch_scc0 L_sm_w7")
    wait_flag(4, FO(F_T2), 256, 26)
    STAMP_(3)
    I("s_lshl_b32 s10, s4, 3\ns_add_u32 s10, s10, s5\ns_lshl_b32 s10, s10, 13\ns_add_u32 s10, s10, %d\ns_add_u32 s11, s10, 4096" % SBUF)
    I("v_lshlrev_b32 v14, 4, v0")
    def iss():
        for i in range(8):
            I("buffer_load_dwordx4 v[%d:%d], v14, s[60:63], s%d offen offset:%d @LD@" % (64 + 4 * i, 64 + 4 * i + 3, 10 + i // 4, (i % 4) * 1024))
    tags = []
    for k in range(8): tags += [64 + 4 * k + 1, 64 + 4 * k + 3]
    poll(iss, tags, 26, 27, after_first=lambda: (STAMP_(7), set_flag_add(4, FO(F_SP), 5)), dual=(['s10', 's11'] if 's' in lh else None))
    if cfg.stamps:
        I("s_sub_u32 s86, %d, s45\ns_mov_b32 s87, 0" % (cfg.maxpoll + 1))
    for i in range(8):
        I("v_mov_b32 v%d, v%d\nv_mov_b32 v%d, v%d" % (96 + 2 * i, 64 + 4 * i, 96 + 2 * i + 1, 64 + 4 * i + 2))
    for q in range(4):
        I("ds_write_b128 v15, v[%d:%d] offset:%d" % (96 + 4 * q, 96 + 4 * q + 3, 1024 * q))
    set_flag_add(4, FO(F_G), 5)
    I("s_branch L_sm_go")
    L("L_sm_w7")
    if cfg.local:
        C("wave 7 checks whether the hand-off group sits on one die")
        wait_flag(4, FO(F_T1), 256, 26)
        if cfg.die_by == 'S3': die_check("a")
    if 's' in lh:
        C("write-through copy of this workgroup's scores (unless the group is on one die)")
        skw7 = if_not_local(26)
        wait_flag(4, FO(F_S), 256, 26)
        I("v_lshlrev_b32 v9, 2, v0\nv_add_u32 v9, %d, v9" % SL)
        for w in range(4): I("ds_read_b32 v%d, v9 offset:%d" % (32 + 2 * w, 256 * w))
        I("v_lshlrev_b32 v10, 11, v3\nv_lshl_add_u32 v10, v2, 3, v10")
        I("s_lshl_b32 s10, s4, 3\ns_add_u32 s10, s10, s5\ns_lshl_b32 s10, s10, 13\ns_lshl_b32 s11, s6, 9\ns_add_u32 s10, s10, s11\ns_add_u32 s10, s10, %d" % (SBUF + DUP))
        for w in range(4): I("v_mov_b32 v%d, s44" % (33 + 2 * w))
        I("s_waitcnt lgkmcnt(0)")
        for w in range(4):
            I("buffer_store_dwordx2 v[%d:%d], v10, s[60:63], s10 offen offset:%d @ST@" % (32 + 2 * w, 33 + 2 * w, 128 * w))
        L(skw7)
    wait_flag(4, FO(F_G), 1, 26)
    for q in range(4):
        I("ds_read_b128 v[%d:%d], v15 offset:%d" % (96 + 4 * q, 96 + 4 * q + 3, 1024 * q))
    I("s_waitcnt lgkmcnt(0)")
    L("L_sm_go")
    STAMP_(4)
    I("s_mov_b32 s12, 0x01000c0c\ns_cmp_eq_u32 s3, 6\ns_cselect_b32 s12, s12, 0x03020c0c")
    F = 128
    for i in range(16):
        I("v_perm_b32 v%d, v%d, v%d, s12" % (F + i, 96 + i, 96 + i))
    I("v_max3_f32 v16, v%d, v%d, v%d" % (F, F + 1, F + 2))
    for k in range(3, 15, 2): I("v_max3_f32 v16, v16, v%d, v%d" % (F + k, F + k + 1))
    I("v_max_f32 v16, v16, v%d" % (F + 15))
    wave_reduce("v_max_f32", 16, 17)
    cexp = 1.4426950408889634 / 16.0
    I("s_mov_b32 s13, 0x%08x" % f2u(cexp))
    I("v_mul_f32 v16, s13, v16\nv_sub_f32 v16, 0, v16")
    for k in range(16): I("v_fma_f32 v%d, v%d, s13, v16" % (F + k, F + k))
    for k in range(16): I("v_exp_f32 v%d, v%d" % (F + k, F + k))
    I("v_add_f32 v17, v%d, v%d" % (F, F + 1))
    I("v_add_f32 v18, v%d, v%d" % (F + 2, F + 3))
    for k in range(4, 16, 2):
        I("v_add_f32 v17, v17, v%d\nv_add_f32 v18, v18, v%d" % (F + k, F + k + 1))
    I("v_add_f32 v17, v17, v18")
    wave_reduce("v_add_f32", 17, 18)
    I("v_rcp_f32 v17, v17")
    for k in range(16): I("v_mul_f32 v%d, v%d, v17" % (F + k, F + k))
    for i in range(8): I("v_cvt_pk_bf16_f32 v%d, v%d, v%d" % (64 + i, F + 2 * i, F + 2 * i + 1))
    I("s_sub_u32 s12, s3, 6\ns_lshl_b32 s12, s12, 11\ns_add_u32 s12, s12, %d" % PL)
    I("v_lshlrev_b32 v15, 2, v0\nv_add_u32 v15, s12, v15")
    for i in range(8): I("ds_write_b32 v15, v%d offset:%d" % (64 + i, 256 * i))
    set_flag_add(4, FO(F_P), 5)
    STAMP_(5)

    L("L_outproj")
    BF = 128
    I("s_cmp_eq_u32 s3, 5\ns_cbranch_scc1 L_s1_tail")
    I("s_cmp_ge_u32 s3, 6\ns_cbranch_scc1 L_s23_end")
    C("wave 4: preload wo fragments for four 16-column tiles")
    wait_flag(4, FO(F_WO), 1, 26)
    I("v_lshrrev_b32 v8, 2, v2\nv_lshl_add_u32 v8, v3, 3, v8\nv_lshlrev_b32 v8, 7, v8\nv_add_u32 v8, v8, v7")
    if WOT: I("v_add_u32 v8, %d, v8" % WOT)
    for t in range(4):
        for tt in range(4):
            r = BF + 4 * (t * 4 + tt)
            I("ds_read_b64_tr_b16 v[%d:%d], v8 offset:%d" % (r, r + 1, t * 4096 + tt * 32))
            I("ds_read_b64_tr_b16 v[%d:%d], v8 offset:%d" % (r + 2, r + 3, t * 4096 + tt * 32 + 512))
    I("v_mov_b32 v13, %d" % OOB)
    I("v_lshlrev_b32 v10, 4, v0")
    I("s_lshl_b32 s10, s7, 12\ns_add_u32 s10, s10, %d" % OBUF)
    I("s_lshl_b32 s11, s4, 9\nv_add_u32 v11, s11, v10\nv_cmp_gt_u32 vcc, 32, v0\nv_cndmask_b32 v11, v13, v11, vcc")
    I("v_and_b32 v12, 31, v0\nv_lshlrev_b32 v12, 4, v12\nv_add_u32 v12, %d, v12" % OA)
    I("v_lshrrev_b32 v9, 5, v0\nv_mul_u32_u24 v9, 272, v9\nv_and_b32 v15, 31, v0\nv_lshl_add_u32 v9, v15, 3, v9\nv_add_u32 v9, %d, v9" % OG)
    I("v_and_b32 v15, 7, v2\nv_mul_u32_u24 v15, 272, v15\nv_lshl_add_u32 v15, v3, 4, v15\nv_add_u32 v15, %d, v15" % OG)
    I("v_and_b32 v14, 1, v3\nv_mul_u32_u24 v14, %d, v14\nv_lshrrev_b32 v16, 1, v3\nv_lshl_add_u32 v14, v16, 12, v14\nv_lshl_add_u32 v14, v2, 3, v14" % (4 * 28 * 4096))
    I("s_lshl_b32 s11, s4, 14\ns_lshl_b32 s13, s7, 7\ns_add_u32 s11, s11, s13\ns_add_u32 s11, s11, %d" % PBUF)
    I("s_mov_b32 s48, 0\ns_mov_b32 s49, -1")
    for k in range(8): I("v_mov_b32 v%d, s44" % (193 + 2 * k))
    I("v_mov_b32 v57, s44\nv_mov_b32 v59, s44")
    I("v_mov_b32 v60, v50\nv_mov_b32 v61, v53\nv_mov_b32 v62, v54\nv_mov_b32 v63, 0\nv_lshlrev_b32 v16, 4, v0\nv_add_u32 v16, %d, v16" % FIN)
    I("s_mov_b64 exec, 0xff\nds_write_b128 v16, v[60:63]\ns_mov_b64 exec, -1")
    if 'o' in lh: dual_pre(26)
    I("s_waitcnt lgkmcnt(0)")
    STAMP_(9)
    I("s_barrier")
    STAMP_(10)
    C("reduce the four o partials, round, publish")
    for w in range(4):
        I("ds_read_b128 v[%d:%d], v12 offset:%d" % (64 + 4 * w, 64 + 4 * w + 3, 512 * w))
    I("s_waitcnt lgkmcnt(2)")
    I("v_pk_add_f32 v[64:65], v[64:65], v[68:69]\nv_pk_add_f32 v[66:67], v[66:67], v[70:71]")
    I("s_waitcnt lgkmcnt(0)")
    I("v_pk_add_f32 v[72:73], v[72:73], v[76:77]\nv_pk_add_f32 v[74:75], v[74:75], v[78:79]")
    I("v_pk_add_f32 v[64:65], v[64:65], v[72:73]\nv_pk_add_f32 v[66:67], v[66:67], v[74:75]")
    I("v_cvt_pk_bf16_f32 v56, v64, v65\nv_cvt_pk_bf16_f32 v58, v66, v67")
    I("buffer_store_dwordx4 v[56:59], v11, s[60:63], s10 offen @STAo@")
    STAMP_(11)
    I("s_cmp_eq_u32 s4, 7\ns_cbranch_scc1 L_noproj")
    def iss():
        for k in range(4):
            I("buffer_load_dwordx4 v[%d:%d], v10, s[60:63], s10 offen offset:%d @LD@" % (64 + 4 * k, 64 + 4 * k + 3, 1024 * k))
    tags = []
    for k in range(4): tags += [64 + 4 * k + 1, 64 + 4 * k + 3]
    poll(iss, tags, 26, 27, backoff=cfg.tail_backoff, dual=(['s10'] if 'o' in lh else None), dual_pre_done=True)
    if not cfg.dbg_start: STAMP_(12)
    for k in range(4):
        I("ds_write2_b32 v9, v%d, v%d offset0:%d offset1:%d" % (64 + 4 * k, 64 + 4 * k + 2, 136 * k, 136 * k + 1) if 136 * k + 1 < 256 else
          "v_add_u32 v9, %d, v9\nds_write2_b32 v9, v%d, v%d offset0:%d offset1:%d" % (544 * 2 if k == 2 else 0, 64 + 4 * k, 64 + 4 * k + 2, 136 * (k - 2), 136 * (k - 2) + 1) if k == 2 else
          "ds_write2_b32 v9, v%d, v%d offset0:%d offset1:%d" % (64 + 4 * k, 64 + 4 * k + 2, 136 * (k - 2), 136 * (k - 2) + 1))
    I("s_waitcnt lgkmcnt(0)")
    for t in range(4):
        I("ds_read_b128 v[%d:%d], v15 offset:%d" % (96 + 4 * t, 96 + 4 * t + 3, 64 * t))
    for t in range(4):
        I("s_waitcnt lgkmcnt(%d)" % (3 - t))
        for tt in range(4):
            r = BF + 4 * (t * 4 + tt); d = 16 + 4 * tt
            c = "0" if t == 0 else "v[%d:%d]" % (d, d + 3)
            I("v_mfma_f32_16x16x32_bf16 v[%d:%d], v[%d:%d], v[%d:%d], %s" % (d, d + 3, 96 + 4 * t, 96 + 4 * t + 3, r, r + 3, c))
    for p in range(2):
        for r in range(4):
            k = p * 4 + r
            I("v_cndmask_b32 v%d, v%d, v%d, s[48:49]" % (192 + 2 * k, 16 + 8 * p + r, 16 + 8 * p + 4 + r))
        for r in range(4):
            k = p * 4 + r
            I("s_add_u32 s13, s11, %d" % (r * 28 * 4096 + p * 2 * 4096))
            I("buffer_store_dwordx2 v[%d:%d], v14, s[60:63], s13 offen @ST@" % (192 + 2 * k, 193 + 2 * k))
    L("L_noproj")
    set_flag_add(4, FO(F_PUB), 5)
    if not cfg.dbg_start: STAMP_(13)
    I("s_branch L_sdone")
    L("L_s1_tail")
    I("v_mov_b32 v13, %d" % OOB)
    if 'o' in lh:
        I("v_lshlrev_b32 v10, 4, v0\ns_lshl_b32 s10, s7, 12\ns_add_u32 s10, s10, %d" % (OBUF + DUP))
        I("s_lshl_b32 s11, s4, 9\nv_add_u32 v11, s11, v10\nv_cmp_gt_u32 vcc, 32, v0\nv_cndmask_b32 v11, v13, v11, vcc")
        I("v_and_b32 v12, 31, v0\nv_lshlrev_b32 v12, 4, v12\nv_add_u32 v12, %d, v12" % OA)
        I("v_mov_b32 v57, s44\nv_mov_b32 v59, s44")
    I("s_mul_i32 s12, s4, 28\ns_add_u32 s12, s12, s7\ns_lshl_b32 s12, s12, 12\ns_add_u32 s12, s12, %d" % PBUF)
    I("v_lshlrev_b32 v14, 4, v0")
    I("v_and_b32 v15, 7, v0\nv_lshlrev_b32 v15, 4, v15\nv_add_u32 v15, %d, v15" % FIN)
    srd(48, 38, 39, "7168")
    I("v_lshlrev_b32 v9, 2, v0\nv_cmp_gt_u32 vcc, 8, v0\nv_cndmask_b32 v9, v13, v9, vcc")
    I("s_mul_i32 s13, s4, 896\ns_lshl_b32 s14, s7, 5\ns_add_u32 s13, s13, s14")
    I("s_waitcnt vmcnt(0) lgkmcnt(0)")
    I("s_barrier")
    if 'o' in lh:
        C("write-through copy of o (unless the group is on one die)")
        sk_ = if_not_local(26)
        for w in range(4):
            I("ds_read_b128 v[%d:%d], v12 offset:%d" % (64 + 4 * w, 64 + 4 * w + 3, 512 * w))
        I("s_waitcnt lgkmcnt(0)")
        I("v_pk_add_f32 v[64:65], v[64:65], v[68:69]\nv_pk_add_f32 v[66:67], v[66:67], v[70:71]")
        I("v_pk_add_f32 v[72:73], v[72:73], v[76:77]\nv_pk_add_f32 v[74:75], v[74:75], v[78:79]")
        I("v_pk_add_f32 v[64:65], v[64:65], v[72:73]\nv_pk_add_f32 v[66:67], v[66:67], v[74:75]")
        I("v_cvt_pk_bf16_f32 v56, v64, v65\nv_cvt_pk_bf16_f32 v58, v66, v67")
        I("buffer_store_dwordx4 v[56:59], v11, s[60:63], s10 offen @ST@")
        I("s_waitcnt vmcnt(0)")
        L(sk_)
    I("s_cmp_ge_u32 s7, 28\ns_cbranch_scc1 L_sdone")
    I("ds_read_b128 v[48:51], v15")
    if cfg.pub_wait: wait_flag(4, FO(F_PUB), 1, 26)
    if not cfg.fin_mask:
        C("final gather: two register sets polled alternately")
        def iss(base):
            for i in range(4):
                I("buffer_load_dwordx4 v[%d:%d], v14, s[60:63], s12 offen offset:%d @LD@" % (base + 4 * i, base + 4 * i + 3, 1024 * i))
        I("s_mov_b32 s45, %d" % cfg.maxpoll)
        iss(64)
        if cfg.stagger: I("s_sleep %d" % cfg.stagger)
        L("L_fin_loop")
        iss(80)
        I("s_waitcnt vmcnt(4)")
        check_tags([65, 67, 69, 71, 73, 75, 77, 79], 26, 27)
        I("s_cbranch_scc1 L_fin_ok")
        iss(64)
        I("s_waitcnt vmcnt(4)")
        check_tags([81, 83, 85, 87, 89, 91, 93, 95], 26, 27)
        I("s_cbranch_scc1 L_fin_ok1")
        I("s_sub_u32 s45, s45, 1\ns_cmp_lg_u32 s45, 0\ns_cbranch_scc1 L_fin_loop")
        I("s_branch L_fin_ok")
        L("L_fin_ok1")
        I("v_add_f32 v16, v80, v84\nv_add_f32 v18, v82, v86\nv_add_f32 v17, v88, v92\nv_add_f32 v19, v90, v94")
        I("s_branch L_fin_sum")
        L("L_fin_ok")
        I("v_add_f32 v16, v64, v68\nv_add_f32 v18, v66, v70\nv_add_f32 v17, v72, v76\nv_add_f32 v19, v74, v78")
    else:
        C("final gather: after the first pass only the lanes whose granules are still missing are read again")
        I("s_mov_b32 s45, %d" % cfg.maxpoll)
        for i in range(4):
            I("buffer_load_dwordx4 v[%d:%d], v14, s[60:63], s12 offen offset:%d @LD@" % (64 + 4 * i, 64 + 4 * i + 3, 1024 * i))
        L("L_fin_loop")
        I("s_waitcnt vmcnt(0)")
        for i in range(4):
            I("v_cmp_ne_u32 s[%d:%d], s44, v%d" % (16 + 4 * i, 17 + 4 * i, 65 + 4 * i))
            I("v_cmp_ne_u32 s[%d:%d], s44, v%d" % (18 + 4 * i, 19 + 4 * i, 67 + 4 * i))
        for i in range(4):
            I("s_or_b64 s[%d:%d], s[%d:%d], s[%d:%d]" % (16 + 4 * i, 17 + 4 * i, 16 + 4 * i, 17 + 4 * i, 18 + 4 * i, 19 + 4 * i))
        I("s_or_b64 s[18:19], s[16:17], s[20:21]\ns_or_b64 s[22:23], s[24:25], s[28:29]\ns_or_b64 s[18:19], s[18:19], s[22:23]")
        I("s_cbranch_scc0 L_fin_ok")
        for i in range(4):
            sk = lab("fm")
            I("s_mov_b64 exec, s[%d:%d]" % (16 + 4 * i, 17 + 4 * i))
            I("s_cbranch_execz %s" % sk)
            I("buffer_load_dwordx4 v[%d:%d], v14, s[60:63], s12 offen offset:%d @LD@" % (64 + 4 * i, 64 + 4 * i + 3, 1024 * i))
            L(sk)
        I("s_mov_b64 exec, -1")
        if cfg.fin_sleep: I("s_sleep %d" % cfg.fin_sleep)
        I("s_sub_u32 s45, s45, 1\ns_cmp_lg_u32 s45, 0\ns_cbranch_scc1 L_fin_loop")
        I("s_waitcnt vmcnt(0)")
        L("L_fin_ok")
        I("v_add_f32 v16, v64, v68\nv_add_f32 v18, v66, v70\nv_add_f32 v17, v72, v76\nv_add_f32 v19, v74, v78")
    L("L_fin_sum")
    STAMP_(14)
    I("v_add_f32 v16, v16, v17\nv_add_f32 v18, v18, v19")
    red8(16, 24); red8(18, 25)
    rnd_pair(16, 18, 16, 18, 26)
    I("s_waitcnt lgkmcnt(0)")
    I("v_mul_f32 v16, v16, v48\nv_mul_f32 v18, v18, v48")
    rnd_pair(16, 18, 16, 18, 26)
    I("v_add_f32 v16, v16, v49\nv_add_f32 v18, v18, v50")
    I("v_cvt_pk_bf16_f32 v16, v16, v18")
    I("buffer_store_dword v16, v9, s[48:51], s13 offen%s" % cfg.out_fl)
    C("epoch update by workgroup 0")
    I("s_cmp_eq_u32 s2, 0\ns_cbranch_scc0 L_sdone")
    I("v_mov_b32 v16, s44\nv_mov_b32 v14, %d\nv_cmp_eq_u32 vcc, 0, v0\nv_cndmask_b32 v14, v13, v14, vcc" % EPOCH)
    I("buffer_store_dword v16, v14, s[60:63], 0 offen @ST@")
    I("s_branch L_sdone")
    L("L_s23_end")
    I("s_barrier")
    L("L_sdone")
    STAMP_(15)
    stamps_out()
    L("L_end")
    I("s_endpgm")

    secs = {}; order_seen = []; cur = "entry"; secs[cur] = []; order_seen.append(cur)
    for ln in e.lines:
        if ln.startswith(";@SEC "):
            cur = ln[6:].strip(); secs[cur] = []; order_seen.append(cur)
        else: secs[cur].append(ln)
    first = ["entry", "svc", "s3start", "s2start", "s1start"]
    rest = [x for x in order_seen if x not in first]
    e.lines = []
    for x in first + rest: e.lines += secs[x]
    if cfg.noB:
        def dropB(l):
            if '@ST@' not in l: return False
            if 'q' in cfg.noB and ('v[56:59], v14' in l): return True
            if 'h' in cfg.noB and 'v[20:23], v14' in l: return True
            if 's' in cfg.noB and 'v10, s[60:63], s10 offen offset' in l: return True
            if 'o' in cfg.noB and 'v[56:59], v11' in l: return True
            return False
        e.lines = [l for l in e.lines if not dropB(l)]
    e.lines = [l.replace('@LD@', cfg.ldf).replace('@STAq@', cfg.stl if 'q' in lh else cfg.stf).replace('@STAh@', cfg.stl if 'h' in lh else cfg.stf).replace('@STAs@', cfg.stl if 's' in lh else cfg.stf).replace('@STAo@', cfg.stl if 'o' in lh else cfg.stf).replace('@ST@', cfg.stf).rstrip() for l in e.lines]
    body = e.finalize()
    hdr = open('gated_mix__sliding_block_cached__mixer_channel_mlp__decode.s.ref').read().split('\n')
    head = [l for l in hdr if l.startswith(';') and '@launch' not in l and 'Override launch' not in l]
    txt = "\n".join(head) + "\n; @launch grid=(256,1,1) block=(512,1,1) lds=%d\n" % LDS_SIZE
    txt += '.amdgcn_target "amdgcn-amd-amdhsa--gfx950"\n.text\n.globl %s\n.p2align 8\n.type %s,@function\n%s:\n' % (NAME, NAME, NAME)
    txt += body
    txt += '.section .rodata,"a"\n.p2align 6\n.amdhsa_kernel %s\n' % NAME
    txt += "  .amdhsa_next_free_vgpr 256\n  .amdhsa_next_free_sgpr 102\n  .amdhsa_accum_offset 256\n  .amdhsa_group_segment_fixed_size 0\n  .amdhsa_kernarg_size 112\n  .amdhsa_user_sgpr_count 2\n  .amdhsa_user_sgpr_kernarg_segment_ptr 1\n  .amdhsa_system_sgpr_workgroup_id_x 1\n.end_amdhsa_kernel\n"
    return txt

if __name__ == "__main__":
    cfg = Cfg()
    out = sys.argv[1] if len(sys.argv) > 1 else "gated_mix__sliding_block_cached__mixer_channel_mlp__decode.s"
    for a in sys.argv[2:]:
        k, v = a.split("=")
        setattr(cfg, k, eval(v))
    open(out, "w").write(gen(cfg))
    print("written", out)
```

```python
import sys, struct
from emit import Emitter

NAME = "gated_mix__sliding_block_cached__mixer_channel_mlp__decode_kernel"

WOT  = 0
WQT  = 16384
W1T  = WQT + 14336
W2T  = WQT + 28672
XL   = W2T + 7168
YL   = XL + 7168
QL   = YL + 7296
PL   = QL + 1024
OA   = PL + 4096
HL   = OA + 2048
OG   = HL + 2176
SG   = OG + 2176
SL   = SG + 4096
FIN  = SL + 1024
FLG  = FIN + 128
F_Q, F_Y, F_S, F_P, F_WO, F_T1, F_T2, F_X, F_SP, F_K, F_G, F_LOC, F_LATE, F_PUB = [FLG + 4 * i for i in range(14)]
LDS_SIZE = FLG + 64
EPOCH = 0
QBUF = 4096
HBUF = QBUF + 131072
SBUF = 0x30000
MBUF = 0xB0000
PBUF = 0x120000
OBUF = 0x200000
XBUF = 0x220000
TBUF = 0x228000
STAMP = 0x230000
DUP = 0x400000
WS_RANGE = 0x800000
OOB = 0x7FFF0000

def f2u(x): return struct.unpack('<I', struct.pack('<f', x))[0]

class Cfg:
    wk = 9
    wv = 6
    nt_kv = " nt"
    nt_w = " nt"
    nt_wo = " nt"
    stamps = False
    qpos = 38
    sched = None
    pat = 'VW' * 8 + 'WWV' * 10 + 'V' * 14
    maxpoll = 20000
    prio = 2
    slow_win = 0
    spin_sleep = 0
    fin_mask = True
    fin_sleep = 0
    out_fl = ''
    pub_wait = True
    stagger = 6
    lh = 'o'
    late_win = 0
    late_slot = 10
    late_cnt = 5
    x_late = False
    dbg_start = False
    hack_nop = False
    local = True
    qh_cond = False
    die_by = 'S3'
    perm = False
    die_tries = 4
    bper = 16
    noB = ''
    free_flag = 'F_G'
    nofree = False
    ldf = 'sc1'
    stf = 'sc1'
    stl = ''
    code_pf = 0
    pf_mask = 31
    pf_skip = 1024
    wo_by = 'S1'
    tq_swap = True
    w2_win = 7
    wo_win = 6
    w2_trig = None
    wo_trig = None
    kflag_slot = 31
    t3 = 0
    pretouch = False
    tail_backoff = 0
    wo_rot = True
    s0_w = 'after_q'
    mapping = 'ps'
    s0_early_bar = False
    h_trig = 'F_T1'
    wk_pre = 2
    late_tiles = True
    t1 = 28
    t2 = 46
    backoff = 4

def default_sched(cfg):
    s = [('K', n // 8, n % 8) for n in range(32)]
    s += [('V', T, j) for T in range(4) for j in range(8)]
    return s

def gen(cfg):
    lh = cfg.lh if cfg.local else ''
    if cfg.mapping != 'kx': assert 'q' not in lh and 's' not in lh
    cfg.noB = ''.join(c for c in 'qhso' if c not in lh) + cfg.noB
    cfg.local = bool(lh)
    e = Emitter(); I = e.I; L = e.L; C = e.C
    FO = lambda f: f - FLG
    nst = [0]
    def STAMP_(i):
        if cfg.stamps: I("s_memrealtime s[%d:%d]" % (70 + 2 * i, 71 + 2 * i))
    def stamps_out():
        if not cfg.stamps: return
        I("s_waitcnt vmcnt(0) lgkmcnt(0)")
        I("s_lshl_b32 s8, s2, 3\ns_add_u32 s8, s8, s3\ns_lshl_b32 s8, s8, 7\ns_add_u32 s8, s8, %d" % STAMP)
        I("v_mov_b32 v1, 0")
        I("s_mov_b64 exec, 1")
        for k in range(8):
            for q in range(4): I("v_mov_b32 v%d, s%d" % (4 + q, 70 + 4 * k + q))
            I("buffer_store_dwordx4 v[4:7], v1, s[60:63], s8 offen offset:%d" % (16 * k))
            I("s_nop 1")
        I("s_waitcnt vmcnt(0)")
    uid = [0]
    def lab(p):
        uid[0] += 1
        return "L_%s_%d" % (p, uid[0])
    def srd(n, lo, hi, nrec):
        I("s_mov_b32 s%d, s%d\ns_mov_b32 s%d, s%d\ns_mov_b32 s%d, %s\ns_mov_b32 s%d, 0x20000" % (n, lo, n + 1, hi, n + 2, nrec, n + 3))
    def srd_add(n, lo, hi, off_sgpr, nrec):
        I("s_add_u32 s%d, s%d, %s\ns_addc_u32 s%d, s%d, 0\ns_mov_b32 s%d, %s\ns_mov_b32 s%d, 0x20000" % (n, lo, off_sgpr, n + 1, hi, n + 2, nrec, n + 3))
    def wait_flag(addr_v, off, val, tmpv, cmp="ge"):
        lp = lab("fl"); dn = lab("fld")
        I("s_mov_b32 s45, 0x100000")
        L(lp)
        I("ds_read_b32 v%d, v%d offset:%d" % (tmpv, addr_v, off))
        I("s_waitcnt lgkmcnt(0)")
        I("v_readfirstlane_b32 s46, v%d" % tmpv)
        I("s_cmp_ge_u32 s46, %d" % val)
        I("s_cbranch_scc1 %s" % dn)
        if cfg.spin_sleep and off in (FO(F_T1), FO(F_T2), FO(F_WO), FO(F_S)): I("s_sleep %d" % cfg.spin_sleep)
        I("s_sub_u32 s45, s45, 1")
        I("s_cmp_lg_u32 s45, 0")
        I("s_cbranch_scc1 %s" % lp)
        L(dn)
    def set_flag_add(addr_v, off, onev):
        I("ds_add_u32 v%d, v%d offset:%d" % (addr_v, onev, off))
    def check_tags(tags, vmin, vmax, lanemask=None):
        t = list(tags)
        if len(t) % 2 == 1: t.append(t[-1])
        I("v_min_u32 v%d, v%d, v%d" % (vmin, t[0], t[1]))
        I("v_max_u32 v%d, v%d, v%d" % (vmax, t[0], t[1]))
        for k in range(2, len(t), 2):
            I("v_min3_u32 v%d, v%d, v%d, v%d" % (vmin, vmin, t[k], t[k + 1]))
            I("v_max3_u32 v%d, v%d, v%d, v%d" % (vmax, vmax, t[k], t[k + 1]))
        I("v_cmp_ne_u32 vcc, s44, v%d" % vmin)
        I("v_cmp_ne_u32 s[46:47], s44, v%d" % vmax)
        I("s_or_b64 vcc, vcc, s[46:47]")
        if lanemask: I("s_and_b64 vcc, vcc, %s" % lanemask)
        I("s_cmp_eq_u64 vcc, 0")
    def dual_pre(tmpv):
        I("ds_read_b32 v%d, v4 offset:%d" % (tmpv, FO(F_LOC)))
        I("s_waitcnt lgkmcnt(0)")
        I("v_readfirstlane_b32 s41, v%d" % tmpv)
        I("s_cmp_ge_u32 s41, 128\ns_cselect_b32 s41, %d, 1" % (cfg.bper - 1))
    def dual_init(bases, pre=True):
        if not bases: return
        I("s_mov_b32 s64, 0")
        if pre: dual_pre(26)
    def dual_next(bases):
        if not bases: return
        I("s_and_b32 s65, s45, s41\ns_cmp_eq_u32 s65, 0\ns_cselect_b32 s65, %d, 0\ns_sub_u32 s66, s65, s64\ns_mov_b32 s64, s65" % DUP)
        for b_ in bases: I("s_add_u32 %s, %s, s66" % (b_, b_))
    def poll(issue, tags, vmin, vmax, lanemask=None, backoff=cfg.backoff, after_first=None, dual=None, dual_pre_done=False):
        lp = lab("pl"); dn = lab("pld")
        I("s_mov_b32 s45, %d" % cfg.maxpoll)
        dual_init(dual, pre=not dual_pre_done)
        if after_first:
            issue(); after_first()
            I("s_branch %s_w" % lp)
        L(lp)
        issue()
        if after_first: L(lp + "_w")
        I("s_waitcnt vmcnt(0)")
        check_tags(tags, vmin, vmax, lanemask)
        I("s_cbranch_scc1 %s" % dn)
        if backoff: I("s_sleep %d" % backoff)
        I("s_sub_u32 s45, s45, 1")
        dual_next(dual)
        I("s_cmp_lg_u32 s45, 0")
        I("s_cbranch_scc1 %s" % lp)
        L(dn)
    def if_not_local(tmpv):
        sk = lab("loc")
        wait_flag(4, FO(F_LOC), 64, tmpv)
        I("s_cmp_ge_u32 s46, 128")
        I("s_cbranch_scc1 %s" % sk)
        return sk
    def rnd_pair(dst_lo, dst_hi, a, b, tmp):
        I("v_cvt_pk_bf16_f32 v%d, v%d, v%d" % (tmp, a, b))
        I("v_lshlrev_b32 v%d, 16, v%d" % (dst_lo, tmp))
        I("v_and_b32 v%d, 0xffff0000, v%d" % (dst_hi, tmp))
    def wave_reduce(op, v, t):
        for mod in ("quad_perm:[1,0,3,2]", "quad_perm:[2,3,0,1]", "row_half_mirror", "row_mirror"):
            I("%s_dpp v%d, v%d, v%d %s row_mask:0xf bank_mask:0xf" % (op, v, v, v, mod))
        for sw in ("v_permlane16_swap_b32", "v_permlane32_swap_b32"):
            I("v_mov_b32 v%d, v%d" % (t, v))
            I("%s v%d, v%d" % (sw, v, t))
            I("%s v%d, v%d, v%d" % (op, v, v, t))

    def tq_calc(dst):
        I("s_lshr_b32 %s, s9, 1" % dst)
        if cfg.tq_swap:
            I("s_and_b32 s46, %s, 6\ns_cmp_eq_u32 s46, 6\ns_cselect_b32 s46, 8, 0\ns_xor_b32 %s, %s, s46" % (dst, dst, dst))

    def wo_tile(skip):
        I("s_cmp_eq_u32 s4, 7\ns_cbranch_scc1 %s" % skip)
        I("s_lshl_b32 s10, s5, 9\ns_lshl_b32 s11, s6, 6\ns_add_u32 s10, s10, s11\ns_mul_i32 s10, s10, 896\ns_lshl_b32 s11, s4, 7\ns_add_u32 s10, s10, s11")
        I("s_sub_u32 s11, %d, s10" % (4096 * 896))
        srd_add(52, 24, 25, "s10", "s11")
        I("v_lshrrev_b32 v9, 3, v0\nv_mul_u32_u24 v9, 896, v9\nv_and_b32 v10, 7, v0\nv_lshl_add_u32 v9, v10, 4, v9")
        if cfg.wo_trig: wait_flag(4, FO(eval(cfg.wo_trig)), 256, 26)
        I("s_mov_b32 m0, %d\ns_mov_b32 s12, 0" % WOT)
        for i in range(16):
            if i >= cfg.wo_win: I("s_waitcnt vmcnt(%d)" % (cfg.wo_win - 1))
            I("buffer_load_dwordx4 v9, s[52:55], s12 offen%s lds" % cfg.nt_wo)
            if i < 15: I("s_add_u32 m0, m0, 1024\ns_add_u32 s12, s12, %d" % (8 * 896 if i != 7 else (256 - 56) * 896))
        I("s_waitcnt vmcnt(0)")

    def dma_loop(n, vreg_, srd_, step, flags, cnt="s13", win=None):
        lp = lab("dma")
        I("s_mov_b32 %s, %d" % (cnt, n))
        L(lp)
        if win: I("s_waitcnt vmcnt(%d)" % (win - 1))
        I("buffer_load_dwordx4 v%d, s[%d:%d], s12 offen%s lds" % (vreg_, srd_, srd_ + 3, flags))
        I("s_add_u32 m0, m0, 1024\ns_add_u32 s12, s12, %d\ns_sub_u32 %s, %s, 1\ns_cmp_lg_u32 %s, 0\ns_cbranch_scc1 %s" % (step, cnt, cnt, cnt, lp))
    def SEC(name): e.lines.append(";@SEC " + name)

    def code_prefetch():
        if not cfg.code_pf: return
        C("a few workgroups pull the kernel's code into L2 (reads only)")
        I("s_and_b32 s10, s9, %d\ns_cmp_eq_u32 s10, %d\ns_cbranch_scc0 L_s1_nopf" % (cfg.pf_mask, cfg.pf_mask))
        I("s_getpc_b64 s[10:11]")
        L("L_pcref")
        I("s_sub_u32 s10, s10, L_pcref-%s\ns_subb_u32 s11, s11, 0" % NAME)
        I("v_lshlrev_b32 v9, 4, v0\nv_add_u32 v9, %d, v9" % cfg.pf_skip)
        for i in range(cfg.code_pf):
            I("global_load_dwordx4 v[64:67], v9, s[10:11]")
            if i < cfg.code_pf - 1: I("v_add_u32 v9, 1024, v9")
        L("L_s1_nopf")

    def die_check(sfx):
        lp = lab("dc"); dn = lab("dcd"); ok = lab("dco")
        I("s_getreg_b32 s67, hwreg(HW_REG_XCC_ID)")
        I("s_lshl_b32 s15, s8, 9\ns_add_u32 s15, s15, %d" % XBUF)
        I("v_mov_b32 v13, %d\nv_lshlrev_b32 v19, 3, v0\nv_cmp_gt_u32 vcc, 32, v0\nv_cndmask_b32 v19, v13, v19, vcc" % OOB)
        I("s_mov_b32 s45, %d" % cfg.die_tries)
        L(lp)
        I("buffer_load_dwordx2 v[20:21], v19, s[60:63], s15 offen @LD@")
        I("s_waitcnt vmcnt(0)")
        I("v_cmp_ne_u32 vcc, s44, v21")
        I("s_cmp_eq_u32 vcc_lo, 0\ns_cbranch_scc1 %s" % ok)
        I("s_sleep 2\ns_sub_u32 s45, s45, 1\ns_cmp_lg_u32 s45, 0\ns_cbranch_scc1 %s" % lp)
        I("s_branch %s" % dn)
        L(ok)
        I("v_cmp_ne_u32 vcc, s67, v20")
        I("s_cmp_eq_u32 vcc_lo, 0\ns_cbranch_scc0 %s" % dn)
        set_flag_add(4, FO(F_LOC), 5)
        L(dn)
        set_flag_add(4, FO(F_LOC), 5)

    I("s_cmp_ge_u32 s2, 256")
    I("s_cbranch_scc1 L_end")
    if cfg.perm:
        I("s_and_b32 s4, s2, 31\ns_lshl_b32 s4, s4, 3\ns_lshr_b32 s2, s2, 5\ns_or_b32 s2, s2, s4")
    I("s_load_dwordx16 s[16:31], s[0:1], 0")
    I("s_load_dwordx8 s[32:39], s[0:1], 64")
    I("s_load_dwordx4 s[40:43], s[0:1], 96")
    if cfg.stamps:
        for k in range(70, 102): I("s_mov_b32 s%d, 0" % k)
    STAMP_(0)
    I("v_lshrrev_b32 v1, 6, v0")
    I("v_and_b32 v0, 63, v0")
    I("v_readfirstlane_b32 s3, v1")
    I("s_lshr_b32 s4, s2, 5")
    if cfg.mapping == "kx":
        I("s_and_b32 s5, s2, 7")
        I("s_bfe_u32 s6, s2, 0x20003")
    else:
        I("s_bfe_u32 s5, s2, 0x30002")
        I("s_and_b32 s6, s2, 3")
    I("s_and_b32 s7, s2, 31")
    I("s_and_b32 s8, s2, 7")
    I("s_lshr_b32 s9, s2, 3")
    I("v_and_b32 v2, 15, v0")
    I("v_lshrrev_b32 v3, 4, v0")
    I("v_mov_b32 v4, %d" % FLG)
    I("v_mov_b32 v5, 1")
    def start_sync():
        I("s_waitcnt lgkmcnt(0)")
        I("s_load_dword s44, s[42:43], %d" % EPOCH)
        srd(60, 42, 43, hex(WS_RANGE))
    def start_wait(): I("s_waitcnt lgkmcnt(0)")
    def start_ws():
        I("s_load_dword s44, s[42:43], %d" % EPOCH)
        srd(60, 42, 43, hex(WS_RANGE))
    def start_bar():
        I("s_barrier")
        STAMP_(1)
    I("s_cmp_ge_u32 s3, 4")
    I("s_cbranch_scc1 L_service")

    C("bulk waves")
    KR = 64; VB = 192; QA = 32; PF = 16; SACC = 224
    vreg = {0: VB, 1: KR, 2: KR + 32, 3: KR + 64}
    TMP = KR + 96
    I("s_lshl_b32 s10, s4, 3\ns_add_u32 s10, s10, s5")
    I("s_lshl_b32 s11, s10, 21\ns_add_u32 s11, s11, %d" % (3072 * 512))
    I("s_lshl_b32 s12, s6, 15\ns_lshl_b32 s13, s3, 13\ns_add_u32 s12, s12, s13")
    I("s_sub_u32 s14, %d, s12" % 524288)
    I("s_add_u32 s12, s12, s11")
    I("s_mov_b32 s64, 0\ns_mov_b32 s65, 0x20000\ns_mov_b32 s66, 0x40000\ns_mov_b32 s67, 0x60000")
    I("v_bfe_u32 v6, v0, 2, 2\nv_lshlrev_b32 v6, 11, v6\nv_lshl_add_u32 v6, v3, 6, v6\nv_and_b32 v7, 3, v0\nv_lshl_add_u32 v6, v7, 4, v6")
    start_wait()
    srd_add(48, 18, 19, "s12", "s14")
    def bulk_setup_b():
        start_ws()
        I("s_lshl_b32 s12, s3, 15\ns_lshl_b32 s13, s6, 7\ns_add_u32 s12, s12, s13")
        I("s_sub_u32 s14, %d, s12" % 524288)
        I("s_add_u32 s12, s12, s11")
        srd_add(52, 20, 21, "s12", "s14")
        I("v_lshrrev_b32 v7, 3, v0\nv_lshlrev_b32 v7, 12, v7\nv_and_b32 v8, 7, v0\nv_lshl_add_u32 v7, v8, 4, v7")
        I("v_lshlrev_b32 v9, 11, v3\nv_lshl_add_u32 v9, v2, 3, v9")
        I("s_lshl_b32 s15, s10, 13\ns_lshl_b32 s12, s6, 9\ns_add_u32 s15, s15, s12\ns_lshl_b32 s12, s3, 7\ns_add_u32 s15, s15, s12\ns_add_u32 s15, s15, %d" % SBUF)
        I("v_bfe_u32 v10, v0, 2, 1\nv_lshlrev_b32 v10, 9, v10\nv_lshl_add_u32 v10, v3, 6, v10\nv_and_b32 v11, 3, v0\nv_lshl_add_u32 v10, v11, 4, v10\nv_add_u32 v10, %d, v10" % QL)
        I("v_bfe_u32 v11, v0, 1, 1\nv_lshlrev_b32 v11, 11, v11\nv_lshl_add_u32 v11, v3, 5, v11\nv_and_b32 v12, 1, v0\nv_lshl_add_u32 v11, v12, 4, v11")
        I("s_lshl_b32 s12, s3, 7\ns_add_u32 s12, s12, %d\nv_add_u32 v11, s12, v11" % PL)
        I("v_and_b32 v12, 7, v0\nv_lshlrev_b32 v12, 5, v12\ns_lshl_b32 s12, s3, 9\ns_add_u32 s12, s12, %d\nv_add_u32 v12, s12, v12" % OA)
        I("v_lshlrev_b32 v14, 2, v0\ns_lshl_b32 s12, s3, 8\ns_add_u32 s12, s12, %d\nv_add_u32 v14, s12, v14" % SL)
        I("s_mov_b32 s68, 0x05040100\ns_mov_b32 s69, 0x07060302")
        I("s_mov_b32 s47, 0")
        I("s_mov_b32 s16, 0xffff0000\ns_mov_b32 s17, 0\ns_mov_b32 s18, 0\ns_mov_b32 s19, 0x0000ffff\ns_mov_b32 s20, 0\ns_mov_b32 s21, 0xffff0000")
        I("s_mov_b32 s22, 0x22222222\ns_mov_b32 s23, 0x22222222\ns_mov_b32 s24, 0x44444444\ns_mov_b32 s25, 0x44444444\ns_mov_b32 s26, 0x88888888\ns_mov_b32 s27, 0x88888888")
        start_bar()
    sched = cfg.sched or default_sched(cfg)
    ops = []
    def outstanding_after(opid):
        return len(ops) - 1 - ops.index(opid)
    def wait_op(opid):
        n = outstanding_after(opid)
        I("s_waitcnt vmcnt(%d)" % min(n, 63))
    tag_ready = [False]
    def ensure_tag():
        if not tag_ready[0]:
            I("s_waitcnt lgkmcnt(0)")
            I("s_mul_i32 s44, s44, 1664525\ns_add_u32 s44, s44, 1013904223")
            I("v_mov_b32 v%d, s44" % (SACC + 5))
            tag_ready[0] = True
    DQ = QA + 8
    def score_tile(T):
        C("scores tile %d" % T)
        wait_op(('K', T, 7))
        for hf in range(2):
            for G in range(4):
                c = "0" if hf == 0 else "v[%d:%d]" % (DQ + 4 * G, DQ + 4 * G + 3)
                r = KR + 32 * T + 4 * (2 * G + hf)
                I("v_mfma_f32_16x16x32_bf16 v[%d:%d], v[%d:%d], v[%d:%d], %s" % (DQ + 4 * G, DQ + 4 * G + 3, QA + 4 * hf, QA + 4 * hf + 3, r, r + 3, c))
        t = QA + 24
        for G in range(4):
            I("v_mov_b32_dpp v%d, v%d quad_perm:[0,0,0,0] row_mask:0xf bank_mask:0xf" % (t + G, DQ + 4 * G))
        for c in range(1, 4):
            for G in range(4):
                I("v_add_f32_dpp v%d, v%d, v%d quad_perm:[%d,%d,%d,%d] row_mask:0xf bank_mask:0xf" % (t + G, DQ + 4 * G + c, t + G, c, c, c, c))
        I("v_cndmask_b32 v%d, v%d, v%d, s[22:23]" % (t, t, t + 1))
        I("v_cndmask_b32 v%d, v%d, v%d, s[24:25]" % (t, t, t + 2))
        I("v_cndmask_b32 v%d, v%d, v%d, s[26:27]" % (t, t, t + 3))
        I("v_mov_b32 v%d, v%d" % (t + 1, t))
        I("v_permlane16_swap_b32 v%d, v%d" % (t, t + 1))
        I("v_cvt_pk_bf16_f32 v%d, v%d, v%d" % (SACC + T, t, t + 1))
        if T == 3:
            I("v_cndmask_b32 v%d, v%d, v%d, s[16:17]" % (SACC + 4, SACC, SACC + 1))
            I("v_cndmask_b32 v%d, v%d, v%d, s[18:19]" % (SACC + 4, SACC + 4, SACC + 2))
            I("v_cndmask_b32 v%d, v%d, v%d, s[20:21]" % (SACC + 4, SACC + 4, SACC + 3))
            I("buffer_store_dwordx2 v[%d:%d], v9, s[60:63], s15 offen @STAs@" % (SACC + 4, SACC + 5))
            if 's' in lh: I("ds_write_b32 v14, v%d" % (SACC + 4))
            ops.append(('S', T))
    first_v = min(i for i, o in enumerate(sched) if o[0] == 'V')
    last_k = max(i for i, o in enumerate(sched) if o[0] == 'K')
    qpos = cfg.qpos
    tiles_done = 0
    scores_flagged = False
    wo_flagged = False
    for si, o in enumerate(sched):
        win = cfg.wk if si <= last_k else cfg.wv
        if si == cfg.wk_pre:
            I("s_branch L_bulk_main"); SEC("bulkmain"); L("L_bulk_main")
            bulk_setup_b()
        if cfg.late_win and si == cfg.late_slot:
            I("ds_read_b32 v13, v4 offset:%d" % FO(F_LATE))
            I("s_waitcnt lgkmcnt(0)")
            I("v_readfirstlane_b32 s40, v13")
        if len(ops) >= win and not (qpos < si <= qpos + 3):
            sk = None
            late = cfg.late_win and si > cfg.late_slot
            if scores_flagged or late:
                sk = lab("sk")
            if scores_flagged:
                I("s_cmp_lg_u32 s47, 0")
                I("s_cbranch_scc1 %s" % sk)
            if late:
                sk2 = lab("sl")
                if len(ops) >= cfg.late_win: I("s_waitcnt vmcnt(%d)" % (cfg.late_win - 1))
                I("s_cmp_lg_u32 s40, 0")
                I("s_cbranch_scc1 %s" % sk2)
            I("s_waitcnt vmcnt(%d)" % (win - 1))
            if late: L(sk2)
            if scores_flagged and si > cfg.t2 and not cfg.nofree:
                I("ds_read_b32 v13, v4 offset:%d" % FO(eval(cfg.free_flag)))
                I("s_waitcnt lgkmcnt(0)")
                I("v_readfirstlane_b32 s46, v13")
                I("s_lshr_b32 s47, s46, 6")
            if sk: L(sk)
        if si == cfg.t1:
            set_flag_add(4, FO(F_T1), 5); STAMP_(10)
        if si == qpos:
            C("wait q")
            STAMP_(2)
            ensure_tag()
            wait_flag(4, FO(F_Q), 1, 13)
            for hf in range(2):
                I("ds_read_b128 v[%d:%d], v10 offset:%d" % (QA + 4 * hf, QA + 4 * hf + 3, 256 * hf))
            I("s_waitcnt lgkmcnt(0)")
            STAMP_(3)
        if si >= qpos and tiles_done < 4:
            T = tiles_done
            score_tile(T); tiles_done += 1
            if tiles_done == 4:
                set_flag_add(4, FO(F_S), 5); scores_flagged = True
                STAMP_(4)
        if cfg.t3 and si == cfg.t3: set_flag_add(4, FO(F_K), 5)
        if si == cfg.t2:
            set_flag_add(4, FO(F_T2), 5); STAMP_(11)
        if o[0] == 'K':
            _, T, t = o
            I("buffer_load_dwordx4 v[%d:%d], v6, s[48:51], s%d offen offset:%d%s" % (KR + 32 * T + 4 * t, KR + 32 * T + 4 * t + 3, 64 + T, 512 * (t // 2) + 256 * (t % 2), cfg.nt_kv))
            if si == cfg.kflag_slot and not cfg.t3:
                set_flag_add(4, FO(F_K), 5)
            if si == last_k: STAMP_(12)
        elif o[0] == 'V':
            _, T, j = o
            if T >= 1: assert tiles_done > T - 1, "V tile overwrites K tile not yet consumed"
            r = vreg[T] + 4 * j
            I("buffer_load_dwordx4 v[%d:%d], v7, s[52:55], s%d offen offset:%d%s" % (r, r + 3, 64 + T, 512 * j, cfg.nt_kv))
        else:
            i = o[1]
            if i >= 21: assert si > qpos, "wo chunk overlays x before q flag"
            if i % 4 == 0:
                I("s_add_u32 m0, s13, %d" % (i * 1024))
                I("s_mov_b32 s14, %d" % (i * 1024))
            I("buffer_load_dwordx4 v8, s[56:59], s14 offen offset:%d%s lds" % ((i % 4) * 1024, cfg.nt_wo))
        ops.append(o)
    assert tiles_done == 4
    STAMP_(6)
    dstT = {0: TMP, 1: VB, 2: KR, 3: KR + 32}
    def pv_perm(T):
        C("transpose V tile %d" % T)
        wait_op(('V', T, 7))
        R = vreg[T]; Dd = dstT[T]
        for jp in range(8):
            sel = "s68" if jp % 2 == 0 else "s69"
            for i in range(4):
                I("v_perm_b32 v%d, v%d, v%d, %s" % (Dd + 4 * jp + i, R + 4 * (2 * i + 1) + jp // 2, R + 4 * (2 * i) + jp // 2, sel))
    def pv_mfma(T):
        for q in range(8):
            c = "0" if T == 0 else "v[%d:%d]" % (QA + 4 * q, QA + 4 * q + 3)
            I("v_mfma_f32_16x16x32_bf16 v[%d:%d], v[%d:%d], v[%d:%d], %s" % (QA + 4 * q, QA + 4 * q + 3, PF + 4 * T, PF + 4 * T + 3, dstT[T] + 4 * q, dstT[T] + 4 * q + 3, c))
    for T in range(3): pv_perm(T)
    I("ds_read_b32 v13, v4 offset:%d" % FO(F_P))
    I("s_waitcnt lgkmcnt(0)")
    I("v_readfirstlane_b32 s46, v13")
    I("s_lshr_b32 s47, s46, 7")
    if cfg.hack_nop: I("s_mov_b32 s47, 1")
    I("s_cmp_lg_u32 s47, 0")
    I("s_cbranch_scc1 L_p_early")
    pv_perm(3)
    C("wait p")
    wait_flag(4, FO(F_P), 128, 13)
    L("L_p_early")
    for T in range(4):
        I("ds_read_b128 v[%d:%d], v11 offset:%d" % (PF + 4 * T, PF + 4 * T + 3, 512 * T))
    STAMP_(7)
    for T in range(3):
        I("s_waitcnt lgkmcnt(%d)" % (3 - T))
        pv_mfma(T)
    I("s_cmp_lg_u32 s47, 0")
    I("s_cbranch_scc0 L_p_late")
    pv_perm(3)
    L("L_p_late")
    I("s_waitcnt lgkmcnt(0)")
    pv_mfma(3)
    STAMP_(8)
    C("u-sum, pack, write OA")
    OS = 64
    for h in range(2):
        for jp in range(8):
            I("v_add_f32_dpp v%d, v%d, v%d row_ror:8 row_mask:0xf bank_mask:0xf" % (OS + 8 * h + jp, QA + 4 * jp + 2 * h + 1, QA + 4 * jp + 2 * h))
    I("s_mov_b64 exec, 0xff")
    for h in range(2):
        I("ds_write_b128 v12, v[%d:%d] offset:%d" % (OS + 8 * h, OS + 8 * h + 3, 256 * h))
        I("ds_write_b128 v12, v[%d:%d] offset:%d" % (OS + 8 * h + 4, OS + 8 * h + 7, 256 * h + 16))
    I("s_mov_b64 exec, -1")
    I("s_waitcnt lgkmcnt(0)")
    I("s_barrier")
    STAMP_(9)
    stamps_out()
    I("s_endpgm")

    SEC("svc")
    L("L_service")
    if cfg.prio: I("s_setprio %d" % cfg.prio)
    I("s_mov_b32 s14, 0x00ff00ff\ns_mov_b32 s15, 0x00ff00ff")
    I("v_cmp_gt_u32 vcc, 8, v2")
    I("v_lshrrev_b32 v6, 2, v2\nv_lshl_add_u32 v6, v3, 3, v6")
    I("v_and_b32 v7, 3, v2\nv_lshlrev_b32 v7, 3, v7")
    I("v_mul_u32_u24 v8, 896, v6\nv_add_u32 v8, v8, v7")
    I("v_lshl_add_u32 v6, v6, 5, v7")
    I("s_cmp_eq_u32 s3, 7\ns_cbranch_scc1 L_s3")
    I("s_cmp_eq_u32 s3, 6\ns_cbranch_scc1 L_s2_pre")
    I("s_cmp_eq_u32 s3, 5\ns_cbranch_scc1 L_s1")

    XF = 64; AF = 128
    L("L_s0")
    C("S0: wq tile DMA (even idx), gate_w, b2")
    I("v_lshrrev_b32 v9, 2, v0\nv_and_b32 v10, 3, v0\nv_lshlrev_b32 v10, 4, v10")
    I("v_lshl_add_u32 v11, v9, 13, v10")
    tq_calc("s11")
    I("s_lshl_b32 s10, s8, 10\ns_lshl_b32 s11, s11, 6\ns_add_u32 s10, s10, s11")
    I("s_sub_u32 s11, %d, s10" % (448 * 8192))
    I("s_mov_b32 s12, 0\ns_mov_b32 m0, %d" % WQT)
    start_wait()
    if cfg.dbg_start: STAMP_(12)
    I("s_bitcmp1_b32 s9, 0\ns_cbranch_scc1 L_s0_noq1")
    srd_add(48, 22, 23, "s10", "s11")
    if cfg.slow_win: I("s_cmp_ge_u32 s9, 28\ns_cbranch_scc1 L_s0_noq1")
    dma_loop(28, 11, 48, 0x20000, cfg.nt_w)
    L("L_s0_noq1")
    start_ws()
    if cfg.dbg_start: STAMP_(13)
    start_bar()
    I("s_branch L_s0_main"); SEC("s0main"); L("L_s0_main")
    if cfg.slow_win:
        C("the two column tiles whose rows share one memory channel are fetched with few loads in flight")
        I("s_bitcmp1_b32 s9, 0\ns_cbranch_scc1 L_s0_noslow\ns_cmp_ge_u32 s9, 28\ns_cbranch_scc0 L_s0_noslow")
        tq_calc("s11")
        I("s_lshl_b32 s10, s8, 10\ns_lshl_b32 s11, s11, 6\ns_add_u32 s10, s10, s11")
        I("s_sub_u32 s11, %d, s10" % (448 * 8192))
        srd_add(48, 22, 23, "s10", "s11")
        I("s_mov_b32 s12, 0\ns_mov_b32 m0, %d" % WQT)
        dma_loop(28, 11, 48, 0x20000, cfg.nt_w, win=cfg.slow_win)
        L("L_s0_noslow")
    I("v_mov_b32 v13, %d" % OOB)
    wait_flag(4, FO(F_X), 1, 26)
    I("v_and_b32 v12, 7, v2\nv_mul_u32_u24 v12, 896, v12\nv_lshl_add_u32 v12, v3, 4, v12\nv_add_u32 v12, %d, v12" % XL)
    for t in range(14):
        I("ds_read_b128 v[%d:%d], v12 offset:%d" % (XF + 4 * t, XF + 4 * t + 3, 64 * t))
    I("s_mul_i32 s10, s4, 896\ns_add_u32 s10, s10, %d" % XL)
    I("v_min_u32 v14, 55, v0\nv_lshlrev_b32 v14, 4, v14\nv_add_u32 v14, s10, v14")
    I("ds_read_b128 v[32:35], v14")
    I("s_waitcnt vmcnt(0) lgkmcnt(0)")
    STAMP_(2)
    srd(52, 36, 37, "896")
    I("v_lshlrev_b32 v14, 4, v0\nv_cmp_gt_u32 vcc, 56, v0\nv_cndmask_b32 v14, v13, v14, vcc")
    I("buffer_load_dwordx4 v[36:39], v14, s[52:55], 0 offen")
    srd(56, 34, 35, "896")
    I("v_and_b32 v15, 7, v0\nv_lshlrev_b32 v15, 2, v15\ns_lshl_b32 s10, s7, 5")
    I("buffer_load_dword v52, v15, s[56:59], s10 offen")
    I("s_mul_i32 s44, s44, 1664525\ns_add_u32 s44, s44, 1013904223")
    I("s_bitcmp1_b32 s9, 0\ns_cbranch_scc1 L_s0_noq2")
    I("v_lshrrev_b32 v15, 2, v2\nv_lshl_add_u32 v15, v3, 3, v15\nv_lshlrev_b32 v15, 6, v15\nv_add_u32 v15, v15, v7\nv_add_u32 v15, %d, v15" % WQT)
    for t in range(14):
        for ct in range(2):
            r = AF + 8 * t + 4 * ct
            I("ds_read_b64_tr_b16 v[%d:%d], v15 offset:%d" % (r, r + 1, 2048 * t + 32 * ct))
            I("ds_read_b64_tr_b16 v[%d:%d], v15 offset:%d" % (r + 2, r + 3, 2048 * t + 32 * ct + 256))
    I("s_waitcnt lgkmcnt(0)")
    for t in range(14):
        for ct in range(2):
            d = 16 + 4 * ct
            c = "0" if t == 0 else "v[%d:%d]" % (d, d + 3)
            r = AF + 8 * t + 4 * ct
            I("v_mfma_f32_16x16x32_bf16 v[%d:%d], v[%d:%d], v[%d:%d], %s" % (d, d + 3, r, r + 3, XF + 4 * t, XF + 4 * t + 3, c))
    I("v_lshlrev_b32 v14, 6, v2\nv_lshl_add_u32 v14, v3, 3, v14\nv_add_u32 v14, %d, v14" % OG)
    I("v_cvt_pk_bf16_f32 v56, v16, v17\nv_cvt_pk_bf16_f32 v57, v18, v19\nv_cvt_pk_bf16_f32 v58, v20, v21\nv_cvt_pk_bf16_f32 v59, v22, v23")
    I("ds_write_b64 v14, v[56:57]\nds_write_b64 v14, v[58:59] offset:32")
    I("v_lshlrev_b32 v14, 3, v0\nv_add_u32 v14, %d, v14" % OG)
    I("ds_read_b64 v[60:61], v14")
    I("v_lshrrev_b32 v14, 3, v0\nv_lshlrev_b32 v14, 11, v14\nv_and_b32 v15, 7, v0\nv_lshl_add_u32 v14, v15, 4, v14")
    tq_calc("s11")
    I("s_lshl_b32 s10, s8, 14\ns_lshl_b32 s11, s11, 7\ns_add_u32 s10, s10, s11\ns_add_u32 s10, s10, %d" % QBUF)
    I("v_mov_b32 v57, s44\nv_mov_b32 v59, s44")
    I("s_waitcnt lgkmcnt(0)")
    I("v_mov_b32 v56, v60\nv_mov_b32 v58, v61")
    I("buffer_store_dwordx4 v[56:59], v14, s[60:63], s10 offen @STAq@")
    if cfg.qh_cond: sk_ = if_not_local(26)
    I("s_add_u32 s11, s10, %d" % DUP)
    I("buffer_store_dwordx4 v[56:59], v14, s[60:63], s11 offen @ST@")
    if cfg.qh_cond: L(sk_)
    L("L_s0_noq2")
    STAMP_(3)
    C("gate (lanes >= 56 have gate_w = 0)")
    I("s_waitcnt vmcnt(1)" if False else "s_waitcnt vmcnt(0)")
    for q in range(4):
        I("v_lshlrev_b32 v%d, 16, v%d\nv_and_b32 v%d, 0xffff0000, v%d" % (24 + 2 * q, 32 + q, 25 + 2 * q, 32 + q))
        I("v_lshlrev_b32 v%d, 16, v%d\nv_and_b32 v%d, 0xffff0000, v%d" % (40 + 2 * q, 36 + q, 41 + 2 * q, 36 + q))
    for k in range(8): I("v_mul_f32 v%d, v%d, v%d" % (24 + k, 24 + k, 40 + k))
    for q in range(4): rnd_pair(24 + 2 * q, 25 + 2 * q, 24 + 2 * q, 25 + 2 * q, 32)
    I("v_add_f32 v24, v24, v25\nv_add_f32 v26, v26, v27\nv_add_f32 v28, v28, v29\nv_add_f32 v30, v30, v31")
    I("v_add_f32 v24, v24, v26\nv_add_f32 v28, v28, v30\nv_add_f32 v24, v24, v28")
    wave_reduce("v_add_f32", 24, 25)
    rnd_pair(24, 25, 24, 24, 26)
    I("v_mul_f32 v24, 0x%08x, v24" % f2u(-1.4426950408889634))
    I("v_exp_f32 v24, v24\nv_add_f32 v24, 1.0, v24\nv_rcp_f32 v24, v24")
    rnd_pair(50, 25, 24, 24, 26)
    I("v_sub_f32 v24, 1.0, v50")
    rnd_pair(51, 25, 24, 24, 26)
    STAMP_(4)
    C("q gather")
    wait_flag(4, FO(F_T1), 256, 26)
    I("s_lshl_b32 s10, s5, 3\ns_add_u32 s10, s10, s4\ns_lshl_b32 s10, s10, 11\ns_add_u32 s10, s10, %d" % QBUF)
    I("v_lshlrev_b32 v14, 4, v0")
    STAMP_(5)
    def iss():
        I("buffer_load_dwordx4 v[16:19], v14, s[60:63], s10 offen @LD@")
        I("buffer_load_dwordx4 v[20:23], v14, s[60:63], s10 offen offset:1024 @LD@")
    poll(iss, [17, 19, 21, 23], 26, 27, dual=(['s10'] if 'q' in lh else None))
    if cfg.stamps:
        I("s_sub_u32 s86, %d, s45\ns_mov_b32 s87, 0" % (cfg.maxpoll + 1))
    I("v_lshlrev_b32 v15, 3, v0\nv_add_u32 v15, %d, v15" % QL)
    I("ds_write2_b32 v15, v16, v18 offset0:0 offset1:1")
    I("ds_write2_b32 v15, v20, v22 offset0:128 offset1:129")
    set_flag_add(4, FO(F_Q), 5)
    STAMP_(6)
    if cfg.wo_by == 'S0':
        wo_tile('L_s0_wo')
        L('L_s0_wo')
        set_flag_add(4, FO(F_WO), 5)
    C("MLP partial gather (owners)")
    I("s_cmp_ge_u32 s7, 28\ns_cbranch_scc1 L_s0_nomlp")
    wait_flag(4, FO(F_K if cfg.t3 else F_T2), 256, 26)
    I("s_mul_i32 s10, s4, 28\ns_add_u32 s10, s10, s7\ns_lshl_b32 s10, s10, 11\ns_add_u32 s10, s10, %d" % MBUF)
    I("v_lshlrev_b32 v14, 4, v0")
    def iss():
        I("buffer_load_dwordx4 v[16:19], v14, s[60:63], s10 offen @LD@")
        I("buffer_load_dwordx4 v[20:23], v14, s[60:63], s10 offen offset:1024 @LD@")
    poll(iss, [17, 19, 21, 23], 26, 27)
    I("v_add_f32 v16, v16, v20\nv_add_f32 v18, v18, v22")
    def red8(v, t):
        I("v_add_f32_dpp v%d, v%d, v%d row_ror:8 row_mask:0xf bank_mask:0xf" % (v, v, v))
        for sw in ("v_permlane16_swap_b32", "v_permlane32_swap_b32"):
            I("v_mov_b32 v%d, v%d" % (t, v)); I("%s v%d, v%d" % (sw, v, t)); I("v_add_f32 v%d, v%d, v%d" % (v, v, t))
    red8(16, 24); red8(18, 25)
    rnd_pair(16, 18, 16, 18, 26)
    I("v_lshlrev_b32 v24, 16, v52\nv_and_b32 v25, 0xffff0000, v52")
    I("v_add_f32 v16, v16, v24\nv_add_f32 v18, v18, v25")
    rnd_pair(16, 18, 16, 18, 26)
    I("v_mul_f32 v16, v16, v51\nv_mul_f32 v18, v18, v51")
    rnd_pair(53, 54, 16, 18, 26)
    L("L_s0_nomlp")
    STAMP_(7)
    I("s_branch L_outproj")

    SEC("s1start")
    L("L_s1")
    code_prefetch()
    start_sync()
    if cfg.local:
        C("publish this workgroup's die id")
    if cfg.local:
        I("s_getreg_b32 s67, hwreg(HW_REG_XCC_ID)")
    if cfg.local:
        I("v_mov_b32 v13, %d\nv_mov_b32 v18, 0\nv_cmp_eq_u32 vcc, 0, v0\nv_cndmask_b32 v18, v13, v18, vcc" % OOB)
    if cfg.local:
        I("s_lshl_b32 s10, s8, 9\ns_lshl_b32 s11, s9, 3\ns_add_u32 s11, s11, s10\ns_add_u32 s11, s11, %d" % XBUF)
    I("s_waitcnt lgkmcnt(0)")
    I("s_mul_i32 s44, s44, 1664525\ns_add_u32 s44, s44, 1013904223")
    if cfg.local:
        I("v_mov_b32 v16, s67\nv_mov_b32 v17, s44")
    if cfg.local:
        I("buffer_store_dwordx2 v[16:17], v18, s[60:63], s11 offen @ST@")
    if cfg.late_win:
        C("the first workgroup of each die group announces its start")
        I("s_cmp_eq_u32 s9, 0\ns_cbranch_scc0 L_s1_nolead")
        I("v_mov_b32 v13, %d\nv_mov_b32 v18, 0\nv_cmp_eq_u32 vcc, 0, v0\nv_cndmask_b32 v18, v13, v18, vcc" % OOB)
        I("s_lshl_b32 s11, s8, 7\ns_add_u32 s11, s11, %d\nv_mov_b32 v16, s44\nv_mov_b32 v17, s44" % TBUF)
        I("buffer_store_dwordx2 v[16:17], v18, s[60:63], s11 offen @ST@")
        L("L_s1_nolead")
    start_bar()
    I("s_branch L_s1_main"); SEC("s1main"); L("L_s1_main")
    if cfg.late_win:
        C("a workgroup that already sees several other groups' announcements started late and gets a wider load window")
        I("v_mov_b32 v13, %d\nv_lshlrev_b32 v19, 7, v0\nv_cmp_gt_u32 vcc, 8, v0\nv_cndmask_b32 v19, v13, v19, vcc" % OOB)
        I("s_mov_b32 s11, %d" % TBUF)
        I("buffer_load_dwordx2 v[20:21], v19, s[60:63], s11 offen @LD@")
        I("s_waitcnt vmcnt(0)")
        I("v_cmp_eq_u32 vcc, s44, v21")
        I("s_and_b32 s10, vcc_lo, 0xff\ns_bcnt1_i32_b32 s10, s10\ns_cmp_ge_u32 s10, %d\ns_cbranch_scc0 L_s1_early" % cfg.late_cnt)
        set_flag_add(4, FO(F_LATE), 5)
        L("L_s1_early")
        if cfg.stamps: I("s_mov_b32 s86, s10\ns_mov_b32 s87, 0")
    if cfg.die_by == 'S1':
        die_check("a")
        STAMP_(7)
    I("s_cmp_ge_u32 s9, 28\ns_cbranch_scc1 L_s1_none")
    C("M2: w2 tile [112 rows x 32 columns]; s12 = k range (0..15), s13 = column tile (0..13)")
    I("s_cmp_ge_u32 s9, 14\ns_cselect_b32 s12, 1, 0\ns_mul_i32 s13, s12, 14\ns_sub_u32 s13, s9, s13\ns_lshl_b32 s11, s8, 1\ns_add_u32 s12, s12, s11")
    I("s_mov_b32 s68, s12\ns_mov_b32 s69, s13")
    I("s_mul_i32 s10, s12, %d\ns_lshl_b32 s11, s13, 6\ns_add_u32 s10, s10, s11" % (112 * 896))
    I("s_sub_u32 s11, %d, s10" % (1792 * 896))
    srd_add(48, 32, 33, "s10", "s11")
    I("v_lshrrev_b32 v9, 2, v0\nv_and_b32 v10, 3, v0\nv_lshlrev_b32 v10, 4, v10")
    I("v_mul_u32_u24 v11, 896, v9\nv_add_u32 v11, v11, v10")
    if cfg.w2_trig: wait_flag(4, FO(eval(cfg.w2_trig)), 256, 26)
    I("s_mov_b32 s12, 0\ns_mov_b32 m0, %d" % W2T)
    for i in range(7):
        if i >= cfg.w2_win: I("s_waitcnt vmcnt(%d)" % (cfg.w2_win - 1))
        I("buffer_load_dwordx4 v11, s[48:51], s12 offen%s lds" % cfg.nt_w)
        if i < 6: I("s_add_u32 m0, m0, 1024\ns_add_u32 s12, s12, %d" % (16 * 896))
    I("s_waitcnt vmcnt(0) lgkmcnt(0)")
    I("v_lshrrev_b32 v15, 2, v2\nv_lshl_add_u32 v15, v3, 3, v15\nv_lshlrev_b32 v15, 6, v15\nv_add_u32 v15, v15, v7\nv_add_u32 v15, %d, v15" % W2T)
    I("v_and_b32 v12, 1, v3\nv_lshrrev_b32 v14, 2, v2\nv_lshl_add_u32 v14, v12, 3, v14\nv_lshlrev_b32 v14, 6, v14\nv_add_u32 v14, v14, v7\nv_add_u32 v14, %d, v14" % W2T)
    for t in range(4):
        for ct in range(2):
            r = 160 + 8 * t + 4 * ct
            a_ = 15 if t < 3 else 14
            I("ds_read_b64_tr_b16 v[%d:%d], v%d offset:%d" % (r, r + 1, a_, 2048 * t + 32 * ct))
            I("ds_read_b64_tr_b16 v[%d:%d], v%d offset:%d" % (r + 2, r + 3, a_, 2048 * t + 32 * ct + 256))
    I("s_waitcnt lgkmcnt(0)")
    STAMP_(2)
    wait_flag(4, FO(eval(cfg.h_trig)), 256, 26)
    STAMP_(3)
    I("v_mov_b32 v13, %d" % OOB)
    I("v_lshrrev_b32 v9, 3, v0\nv_and_b32 v10, 7, v0\nv_mul_u32_u24 v14, 7168, v9\nv_lshl_add_u32 v14, v10, 4, v14")
    I("v_cmp_gt_u32 vcc, 4, v10\nv_cndmask_b32 v12, v13, v14, vcc")
    I("s_mul_i32 s10, s68, 448\ns_add_u32 s10, s10, %d" % HBUF)
    I("s_mov_b32 s14, 0x0f0f0f0f\ns_mov_b32 s15, 0x0f0f0f0f")
    def iss():
        for i in range(3):
            r = 64 + 4 * i
            I("buffer_load_dwordx4 v[%d:%d], v14, s[60:63], s10 offen offset:%d @LD@" % (r, r + 3, 128 * i))
        I("buffer_load_dwordx4 v[76:79], v12, s[60:63], s10 offen offset:384 @LD@")
    lp = lab("pl"); dn = lab("pld")
    I("s_mov_b32 s45, %d" % cfg.maxpoll)
    dual_init(['s10'] if 'h' in lh else None)
    L(lp)
    iss()
    I("s_waitcnt vmcnt(0)")
    I("v_mov_b32 v28, s44")
    I("v_cndmask_b32 v77, v28, v77, s[14:15]\nv_cndmask_b32 v79, v28, v79, s[14:15]")
    check_tags([65, 67, 69, 71, 73, 75, 77, 79], 26, 27)
    I("s_cbranch_scc1 %s" % dn)
    if cfg.backoff: I("s_sleep %d" % cfg.backoff)
    I("s_sub_u32 s45, s45, 1")
    dual_next(['s10'] if 'h' in lh else None)
    I("s_cmp_lg_u32 s45, 0\ns_cbranch_scc1 %s" % lp)
    L(dn)
    STAMP_(4)
    I("v_mul_u32_u24 v15, 272, v9\nv_lshl_add_u32 v15, v10, 3, v15\nv_add_u32 v15, %d, v15" % HL)
    for i in range(4):
        I("ds_write2_b32 v15, v%d, v%d offset0:%d offset1:%d" % (64 + 4 * i, 64 + 4 * i + 2, 16 * i, 16 * i + 1))
    I("v_and_b32 v15, 7, v2\nv_mul_u32_u24 v15, 272, v15\nv_lshl_add_u32 v15, v3, 4, v15\nv_add_u32 v15, %d, v15" % HL)
    I("s_waitcnt lgkmcnt(0)")
    for t in range(4):
        I("ds_read_b128 v[%d:%d], v15 offset:%d" % (128 + 4 * t, 128 + 4 * t + 3, 64 * t))
    I("s_waitcnt lgkmcnt(0)")
    for t in range(4):
        for ct in range(2):
            d = 16 + 4 * ct
            c = "0" if t == 0 else "v[%d:%d]" % (d, d + 3)
            r = 160 + 8 * t + 4 * ct
            I("v_mfma_f32_16x16x32_bf16 v[%d:%d], v[%d:%d], v[%d:%d], %s" % (d, d + 3, 128 + 4 * t, 128 + 4 * t + 3, r, r + 3, c))
    I("v_and_b32 v14, 1, v3\nv_mul_u32_u24 v14, %d, v14\nv_lshrrev_b32 v16 + 0, 1, v3" .replace("v16 + 0", "v24") % (4 * 28 * 2048))
    I("v_lshl_add_u32 v14, v24, 11, v14\nv_lshl_add_u32 v14, v2, 3, v14")
    I("s_lshl_b32 s10, s69, 12\ns_lshl_b32 s11, s68, 7\ns_add_u32 s10, s10, s11\ns_add_u32 s10, s10, %d" % MBUF)
    I("s_mov_b32 s48, 0\ns_mov_b32 s49, -1")
    for r in range(4):
        I("v_mov_b32 v%d, s44" % (33 + 2 * r))
        I("v_cndmask_b32 v%d, v%d, v%d, s[48:49]" % (32 + 2 * r, 16 + r, 20 + r))
    for r in range(4):
        I("s_add_u32 s11, s10, %d" % (r * 28 * 2048))
        I("buffer_store_dwordx2 v[%d:%d], v14, s[60:63], s11 offen @ST@" % (32 + 2 * r, 33 + 2 * r))
    STAMP_(5)
    L("L_s1_none")
    if cfg.wo_by == 'S1':
        wo_tile('L_s1_wo')
        L('L_s1_wo')
        set_flag_add(4, FO(F_WO), 5)
        STAMP_(6)
    I("s_branch L_outproj")

    SEC("s3start")
    L("L_s3")
    C("wave 7: x -> LDS, then the wo tile (128 rows x 64 columns; batch b < 7 takes column block b)")
    I("v_lshlrev_b32 v9, 4, v0\ns_mov_b32 m0, %d\ns_mov_b32 s12, 0" % XL)
    start_sync()
    srd(48, 16, 17, "7168")
    if cfg.x_late: start_bar()
    for i in range(7):
        if i == 4: I("s_mov_b32 m0, %d\ns_mov_b32 s12, 4096" % (XL + 4096))
        I("buffer_load_dwordx4 v9, s[48:51], s12 offen offset:%d lds" % ((i % 4) * 1024))
    if not cfg.x_late: start_bar()
    I("s_branch L_s3_main"); SEC("s3main"); L("L_s3_main")
    I("s_waitcnt vmcnt(0)")
    set_flag_add(4, FO(F_X), 5)
    STAMP_(2)
    I("s_waitcnt lgkmcnt(0)")
    I("s_mul_i32 s44, s44, 1664525\ns_add_u32 s44, s44, 1013904223")
    if cfg.wo_by == 'S3': wo_tile('L_s3_fin')
    L("L_s3_fin")
    if cfg.wo_by == 'S3': set_flag_add(4, FO(F_WO), 5)
    I("s_branch L_softmax")
    SEC("s2start")
    L("L_s2_pre")
    C("wave 6: zero flags, w1 tile")
    I("v_lshlrev_b32 v9, 2, v0\nv_add_u32 v9, %d, v9\nv_mov_b32 v10, 0" % FLG)
    I("s_mov_b64 exec, 0xffff\nds_write_b32 v9, v10\ns_mov_b64 exec, -1")
    I("v_lshrrev_b32 v9, 1, v0\nv_and_b32 v10, 1, v0\nv_lshlrev_b32 v10, 4, v10")
    I("v_mul_u32_u24 v14, 3584, v9\nv_add_u32 v14, v14, v10")
    I("v_lshlrev_b32 v15, 3, v3")
    I("s_lshr_b32 s10, s9, 1\ns_mul_i32 s11, s8, 14\ns_add_u32 s10, s10, s11")
    I("s_mov_b32 s69, s10")
    I("s_lshl_b32 s10, s10, 5\ns_sub_u32 s11, %d, s10" % (448 * 3584))
    I("s_mov_b32 s12, 0\ns_mov_b32 m0, %d" % W1T)
    start_wait()
    I("s_bitcmp0_b32 s9, 0\ns_cbranch_scc1 L_s2_nom1\ns_cmp_ge_u32 s9, 28\ns_cbranch_scc1 L_s2_nom1")
    srd_add(56, 28, 29, "s10", "s11")
    dma_loop(14, 14, 56, 32 * 3584, cfg.nt_w)
    srd(64, 30, 31, "3584")
    I("buffer_load_dwordx2 v[24:25], v15, s[64:67], s10 offen")
    L("L_s2_nom1")
    start_ws()
    start_bar()
    I("s_branch L_s2_main"); SEC("s2main"); L("L_s2_main")
    I("s_waitcnt lgkmcnt(0)")
    I("s_mul_i32 s44, s44, 1664525\ns_add_u32 s44, s44, 1013904223")
    I("s_bitcmp0_b32 s9, 0\ns_cbranch_scc1 L_softmax\ns_cmp_ge_u32 s9, 28\ns_cbranch_scc1 L_softmax")
    wait_flag(4, FO(F_X), 1, 26)
    C("LayerNorm (wave 6, M1 workgroups)")
    I("v_lshrrev_b32 v9, 3, v0\nv_and_b32 v10, 7, v0\nv_lshlrev_b32 v10, 4, v10")
    I("v_mul_u32_u24 v11, 896, v9\nv_add_u32 v11, v11, v10\nv_add_u32 v11, %d, v11" % XL)
    for i in range(7):
        I("ds_read_b128 v[%d:%d], v11 offset:%d" % (64 + 4 * i, 64 + 4 * i + 3, 128 * i))
    I("v_mul_u32_u24 v12, 912, v9\nv_add_u32 v12, v12, v10\nv_add_u32 v12, %d, v12" % YL)
    I("s_waitcnt lgkmcnt(0)")
    set_flag_add(4, FO(F_Y), 5)
    F = 128
    for k in range(28):
        I("v_lshlrev_b32 v%d, 16, v%d\nv_and_b32 v%d, 0xffff0000, v%d" % (F + 2 * k, 64 + k, F + 2 * k + 1, 64 + k))
    I("v_pk_add_f32 v[16:17], v[%d:%d], v[%d:%d]" % (F, F + 1, F + 2, F + 3))
    for k in range(2, 28):
        I("v_pk_add_f32 v[16:17], v[16:17], v[%d:%d]" % (F + 2 * k, F + 2 * k + 1))
    I("v_add_f32 v16, v16, v17")
    def red_p(v):
        for mod in ("quad_perm:[1,0,3,2]", "quad_perm:[2,3,0,1]", "row_half_mirror"):
            I("v_add_f32_dpp v%d, v%d, v%d %s row_mask:0xf bank_mask:0xf" % (v, v, v, mod))
    red_p(16)
    I("v_mul_f32 v16, 0x%08x, v16" % f2u(1.0 / 448))
    rnd_pair(18, 19, 16, 16, 17)
    I("v_sub_f32 v20, v16, v18")
    I("v_sub_f32 v18, 0, v18\nv_mov_b32 v19, v18")
    for k in range(28):
        I("v_pk_add_f32 v[%d:%d], v[%d:%d], v[18:19]" % (F + 2 * k, F + 2 * k + 1, F + 2 * k, F + 2 * k + 1))
    I("v_pk_mul_f32 v[16:17], v[%d:%d], v[%d:%d]" % (F, F + 1, F, F + 1))
    for k in range(1, 28):
        I("v_pk_fma_f32 v[16:17], v[%d:%d], v[%d:%d], v[16:17]" % (F + 2 * k, F + 2 * k + 1, F + 2 * k, F + 2 * k + 1))
    I("v_add_f32 v16, v16, v17")
    red_p(16)
    I("v_mul_f32 v16, 0x%08x, v16" % f2u(1.0 / 448))
    I("v_fma_f32 v16, -v20, v20, v16\nv_max_f32 v16, 0, v16")
    rnd_pair(16, 17, 16, 16, 21)
    I("v_add_f32 v16, 0x%08x, v16" % f2u(1e-5))
    rnd_pair(16, 17, 16, 16, 21)
    I("v_sqrt_f32 v16, v16")
    rnd_pair(16, 17, 16, 16, 21)
    I("v_rcp_f32 v16, v16")
    I("v_mov_b32 v17, v16")
    for k in range(28):
        I("v_pk_mul_f32 v[%d:%d], v[%d:%d], v[16:17]" % (F + 2 * k, F + 2 * k + 1, F + 2 * k, F + 2 * k + 1))
    for k in range(28):
        I("v_cvt_pk_bf16_f32 v%d, v%d, v%d" % (64 + k, F + 2 * k, F + 2 * k + 1))
    for i in range(7):
        I("ds_write_b128 v12, v[%d:%d] offset:%d" % (64 + 4 * i, 64 + 4 * i + 3, 128 * i))
    STAMP_(2)
    C("M1: h tile")
    I("s_waitcnt vmcnt(0) lgkmcnt(0)")
    I("v_mov_b32 v13, %d" % OOB)
    I("v_and_b32 v15, 7, v2\nv_mul_u32_u24 v15, 912, v15\nv_lshl_add_u32 v15, v3, 4, v15\nv_add_u32 v15, %d, v15" % YL)
    for t in range(14):
        I("ds_read_b128 v[%d:%d], v15 offset:%d" % (XF + 4 * t, XF + 4 * t + 3, 64 * t))
    I("v_add_u32 v15, %d, v6" % W1T)
    for t in range(14):
        I("ds_read_b64_tr_b16 v[%d:%d], v15 offset:%d" % (AF + 4 * t, AF + 4 * t + 1, 1024 * t))
        I("ds_read_b64_tr_b16 v[%d:%d], v15 offset:%d" % (AF + 4 * t + 2, AF + 4 * t + 3, 1024 * t + 128))
    I("s_waitcnt lgkmcnt(0)")
    for t in range(14):
        c = "0" if t == 0 else "v[16:19]"
        I("v_mfma_f32_16x16x32_bf16 v[16:19], v[%d:%d], v[%d:%d], %s" % (AF + 4 * t, AF + 4 * t + 3, XF + 4 * t, XF + 4 * t + 3, c))
    rnd_pair(16, 17, 16, 17, 26)
    rnd_pair(18, 19, 18, 19, 27)
    I("v_lshlrev_b32 v28, 16, v24\nv_and_b32 v29, 0xffff0000, v24\nv_lshlrev_b32 v30, 16, v25\nv_and_b32 v31, 0xffff0000, v25")
    for r in range(4): I("v_add_f32 v%d, v%d, v%d" % (16 + r, 16 + r, 28 + r))
    rnd_pair(16, 17, 16, 17, 26)
    rnd_pair(18, 19, 18, 19, 27)
    k0 = -2.0 * 0.7978845608028654 * 1.4426950408889634
    k1 = k0 * 0.044715
    I("s_mov_b32 s10, 0x%08x\ns_mov_b32 s11, 0x%08x" % (f2u(k0), f2u(k1)))
    I("v_mov_b32 v32, s10")
    for r in range(4):
        I("v_mul_f32 v%d, v%d, v%d" % (28 + r, 16 + r, 16 + r))
        I("v_fma_f32 v%d, v%d, s11, v32" % (28 + r, 28 + r))
        I("v_mul_f32 v%d, v%d, v%d" % (28 + r, 28 + r, 16 + r))
    for r in range(4): I("v_exp_f32 v%d, v%d" % (28 + r, 28 + r))
    for r in range(4): I("v_add_f32 v%d, 1.0, v%d" % (28 + r, 28 + r))
    for r in range(4): I("v_rcp_f32 v%d, v%d" % (28 + r, 28 + r))
    for r in range(4): I("v_mul_f32 v%d, v%d, v%d" % (16 + r, 16 + r, 28 + r))
    I("v_cvt_pk_bf16_f32 v20, v16, v17\nv_cvt_pk_bf16_f32 v21, v18, v19")
    I("v_lshlrev_b32 v14, 5, v2\nv_lshl_add_u32 v14, v3, 3, v14\nv_add_u32 v14, %d, v14" % SG)
    I("ds_write_b64 v14, v[20:21]")
    I("v_lshlrev_b32 v14, 3, v0\nv_add_u32 v14, %d, v14" % SG)
    I("ds_read_b64 v[24:25], v14")
    I("v_lshrrev_b32 v14, 2, v0\nv_mul_u32_u24 v14, 7168, v14\nv_and_b32 v15, 3, v0\nv_lshl_add_u32 v14, v15, 4, v14\nv_cmp_gt_u32 vcc, 32, v0\nv_cndmask_b32 v14, v13, v14, vcc")
    I("s_lshl_b32 s10, s69, 6\ns_add_u32 s10, s10, %d" % HBUF)
    I("v_mov_b32 v21, s44\nv_mov_b32 v23, s44")
    I("s_waitcnt lgkmcnt(0)")
    I("v_mov_b32 v20, v24\nv_mov_b32 v22, v25")
    I("buffer_store_dwordx4 v[20:23], v14, s[60:63], s10 offen @STAh@")
    if cfg.qh_cond: sk_ = if_not_local(26)
    I("s_add_u32 s11, s10, %d" % DUP)
    I("buffer_store_dwordx4 v[20:23], v14, s[60:63], s11 offen @ST@")
    if cfg.qh_cond: L(sk_)
    STAMP_(6)
    L("L_softmax")
    C("softmax for head (wave-6); wave 6 gathers the scores and hands the raw words to wave 7 through LDS")
    I("v_lshlrev_b32 v15, 4, v0\nv_add_u32 v15, %d, v15" % SG)
    I("s_cmp_eq_u32 s3, 6\ns_cbranch_scc0 L_sm_w7")
    wait_flag(4, FO(F_T2), 256, 26)
    STAMP_(3)
    I("s_lshl_b32 s10, s4, 3\ns_add_u32 s10, s10, s5\ns_lshl_b32 s10, s10, 13\ns_add_u32 s10, s10, %d\ns_add_u32 s11, s10, 4096" % SBUF)
    I("v_lshlrev_b32 v14, 4, v0")
    def iss():
        for i in range(8):
            I("buffer_load_dwordx4 v[%d:%d], v14, s[60:63], s%d offen offset:%d @LD@" % (64 + 4 * i, 64 + 4 * i + 3, 10 + i // 4, (i % 4) * 1024))
    tags = []
    for k in range(8): tags += [64 + 4 * k + 1, 64 + 4 * k + 3]
    poll(iss, tags, 26, 27, after_first=lambda: (STAMP_(7), set_flag_add(4, FO(F_SP), 5)), dual=(['s10', 's11'] if 's' in lh else None))
    if cfg.stamps:
        I("s_sub_u32 s86, %d, s45\ns_mov_b32 s87, 0" % (cfg.maxpoll + 1))
    for i in range(8):
        I("v_mov_b32 v%d, v%d\nv_mov_b32 v%d, v%d" % (96 + 2 * i, 64 + 4 * i, 96 + 2 * i + 1, 64 + 4 * i + 2))
    for q in range(4):
        I("ds_write_b128 v15, v[%d:%d] offset:%d" % (96 + 4 * q, 96 + 4 * q + 3, 1024 * q))
    set_flag_add(4, FO(F_G), 5)
    I("s_branch L_sm_go")
    L("L_sm_w7")
    if cfg.local:
        C("wave 7 checks whether the hand-off group sits on one die")
        wait_flag(4, FO(F_T1), 256, 26)
        if cfg.die_by == 'S3': die_check("a")
    if 's' in lh:
        C("write-through copy of this workgroup's scores (unless the group is on one die)")
        skw7 = if_not_local(26)
        wait_flag(4, FO(F_S), 256, 26)
        I("v_lshlrev_b32 v9, 2, v0\nv_add_u32 v9, %d, v9" % SL)
        for w in range(4): I("ds_read_b32 v%d, v9 offset:%d" % (32 + 2 * w, 256 * w))
        I("v_lshlrev_b32 v10, 11, v3\nv_lshl_add_u32 v10, v2, 3, v10")
        I("s_lshl_b32 s10, s4, 3\ns_add_u32 s10, s10, s5\ns_lshl_b32 s10, s10, 13\ns_lshl_b32 s11, s6, 9\ns_add_u32 s10, s10, s11\ns_add_u32 s10, s10, %d" % (SBUF + DUP))
        for w in range(4): I("v_mov_b32 v%d, s44" % (33 + 2 * w))
        I("s_waitcnt lgkmcnt(0)")
        for w in range(4):
            I("buffer_store_dwordx2 v[%d:%d], v10, s[60:63], s10 offen offset:%d @ST@" % (32 + 2 * w, 33 + 2 * w, 128 * w))
        L(skw7)
    wait_flag(4, FO(F_G), 1, 26)
    for q in range(4):
        I("ds_read_b128 v[%d:%d], v15 offset:%d" % (96 + 4 * q, 96 + 4 * q + 3, 1024 * q))
    I("s_waitcnt lgkmcnt(0)")
    L("L_sm_go")
    STAMP_(4)
    I("s_mov_b32 s12, 0x01000c0c\ns_cmp_eq_u32 s3, 6\ns_cselect_b32 s12, s12, 0x03020c0c")
    F = 128
    for i in range(16):
        I("v_perm_b32 v%d, v%d, v%d, s12" % (F + i, 96 + i, 96 + i))
    I("v_max3_f32 v16, v%d, v%d, v%d" % (F, F + 1, F + 2))
    for k in range(3, 15, 2): I("v_max3_f32 v16, v16, v%d, v%d" % (F + k, F + k + 1))
    I("v_max_f32 v16, v16, v%d" % (F + 15))
    wave_reduce("v_max_f32", 16, 17)
    cexp = 1.4426950408889634 / 16.0
    I("s_mov_b32 s13, 0x%08x" % f2u(cexp))
    I("v_mul_f32 v16, s13, v16\nv_sub_f32 v16, 0, v16")
    for k in range(16): I("v_fma_f32 v%d, v%d, s13, v16" % (F + k, F + k))
    for k in range(16): I("v_exp_f32 v%d, v%d" % (F + k, F + k))
    I("v_add_f32 v17, v%d, v%d" % (F, F + 1))
    I("v_add_f32 v18, v%d, v%d" % (F + 2, F + 3))
    for k in range(4, 16, 2):
        I("v_add_f32 v17, v17, v%d\nv_add_f32 v18, v18, v%d" % (F + k, F + k + 1))
    I("v_add_f32 v17, v17, v18")
    wave_reduce("v_add_f32", 17, 18)
    I("v_rcp_f32 v17, v17")
    for k in range(16): I("v_mul_f32 v%d, v%d, v17" % (F + k, F + k))
    for i in range(8): I("v_cvt_pk_bf16_f32 v%d, v%d, v%d" % (64 + i, F + 2 * i, F + 2 * i + 1))
    I("s_sub_u32 s12, s3, 6\ns_lshl_b32 s12, s12, 11\ns_add_u32 s12, s12, %d" % PL)
    I("v_lshlrev_b32 v15, 2, v0\nv_add_u32 v15, s12, v15")
    for i in range(8): I("ds_write_b32 v15, v%d offset:%d" % (64 + i, 256 * i))
    set_flag_add(4, FO(F_P), 5)
    STAMP_(5)

    L("L_outproj")
    BF = 128
    I("s_cmp_eq_u32 s3, 5\ns_cbranch_scc1 L_s1_tail")
    I("s_cmp_ge_u32 s3, 6\ns_cbranch_scc1 L_s23_end")
    C("wave 4: preload wo fragments for four 16-column tiles")
    wait_flag(4, FO(F_WO), 1, 26)
    I("v_lshrrev_b32 v8, 2, v2\nv_lshl_add_u32 v8, v3, 3, v8\nv_lshlrev_b32 v8, 7, v8\nv_add_u32 v8, v8, v7")
    if WOT: I("v_add_u32 v8, %d, v8" % WOT)
    for t in range(4):
        for tt in range(4):
            r = BF + 4 * (t * 4 + tt)
            I("ds_read_b64_tr_b16 v[%d:%d], v8 offset:%d" % (r, r + 1, t * 4096 + tt * 32))
            I("ds_read_b64_tr_b16 v[%d:%d], v8 offset:%d" % (r + 2, r + 3, t * 4096 + tt * 32 + 512))
    I("v_mov_b32 v13, %d" % OOB)
    I("v_lshlrev_b32 v10, 4, v0")
    I("s_lshl_b32 s10, s7, 12\ns_add_u32 s10, s10, %d" % OBUF)
    I("s_lshl_b32 s11, s4, 9\nv_add_u32 v11, s11, v10\nv_cmp_gt_u32 vcc, 32, v0\nv_cndmask_b32 v11, v13, v11, vcc")
    I("v_and_b32 v12, 31, v0\nv_lshlrev_b32 v12, 4, v12\nv_add_u32 v12, %d, v12" % OA)
    I("v_lshrrev_b32 v9, 5, v0\nv_mul_u32_u24 v9, 272, v9\nv_and_b32 v15, 31, v0\nv_lshl_add_u32 v9, v15, 3, v9\nv_add_u32 v9, %d, v9" % OG)
    I("v_and_b32 v15, 7, v2\nv_mul_u32_u24 v15, 272, v15\nv_lshl_add_u32 v15, v3, 4, v15\nv_add_u32 v15, %d, v15" % OG)
    I("v_and_b32 v14, 1, v3\nv_mul_u32_u24 v14, %d, v14\nv_lshrrev_b32 v16, 1, v3\nv_lshl_add_u32 v14, v16, 12, v14\nv_lshl_add_u32 v14, v2, 3, v14" % (4 * 28 * 4096))
    I("s_lshl_b32 s11, s4, 14\ns_lshl_b32 s13, s7, 7\ns_add_u32 s11, s11, s13\ns_add_u32 s11, s11, %d" % PBUF)
    I("s_mov_b32 s48, 0\ns_mov_b32 s49, -1")
    for k in range(8): I("v_mov_b32 v%d, s44" % (193 + 2 * k))
    I("v_mov_b32 v57, s44\nv_mov_b32 v59, s44")
    I("v_mov_b32 v60, v50\nv_mov_b32 v61, v53\nv_mov_b32 v62, v54\nv_mov_b32 v63, 0\nv_lshlrev_b32 v16, 4, v0\nv_add_u32 v16, %d, v16" % FIN)
    I("s_mov_b64 exec, 0xff\nds_write_b128 v16, v[60:63]\ns_mov_b64 exec, -1")
    if 'o' in lh: dual_pre(26)
    I("s_waitcnt lgkmcnt(0)")
    STAMP_(9)
    I("s_barrier")
    STAMP_(10)
    C("reduce the four o partials, round, publish")
    for w in range(4):
        I("ds_read_b128 v[%d:%d], v12 offset:%d" % (64 + 4 * w, 64 + 4 * w + 3, 512 * w))
    I("s_waitcnt lgkmcnt(2)")
    I("v_pk_add_f32 v[64:65], v[64:65], v[68:69]\nv_pk_add_f32 v[66:67], v[66:67], v[70:71]")
    I("s_waitcnt lgkmcnt(0)")
    I("v_pk_add_f32 v[72:73], v[72:73], v[76:77]\nv_pk_add_f32 v[74:75], v[74:75], v[78:79]")
    I("v_pk_add_f32 v[64:65], v[64:65], v[72:73]\nv_pk_add_f32 v[66:67], v[66:67], v[74:75]")
    I("v_cvt_pk_bf16_f32 v56, v64, v65\nv_cvt_pk_bf16_f32 v58, v66, v67")
    I("buffer_store_dwordx4 v[56:59], v11, s[60:63], s10 offen @STAo@")
    STAMP_(11)
    I("s_cmp_eq_u32 s4, 7\ns_cbranch_scc1 L_noproj")
    def iss():
        for k in range(4):
            I("buffer_load_dwordx4 v[%d:%d], v10, s[60:63], s10 offen offset:%d @LD@" % (64 + 4 * k, 64 + 4 * k + 3, 1024 * k))
    tags = []
    for k in range(4): tags += [64 + 4 * k + 1, 64 + 4 * k + 3]
    poll(iss, tags, 26, 27, backoff=cfg.tail_backoff, dual=(['s10'] if 'o' in lh else None), dual_pre_done=True)
    if not cfg.dbg_start: STAMP_(12)
    for k in range(4):
        I("ds_write2_b32 v9, v%d, v%d offset0:%d offset1:%d" % (64 + 4 * k, 64 + 4 * k + 2, 136 * k, 136 * k + 1) if 136 * k + 1 < 256 else
          "v_add_u32 v9, %d, v9\nds_write2_b32 v9, v%d, v%d offset0:%d offset1:%d" % (544 * 2 if k == 2 else 0, 64 + 4 * k, 64 + 4 * k + 2, 136 * (k - 2), 136 * (k - 2) + 1) if k == 2 else
          "ds_write2_b32 v9, v%d, v%d offset0:%d offset1:%d" % (64 + 4 * k, 64 + 4 * k + 2, 136 * (k - 2), 136 * (k - 2) + 1))
    I("s_waitcnt lgkmcnt(0)")
    for t in range(4):
        I("ds_read_b128 v[%d:%d], v15 offset:%d" % (96 + 4 * t, 96 + 4 * t + 3, 64 * t))
    for t in range(4):
        I("s_waitcnt lgkmcnt(%d)" % (3 - t))
        for tt in range(4):
            r = BF + 4 * (t * 4 + tt); d = 16 + 4 * tt
            c = "0" if t == 0 else "v[%d:%d]" % (d, d + 3)
            I("v_mfma_f32_16x16x32_bf16 v[%d:%d], v[%d:%d], v[%d:%d], %s" % (d, d + 3, 96 + 4 * t, 96 + 4 * t + 3, r, r + 3, c))
    for p in range(2):
        for r in range(4):
            k = p * 4 + r
            I("v_cndmask_b32 v%d, v%d, v%d, s[48:49]" % (192 + 2 * k, 16 + 8 * p + r, 16 + 8 * p + 4 + r))
        for r in range(4):
            k = p * 4 + r
            I("s_add_u32 s13, s11, %d" % (r * 28 * 4096 + p * 2 * 4096))
            I("buffer_store_dwordx2 v[%d:%d], v14, s[60:63], s13 offen @ST@" % (192 + 2 * k, 193 + 2 * k))
    L("L_noproj")
    set_flag_add(4, FO(F_PUB), 5)
    if not cfg.dbg_start: STAMP_(13)
    I("s_branch L_sdone")
    L("L_s1_tail")
    I("v_mov_b32 v13, %d" % OOB)
    if 'o' in lh:
        I("v_lshlrev_b32 v10, 4, v0\ns_lshl_b32 s10, s7, 12\ns_add_u32 s10, s10, %d" % (OBUF + DUP))
        I("s_lshl_b32 s11, s4, 9\nv_add_u32 v11, s11, v10\nv_cmp_gt_u32 vcc, 32, v0\nv_cndmask_b32 v11, v13, v11, vcc")
        I("v_and_b32 v12, 31, v0\nv_lshlrev_b32 v12, 4, v12\nv_add_u32 v12, %d, v12" % OA)
        I("v_mov_b32 v57, s44\nv_mov_b32 v59, s44")
    I("s_mul_i32 s12, s4, 28\ns_add_u32 s12, s12, s7\ns_lshl_b32 s12, s12, 12\ns_add_u32 s12, s12, %d" % PBUF)
    I("v_lshlrev_b32 v14, 4, v0")
    I("v_and_b32 v15, 7, v0\nv_lshlrev_b32 v15, 4, v15\nv_add_u32 v15, %d, v15" % FIN)
    srd(48, 38, 39, "7168")
    I("v_lshlrev_b32 v9, 2, v0\nv_cmp_gt_u32 vcc, 8, v0\nv_cndmask_b32 v9, v13, v9, vcc")
    I("s_mul_i32 s13, s4, 896\ns_lshl_b32 s14, s7, 5\ns_add_u32 s13, s13, s14")
    I("s_waitcnt vmcnt(0) lgkmcnt(0)")
    I("s_barrier")
    if 'o' in lh:
        C("write-through copy of o (unless the group is on one die)")
        sk_ = if_not_local(26)
        for w in range(4):
            I("ds_read_b128 v[%d:%d], v12 offset:%d" % (64 + 4 * w, 64 + 4 * w + 3, 512 * w))
        I("s_waitcnt lgkmcnt(0)")
        I("v_pk_add_f32 v[64:65], v[64:65], v[68:69]\nv_pk_add_f32 v[66:67], v[66:67], v[70:71]")
        I("v_pk_add_f32 v[72:73], v[72:73], v[76:77]\nv_pk_add_f32 v[74:75], v[74:75], v[78:79]")
        I("v_pk_add_f32 v[64:65], v[64:65], v[72:73]\nv_pk_add_f32 v[66:67], v[66:67], v[74:75]")
        I("v_cvt_pk_bf16_f32 v56, v64, v65\nv_cvt_pk_bf16_f32 v58, v66, v67")
        I("buffer_store_dwordx4 v[56:59], v11, s[60:63], s10 offen @ST@")
        I("s_waitcnt vmcnt(0)")
        L(sk_)
    I("s_cmp_ge_u32 s7, 28\ns_cbranch_scc1 L_sdone")
    I("ds_read_b128 v[48:51], v15")
    if cfg.pub_wait: wait_flag(4, FO(F_PUB), 1, 26)
    if not cfg.fin_mask:
        C("final gather: two register sets polled alternately")
        def iss(base):
            for i in range(4):
                I("buffer_load_dwordx4 v[%d:%d], v14, s[60:63], s12 offen offset:%d @LD@" % (base + 4 * i, base + 4 * i + 3, 1024 * i))
        I("s_mov_b32 s45, %d" % cfg.maxpoll)
        iss(64)
        if cfg.stagger: I("s_sleep %d" % cfg.stagger)
        L("L_fin_loop")
        iss(80)
        I("s_waitcnt vmcnt(4)")
        check_tags([65, 67, 69, 71, 73, 75, 77, 79], 26, 27)
        I("s_cbranch_scc1 L_fin_ok")
        iss(64)
        I("s_waitcnt vmcnt(4)")
        check_tags([81, 83, 85, 87, 89, 91, 93, 95], 26, 27)
        I("s_cbranch_scc1 L_fin_ok1")
        I("s_sub_u32 s45, s45, 1\ns_cmp_lg_u32 s45, 0\ns_cbranch_scc1 L_fin_loop")
        I("s_branch L_fin_ok")
        L("L_fin_ok1")
        I("v_add_f32 v16, v80, v84\nv_add_f32 v18, v82, v86\nv_add_f32 v17, v88, v92\nv_add_f32 v19, v90, v94")
        I("s_branch L_fin_sum")
        L("L_fin_ok")
        I("v_add_f32 v16, v64, v68\nv_add_f32 v18, v66, v70\nv_add_f32 v17, v72, v76\nv_add_f32 v19, v74, v78")
    else:
        C("final gather: after the first pass only the lanes whose granules are still missing are read again")
        I("s_mov_b32 s45, %d" % cfg.maxpoll)
        for i in range(4):
            I("buffer_load_dwordx4 v[%d:%d], v14, s[60:63], s12 offen offset:%d @LD@" % (64 + 4 * i, 64 + 4 * i + 3, 1024 * i))
        L("L_fin_loop")
        I("s_waitcnt vmcnt(0)")
        for i in range(4):
            I("v_cmp_ne_u32 s[%d:%d], s44, v%d" % (16 + 4 * i, 17 + 4 * i, 65 + 4 * i))
            I("v_cmp_ne_u32 s[%d:%d], s44, v%d" % (18 + 4 * i, 19 + 4 * i, 67 + 4 * i))
        for i in range(4):
            I("s_or_b64 s[%d:%d], s[%d:%d], s[%d:%d]" % (16 + 4 * i, 17 + 4 * i, 16 + 4 * i, 17 + 4 * i, 18 + 4 * i, 19 + 4 * i))
        I("s_or_b64 s[18:19], s[16:17], s[20:21]\ns_or_b64 s[22:23], s[24:25], s[28:29]\ns_or_b64 s[18:19], s[18:19], s[22:23]")
        I("s_cbranch_scc0 L_fin_ok")
        for i in range(4):
            sk = lab("fm")
            I("s_mov_b64 exec, s[%d:%d]" % (16 + 4 * i, 17 + 4 * i))
            I("s_cbranch_execz %s" % sk)
            I("buffer_load_dwordx4 v[%d:%d], v14, s[60:63], s12 offen offset:%d @LD@" % (64 + 4 * i, 64 + 4 * i + 3, 1024 * i))
            L(sk)
        I("s_mov_b64 exec, -1")
        if cfg.fin_sleep: I("s_sleep %d" % cfg.fin_sleep)
        I("s_sub_u32 s45, s45, 1\ns_cmp_lg_u32 s45, 0\ns_cbranch_scc1 L_fin_loop")
        I("s_waitcnt vmcnt(0)")
        L("L_fin_ok")
        I("v_add_f32 v16, v64, v68\nv_add_f32 v18, v66, v70\nv_add_f32 v17, v72, v76\nv_add_f32 v19, v74, v78")
    L("L_fin_sum")
    STAMP_(14)
    I("v_add_f32 v16, v16, v17\nv_add_f32 v18, v18, v19")
    red8(16, 24); red8(18, 25)
    rnd_pair(16, 18, 16, 18, 26)
    I("s_waitcnt lgkmcnt(0)")
    I("v_mul_f32 v16, v16, v48\nv_mul_f32 v18, v18, v48")
    rnd_pair(16, 18, 16, 18, 26)
    I("v_add_f32 v16, v16, v49\nv_add_f32 v18, v18, v50")
    I("v_cvt_pk_bf16_f32 v16, v16, v18")
    I("buffer_store_dword v16, v9, s[48:51], s13 offen%s" % cfg.out_fl)
    C("epoch update by workgroup 0")
    I("s_cmp_eq_u32 s2, 0\ns_cbranch_scc0 L_sdone")
    I("v_mov_b32 v16, s44\nv_mov_b32 v14, %d\nv_cmp_eq_u32 vcc, 0, v0\nv_cndmask_b32 v14, v13, v14, vcc" % EPOCH)
    I("buffer_store_dword v16, v14, s[60:63], 0 offen @ST@")
    I("s_branch L_sdone")
    L("L_s23_end")
    I("s_barrier")
    L("L_sdone")
    STAMP_(15)
    stamps_out()
    L("L_end")
    I("s_endpgm")

    secs = {}; order_seen = []; cur = "entry"; secs[cur] = []; order_seen.append(cur)
    for ln in e.lines:
        if ln.startswith(";@SEC "):
            cur = ln[6:].strip(); secs[cur] = []; order_seen.append(cur)
        else: secs[cur].append(ln)
    first = ["entry", "svc", "s3start", "s2start", "s1start"]
    rest = [x for x in order_seen if x not in first]
    e.lines = []
    for x in first + rest: e.lines += secs[x]
    if cfg.noB:
        def dropB(l):
            if '@ST@' not in l: return False
            if 'q' in cfg.noB and ('v[56:59], v14' in l): return True
            if 'h' in cfg.noB and 'v[20:23], v14' in l: return True
            if 's' in cfg.noB and 'v10, s[60:63], s10 offen offset' in l: return True
            if 'o' in cfg.noB and 'v[56:59], v11' in l: return True
            return False
        e.lines = [l for l in e.lines if not dropB(l)]
    e.lines = [l.replace('@LD@', cfg.ldf).replace('@STAq@', cfg.stl if 'q' in lh else cfg.stf).replace('@STAh@', cfg.stl if 'h' in lh else cfg.stf).replace('@STAs@', cfg.stl if 's' in lh else cfg.stf).replace('@STAo@', cfg.stl if 'o' in lh else cfg.stf).replace('@ST@', cfg.stf).rstrip() for l in e.lines]
    body = e.finalize()
    hdr = open('gated_mix__sliding_block_cached__mixer_channel_mlp__decode.s.ref').read().split('\n')
    head = [l for l in hdr if l.startswith(';') and '@launch' not in l and 'Override launch' not in l]
    txt = "\n".join(head) + "\n; @launch grid=(256,1,1) block=(512,1,1) lds=%d\n" % LDS_SIZE
    txt += '.amdgcn_target "amdgcn-amd-amdhsa--gfx950"\n.text\n.globl %s\n.p2align 8\n.type %s,@function\n%s:\n' % (NAME, NAME, NAME)
    txt += body
    txt += '.section .rodata,"a"\n.p2align 6\n.amdhsa_kernel %s\n' % NAME
    txt += "  .amdhsa_next_free_vgpr 256\n  .amdhsa_next_free_sgpr 102\n  .amdhsa_accum_offset 256\n  .amdhsa_group_segment_fixed_size 0\n  .amdhsa_kernarg_size 112\n  .amdhsa_user_sgpr_count 2\n  .amdhsa_user_sgpr_kernarg_segment_ptr 1\n  .amdhsa_system_sgpr_workgroup_id_x 1\n.end_amdhsa_kernel\n"
    return txt

if __name__ == "__main__":
    cfg = Cfg()
    out = sys.argv[1] if len(sys.argv) > 1 else "gated_mix__sliding_block_cached__mixer_channel_mlp__decode.s"
    for a in sys.argv[2:]:
        k, v = a.split("=")
        setattr(cfg, k, eval(v))
    open(out, "w").write(gen(cfg))
    print("written", out)
```

```python
import sys, struct
from emit import Emitter

NAME = "gated_mix__sliding_block_cached__mixer_channel_mlp__decode_kernel"

WOT  = 0
WQT  = 16384
W1T  = WQT + 14336
W2T  = WQT + 28672
XL   = W2T + 7168
YL   = XL + 7168
QL   = YL + 7296
PL   = QL + 1024
OA   = PL + 4096
HL   = OA + 2048
OG   = HL + 2176
SG   = OG + 2176
SL   = SG + 4096
FIN  = SL + 1024
FLG  = FIN + 128
F_Q, F_Y, F_S, F_P, F_WO, F_T1, F_T2, F_X, F_SP, F_K, F_G, F_LOC, F_LATE, F_PUB = [FLG + 4 * i for i in range(14)]
LDS_SIZE = FLG + 64
EPOCH = 0
QBUF = 4096
HBUF = QBUF + 131072
SBUF = 0x30000
MBUF = 0xB0000
PBUF = 0x120000
OBUF = 0x200000
XBUF = 0x220000
TBUF = 0x228000
STAMP = 0x230000
DUP = 0x400000
WS_RANGE = 0x800000
OOB = 0x7FFF0000

DOC = """;
; Hand-offs between workgroups go through d_ws as 8-byte {payload, tag} granules; the tag is derived from an epoch
"""

def f2u(x): return struct.unpack('<I', struct.pack('<f', x))[0]

class Cfg:
    wk = 9
    wv = 6
    nt_kv = " nt"
    nt_w = " nt"
    nt_wo = " nt"
    stamps = False
    qpos = 38
    sched = None
    pat = 'VW' * 8 + 'WWV' * 10 + 'V' * 14
    maxpoll = 20000
    prio = 2
    mlp_late = False
    wo_late = 'S1'
    wo_slot = 64
    slow_win = 0
    spin_sleep = 0
    fin_mask = True
    fin_sleep = 0
    out_fl = ''
    pub_wait = True
    stagger = 6
    lh = 'o'
    late_win = 0
    late_slot = 10
    late_cnt = 5
    x_late = False
    dbg_start = False
    hack_nop = False
    local = True
    qh_cond = False
    die_by = 'S3'
    perm = False
    die_tries = 4
    bper = 16
    noB = ''
    free_flag = 'F_G'
    nofree = False
    ldf = 'sc1'
    stf = 'sc1'
    stl = ''
    code_pf = 0
    pf_mask = 31
    pf_skip = 1024
    wo_by = 'S1'
    tq_swap = True
    w2_win = 7
    wo_win = 6
    w2_trig = None
    wo_trig = None
    kflag_slot = 31
    t3 = 0
    pretouch = False
    tail_backoff = 0
    wo_rot = True
    s0_w = 'after_q'
    mapping = 'ps'
    s0_early_bar = False
    h_trig = 'F_T1'
    wk_pre = 2
    late_tiles = True
    t1 = 28
    t2 = 46
    backoff = 4

def default_sched(cfg):
    s = [('K', n // 8, n % 8) for n in range(32)]
    s += [('V', T, j) for T in range(4) for j in range(8)]
    return s

def gen(cfg):
    lh = cfg.lh if cfg.local else ''
    if cfg.mapping != 'kx': assert 'q' not in lh and 's' not in lh
    cfg.noB = ''.join(c for c in 'qhso' if c not in lh) + cfg.noB
    cfg.local = bool(lh)
    e = Emitter(); I = e.I; L = e.L; C = e.C
    FO = lambda f: f - FLG
    nst = [0]
    def STAMP_(i):
        if cfg.stamps: I("s_memrealtime s[%d:%d]" % (70 + 2 * i, 71 + 2 * i))
    def stamps_out():
        if not cfg.stamps: return
        I("s_waitcnt vmcnt(0) lgkmcnt(0)")
        I("s_lshl_b32 s8, s2, 3\ns_add_u32 s8, s8, s3\ns_lshl_b32 s8, s8, 7\ns_add_u32 s8, s8, %d" % STAMP)
        I("v_mov_b32 v1, 0")
        I("s_mov_b64 exec, 1")
        for k in range(8):
            for q in range(4): I("v_mov_b32 v%d, s%d" % (4 + q, 70 + 4 * k + q))
            I("buffer_store_dwordx4 v[4:7], v1, s[60:63], s8 offen offset:%d" % (16 * k))
            I("s_nop 1")
        I("s_waitcnt vmcnt(0)")
    uid = [0]
    def lab(p):
        uid[0] += 1
        return "L_%s_%d" % (p, uid[0])
    def srd(n, lo, hi, nrec):
        I("s_mov_b32 s%d, s%d\ns_mov_b32 s%d, s%d\ns_mov_b32 s%d, %s\ns_mov_b32 s%d, 0x20000" % (n, lo, n + 1, hi, n + 2, nrec, n + 3))
    def srd_add(n, lo, hi, off_sgpr, nrec):
        I("s_add_u32 s%d, s%d, %s\ns_addc_u32 s%d, s%d, 0\ns_mov_b32 s%d, %s\ns_mov_b32 s%d, 0x20000" % (n, lo, off_sgpr, n + 1, hi, n + 2, nrec, n + 3))
    def wait_flag(addr_v, off, val, tmpv, cmp="ge", cnt="s45"):
        lp = lab("fl"); dn = lab("fld")
        I("s_mov_b32 %s, 0x100000" % cnt)
        L(lp)
        I("ds_read_b32 v%d, v%d offset:%d" % (tmpv, addr_v, off))
        I("s_waitcnt lgkmcnt(0)")
        I("v_readfirstlane_b32 s46, v%d" % tmpv)
        I("s_cmp_ge_u32 s46, %d" % val)
        I("s_cbranch_scc1 %s" % dn)
        if cfg.spin_sleep and off in (FO(F_T1), FO(F_T2), FO(F_WO), FO(F_S)): I("s_sleep %d" % cfg.spin_sleep)
        I("s_sub_u32 %s, %s, 1" % (cnt, cnt))
        I("s_cmp_lg_u32 %s, 0" % cnt)
        I("s_cbranch_scc1 %s" % lp)
        L(dn)
    def set_flag_add(addr_v, off, onev):
        I("ds_add_u32 v%d, v%d offset:%d" % (addr_v, onev, off))
    def check_tags(tags, vmin, vmax, lanemask=None):
        t = list(tags)
        if len(t) % 2 == 1: t.append(t[-1])
        I("v_min_u32 v%d, v%d, v%d" % (vmin, t[0], t[1]))
        I("v_max_u32 v%d, v%d, v%d" % (vmax, t[0], t[1]))
        for k in range(2, len(t), 2):
            I("v_min3_u32 v%d, v%d, v%d, v%d" % (vmin, vmin, t[k], t[k + 1]))
            I("v_max3_u32 v%d, v%d, v%d, v%d" % (vmax, vmax, t[k], t[k + 1]))
        I("v_cmp_ne_u32 vcc, s44, v%d" % vmin)
        I("v_cmp_ne_u32 s[46:47], s44, v%d" % vmax)
        I("s_or_b64 vcc, vcc, s[46:47]")
        if lanemask: I("s_and_b64 vcc, vcc, %s" % lanemask)
        I("s_cmp_eq_u64 vcc, 0")
    def dual_pre(tmpv):
        I("ds_read_b32 v%d, v4 offset:%d" % (tmpv, FO(F_LOC)))
        I("s_waitcnt lgkmcnt(0)")
        I("v_readfirstlane_b32 s41, v%d" % tmpv)
        I("s_cmp_ge_u32 s41, 128\ns_cselect_b32 s41, %d, 1" % (cfg.bper - 1))
    def dual_init(bases, pre=True):
        if not bases: return
        I("s_mov_b32 s64, 0")
        if pre: dual_pre(26)
    def dual_next(bases):
        if not bases: return
        I("s_and_b32 s65, s45, s41\ns_cmp_eq_u32 s65, 0\ns_cselect_b32 s65, %d, 0\ns_sub_u32 s66, s65, s64\ns_mov_b32 s64, s65" % DUP)
        for b_ in bases: I("s_add_u32 %s, %s, s66" % (b_, b_))
    def poll(issue, tags, vmin, vmax, lanemask=None, backoff=cfg.backoff, after_first=None, dual=None, dual_pre_done=False):
        lp = lab("pl"); dn = lab("pld")
        I("s_mov_b32 s45, %d" % cfg.maxpoll)
        dual_init(dual, pre=not dual_pre_done)
        if after_first:
            issue(); after_first()
            I("s_branch %s_w" % lp)
        L(lp)
        issue()
        if after_first: L(lp + "_w")
        I("s_waitcnt vmcnt(0)")
        check_tags(tags, vmin, vmax, lanemask)
        I("s_cbranch_scc1 %s" % dn)
        if backoff: I("s_sleep %d" % backoff)
        I("s_sub_u32 s45, s45, 1")
        dual_next(dual)
        I("s_cmp_lg_u32 s45, 0")
        I("s_cbranch_scc1 %s" % lp)
        L(dn)
    def if_not_local(tmpv):
        sk = lab("loc")
        wait_flag(4, FO(F_LOC), 64, tmpv)
        I("s_cmp_ge_u32 s46, 128")
        I("s_cbranch_scc1 %s" % sk)
        return sk
    def rnd_pair(dst_lo, dst_hi, a, b, tmp):
        I("v_cvt_pk_bf16_f32 v%d, v%d, v%d" % (tmp, a, b))
        I("v_lshlrev_b32 v%d, 16, v%d" % (dst_lo, tmp))
        I("v_and_b32 v%d, 0xffff0000, v%d" % (dst_hi, tmp))
    def wave_reduce(op, v, t):
        for mod in ("quad_perm:[1,0,3,2]", "quad_perm:[2,3,0,1]", "row_half_mirror", "row_mirror"):
            I("%s_dpp v%d, v%d, v%d %s row_mask:0xf bank_mask:0xf" % (op, v, v, v, mod))
        for sw in ("v_permlane16_swap_b32", "v_permlane32_swap_b32"):
            I("v_mov_b32 v%d, v%d" % (t, v))
            I("%s v%d, v%d" % (sw, v, t))
            I("%s v%d, v%d, v%d" % (op, v, v, t))

    def red8(v, t):
        I("v_add_f32_dpp v%d, v%d, v%d row_ror:8 row_mask:0xf bank_mask:0xf" % (v, v, v))
        for sw in ("v_permlane16_swap_b32", "v_permlane32_swap_b32"):
            I("v_mov_b32 v%d, v%d" % (t, v)); I("%s v%d, v%d" % (sw, v, t)); I("v_add_f32 v%d, v%d, v%d" % (v, v, t))
    def tq_calc(dst):
        I("s_lshr_b32 %s, s9, 1" % dst)
        if cfg.tq_swap:
            I("s_and_b32 s46, %s, 6\ns_cmp_eq_u32 s46, 6\ns_cselect_b32 s46, 8, 0\ns_xor_b32 %s, %s, s46" % (dst, dst, dst))

    def wo_tile(skip, wait=True):
        I("s_cmp_eq_u32 s4, 7\ns_cbranch_scc1 %s" % skip)
        I("s_lshl_b32 s10, s5, 9\ns_lshl_b32 s11, s6, 6\ns_add_u32 s10, s10, s11\ns_mul_i32 s10, s10, 896\ns_lshl_b32 s11, s4, 7\ns_add_u32 s10, s10, s11")
        I("s_sub_u32 s11, %d, s10" % (4096 * 896))
        srd_add(52, 24, 25, "s10", "s11")
        I("v_lshrrev_b32 v9, 3, v0\nv_mul_u32_u24 v9, 896, v9\nv_and_b32 v10, 7, v0\nv_lshl_add_u32 v9, v10, 4, v9")
        if cfg.wo_trig: wait_flag(4, FO(eval(cfg.wo_trig)), 256, 26)
        I("s_mov_b32 m0, %d\ns_mov_b32 s12, 0" % WOT)
        for i in range(16):
            if i >= cfg.wo_win: I("s_waitcnt vmcnt(%d)" % (cfg.wo_win - 1))
            I("buffer_load_dwordx4 v9, s[52:55], s12 offen%s lds" % cfg.nt_wo)
            if i < 15: I("s_add_u32 m0, m0, 1024\ns_add_u32 s12, s12, %d" % (8 * 896 if i != 7 else (256 - 56) * 896))
        if wait: I("s_waitcnt vmcnt(0)")

    def dma_loop(n, vreg_, srd_, step, flags, cnt="s13", win=None):
        lp = lab("dma")
        I("s_mov_b32 %s, %d" % (cnt, n))
        L(lp)
        if win: I("s_waitcnt vmcnt(%d)" % (win - 1))
        I("buffer_load_dwordx4 v%d, s[%d:%d], s12 offen%s lds" % (vreg_, srd_, srd_ + 3, flags))
        I("s_add_u32 m0, m0, 1024\ns_add_u32 s12, s12, %d\ns_sub_u32 %s, %s, 1\ns_cmp_lg_u32 %s, 0\ns_cbranch_scc1 %s" % (step, cnt, cnt, cnt, lp))
    def SEC(name): e.lines.append(";@SEC " + name)

    def code_prefetch():
        if not cfg.code_pf: return
        C("a few workgroups pull the kernel's code into L2 (reads only)")
        I("s_and_b32 s10, s9, %d\ns_cmp_eq_u32 s10, %d\ns_cbranch_scc0 L_s1_nopf" % (cfg.pf_mask, cfg.pf_mask))
        I("s_getpc_b64 s[10:11]")
        L("L_pcref")
        I("s_sub_u32 s10, s10, L_pcref-%s\ns_subb_u32 s11, s11, 0" % NAME)
        I("v_lshlrev_b32 v9, 4, v0\nv_add_u32 v9, %d, v9" % cfg.pf_skip)
        for i in range(cfg.code_pf):
            I("global_load_dwordx4 v[64:67], v9, s[10:11]")
            if i < cfg.code_pf - 1: I("v_add_u32 v9, 1024, v9")
        L("L_s1_nopf")

    def die_check(sfx):
        lp = lab("dc"); dn = lab("dcd"); ok = lab("dco")
        I("s_getreg_b32 s67, hwreg(HW_REG_XCC_ID)")
        I("s_lshl_b32 s15, s8, 9\ns_add_u32 s15, s15, %d" % XBUF)
        I("v_mov_b32 v13, %d\nv_lshlrev_b32 v19, 3, v0\nv_cmp_gt_u32 vcc, 32, v0\nv_cndmask_b32 v19, v13, v19, vcc" % OOB)
        I("s_mov_b32 s45, %d" % cfg.die_tries)
        L(lp)
        I("buffer_load_dwordx2 v[20:21], v19, s[60:63], s15 offen @LD@")
        I("s_waitcnt vmcnt(0)")
        I("v_cmp_ne_u32 vcc, s44, v21")
        I("s_cmp_eq_u32 vcc_lo, 0\ns_cbranch_scc1 %s" % ok)
        I("s_sleep 2\ns_sub_u32 s45, s45, 1\ns_cmp_lg_u32 s45, 0\ns_cbranch_scc1 %s" % lp)
        I("s_branch %s" % dn)
        L(ok)
        I("v_cmp_ne_u32 vcc, s67, v20")
        I("s_cmp_eq_u32 vcc_lo, 0\ns_cbranch_scc0 %s" % dn)
        set_flag_add(4, FO(F_LOC), 5)
        L(dn)
        set_flag_add(4, FO(F_LOC), 5)

    I("s_cmp_ge_u32 s2, 256")
    I("s_cbranch_scc1 L_end")
    if cfg.perm:
        I("s_and_b32 s4, s2, 31\ns_lshl_b32 s4, s4, 3\ns_lshr_b32 s2, s2, 5\ns_or_b32 s2, s2, s4")
    I("s_load_dwordx16 s[16:31], s[0:1], 0")
    I("s_load_dwordx8 s[32:39], s[0:1], 64")
    I("s_load_dwordx4 s[40:43], s[0:1], 96")
    if cfg.stamps:
        for k in range(70, 102): I("s_mov_b32 s%d, 0" % k)
    STAMP_(0)
    I("v_lshrrev_b32 v1, 6, v0")
    I("v_and_b32 v0, 63, v0")
    I("v_readfirstlane_b32 s3, v1")
    I("s_lshr_b32 s4, s2, 5")
    if cfg.mapping == "kx":
        I("s_and_b32 s5, s2, 7")
        I("s_bfe_u32 s6, s2, 0x20003")
    else:
        I("s_bfe_u32 s5, s2, 0x30002")
        I("s_and_b32 s6, s2, 3")
    I("s_and_b32 s7, s2, 31")
    I("s_and_b32 s8, s2, 7")
    I("s_lshr_b32 s9, s2, 3")
    I("v_and_b32 v2, 15, v0")
    I("v_lshrrev_b32 v3, 4, v0")
    I("v_mov_b32 v4, %d" % FLG)
    I("v_mov_b32 v5, 1")
    def start_sync():
        I("s_waitcnt lgkmcnt(0)")
        I("s_load_dword s44, s[42:43], %d" % EPOCH)
        srd(60, 42, 43, hex(WS_RANGE))
    def start_wait(): I("s_waitcnt lgkmcnt(0)")
    def start_ws():
        I("s_load_dword s44, s[42:43], %d" % EPOCH)
        srd(60, 42, 43, hex(WS_RANGE))
    def start_bar():
        I("s_barrier")
        STAMP_(1)
    I("s_cmp_ge_u32 s3, 4")
    I("s_cbranch_scc1 L_service")

    C("bulk waves")
    KR = 64; VB = 192; QA = 32; PF = 16; SACC = 224
    vreg = {0: VB, 1: KR, 2: KR + 32, 3: KR + 64}
    TMP = KR + 96
    I("s_lshl_b32 s10, s4, 3\ns_add_u32 s10, s10, s5")
    I("s_lshl_b32 s11, s10, 21\ns_add_u32 s11, s11, %d" % (3072 * 512))
    I("s_lshl_b32 s12, s6, 15\ns_lshl_b32 s13, s3, 13\ns_add_u32 s12, s12, s13")
    I("s_sub_u32 s14, %d, s12" % 524288)
    I("s_add_u32 s12, s12, s11")
    I("s_mov_b32 s64, 0\ns_mov_b32 s65, 0x20000\ns_mov_b32 s66, 0x40000\ns_mov_b32 s67, 0x60000")
    I("v_bfe_u32 v6, v0, 2, 2\nv_lshlrev_b32 v6, 11, v6\nv_lshl_add_u32 v6, v3, 6, v6\nv_and_b32 v7, 3, v0\nv_lshl_add_u32 v6, v7, 4, v6")
    start_wait()
    srd_add(48, 18, 19, "s12", "s14")
    def bulk_setup_b():
        start_ws()
        I("s_lshl_b32 s12, s3, 15\ns_lshl_b32 s13, s6, 7\ns_add_u32 s12, s12, s13")
        I("s_sub_u32 s14, %d, s12" % 524288)
        I("s_add_u32 s12, s12, s11")
        srd_add(52, 20, 21, "s12", "s14")
        I("v_lshrrev_b32 v7, 3, v0\nv_lshlrev_b32 v7, 12, v7\nv_and_b32 v8, 7, v0\nv_lshl_add_u32 v7, v8, 4, v7")
        I("v_lshlrev_b32 v9, 11, v3\nv_lshl_add_u32 v9, v2, 3, v9")
        I("s_lshl_b32 s15, s10, 13\ns_lshl_b32 s12, s6, 9\ns_add_u32 s15, s15, s12\ns_lshl_b32 s12, s3, 7\ns_add_u32 s15, s15, s12\ns_add_u32 s15, s15, %d" % SBUF)
        I("v_bfe_u32 v10, v0, 2, 1\nv_lshlrev_b32 v10, 9, v10\nv_lshl_add_u32 v10, v3, 6, v10\nv_and_b32 v11, 3, v0\nv_lshl_add_u32 v10, v11, 4, v10\nv_add_u32 v10, %d, v10" % QL)
        I("v_bfe_u32 v11, v0, 1, 1\nv_lshlrev_b32 v11, 11, v11\nv_lshl_add_u32 v11, v3, 5, v11\nv_and_b32 v12, 1, v0\nv_lshl_add_u32 v11, v12, 4, v11")
        I("s_lshl_b32 s12, s3, 7\ns_add_u32 s12, s12, %d\nv_add_u32 v11, s12, v11" % PL)
        I("v_and_b32 v12, 7, v0\nv_lshlrev_b32 v12, 5, v12\ns_lshl_b32 s12, s3, 9\ns_add_u32 s12, s12, %d\nv_add_u32 v12, s12, v12" % OA)
        I("v_lshlrev_b32 v14, 2, v0\ns_lshl_b32 s12, s3, 8\ns_add_u32 s12, s12, %d\nv_add_u32 v14, s12, v14" % SL)
        I("s_mov_b32 s68, 0x05040100\ns_mov_b32 s69, 0x07060302")
        I("s_mov_b32 s47, 0")
        I("s_mov_b32 s16, 0xffff0000\ns_mov_b32 s17, 0\ns_mov_b32 s18, 0\ns_mov_b32 s19, 0x0000ffff\ns_mov_b32 s20, 0\ns_mov_b32 s21, 0xffff0000")
        I("s_mov_b32 s22, 0x22222222\ns_mov_b32 s23, 0x22222222\ns_mov_b32 s24, 0x44444444\ns_mov_b32 s25, 0x44444444\ns_mov_b32 s26, 0x88888888\ns_mov_b32 s27, 0x88888888")
        start_bar()
    sched = cfg.sched or default_sched(cfg)
    ops = []
    def outstanding_after(opid):
        return len(ops) - 1 - ops.index(opid)
    def wait_op(opid):
        n = outstanding_after(opid)
        I("s_waitcnt vmcnt(%d)" % min(n, 63))
    tag_ready = [False]
    def ensure_tag():
        if not tag_ready[0]:
            I("s_waitcnt lgkmcnt(0)")
            I("s_mul_i32 s44, s44, 1664525\ns_add_u32 s44, s44, 1013904223")
            I("v_mov_b32 v%d, s44" % (SACC + 5))
            tag_ready[0] = True
    DQ = QA + 8
    def score_tile(T):
        C("scores tile %d" % T)
        wait_op(('K', T, 7))
        for hf in range(2):
            for G in range(4):
                c = "0" if hf == 0 else "v[%d:%d]" % (DQ + 4 * G, DQ + 4 * G + 3)
                r = KR + 32 * T + 4 * (2 * G + hf)
                I("v_mfma_f32_16x16x32_bf16 v[%d:%d], v[%d:%d], v[%d:%d], %s" % (DQ + 4 * G, DQ + 4 * G + 3, QA + 4 * hf, QA + 4 * hf + 3, r, r + 3, c))
        t = QA + 24
        for G in range(4):
            I("v_mov_b32_dpp v%d, v%d quad_perm:[0,0,0,0] row_mask:0xf bank_mask:0xf" % (t + G, DQ + 4 * G))
        for c in range(1, 4):
            for G in range(4):
                I("v_add_f32_dpp v%d, v%d, v%d quad_perm:[%d,%d,%d,%d] row_mask:0xf bank_mask:0xf" % (t + G, DQ + 4 * G + c, t + G, c, c, c, c))
        I("v_cndmask_b32 v%d, v%d, v%d, s[22:23]" % (t, t, t + 1))
        I("v_cndmask_b32 v%d, v%d, v%d, s[24:25]" % (t, t, t + 2))
        I("v_cndmask_b32 v%d, v%d, v%d, s[26:27]" % (t, t, t + 3))
        I("v_mov_b32 v%d, v%d" % (t + 1, t))
        I("v_permlane16_swap_b32 v%d, v%d" % (t, t + 1))
        I("v_cvt_pk_bf16_f32 v%d, v%d, v%d" % (SACC + T, t, t + 1))
        if T == 3:
            I("v_cndmask_b32 v%d, v%d, v%d, s[16:17]" % (SACC + 4, SACC, SACC + 1))
            I("v_cndmask_b32 v%d, v%d, v%d, s[18:19]" % (SACC + 4, SACC + 4, SACC + 2))
            I("v_cndmask_b32 v%d, v%d, v%d, s[20:21]" % (SACC + 4, SACC + 4, SACC + 3))
            I("buffer_store_dwordx2 v[%d:%d], v9, s[60:63], s15 offen @STAs@" % (SACC + 4, SACC + 5))
            if 's' in lh: I("ds_write_b32 v14, v%d" % (SACC + 4))
            ops.append(('S', T))
    first_v = min(i for i, o in enumerate(sched) if o[0] == 'V')
    last_k = max(i for i, o in enumerate(sched) if o[0] == 'K')
    qpos = cfg.qpos
    tiles_done = 0
    scores_flagged = False
    wo_flagged = False
    for si, o in enumerate(sched):
        win = cfg.wk if si <= last_k else cfg.wv
        if si == cfg.wk_pre:
            I("s_branch L_bulk_main"); SEC("bulkmain"); L("L_bulk_main")
            bulk_setup_b()
        if cfg.late_win and si == cfg.late_slot:
            I("ds_read_b32 v13, v4 offset:%d" % FO(F_LATE))
            I("s_waitcnt lgkmcnt(0)")
            I("v_readfirstlane_b32 s40, v13")
        if len(ops) >= win and not (qpos < si <= qpos + 3):
            sk = None
            late = cfg.late_win and si > cfg.late_slot
            if scores_flagged or late:
                sk = lab("sk")
            if scores_flagged:
                I("s_cmp_lg_u32 s47, 0")
                I("s_cbranch_scc1 %s" % sk)
            if late:
                sk2 = lab("sl")
                if len(ops) >= cfg.late_win: I("s_waitcnt vmcnt(%d)" % (cfg.late_win - 1))
                I("s_cmp_lg_u32 s40, 0")
                I("s_cbranch_scc1 %s" % sk2)
            I("s_waitcnt vmcnt(%d)" % (win - 1))
            if late: L(sk2)
            if scores_flagged and si > cfg.t2 and not cfg.nofree:
                I("ds_read_b32 v13, v4 offset:%d" % FO(eval(cfg.free_flag)))
                I("s_waitcnt lgkmcnt(0)")
                I("v_readfirstlane_b32 s46, v13")
                I("s_lshr_b32 s47, s46, 6")
            if sk: L(sk)
        if si == cfg.t1:
            set_flag_add(4, FO(F_T1), 5); STAMP_(10)
        if si == qpos:
            C("wait q")
            STAMP_(2)
            ensure_tag()
            wait_flag(4, FO(F_Q), 1, 13)
            for hf in range(2):
                I("ds_read_b128 v[%d:%d], v10 offset:%d" % (QA + 4 * hf, QA + 4 * hf + 3, 256 * hf))
            I("s_waitcnt lgkmcnt(0)")
            STAMP_(3)
        if si >= qpos and tiles_done < 4:
            T = tiles_done
            score_tile(T); tiles_done += 1
            if tiles_done == 4:
                set_flag_add(4, FO(F_S), 5); scores_flagged = True
                STAMP_(4)
        if cfg.t3 and si == cfg.t3: set_flag_add(4, FO(F_K), 5)
        if cfg.wo_late and si == cfg.wo_slot: set_flag_add(4, FO(F_K), 5)
        if si == cfg.t2:
            set_flag_add(4, FO(F_T2), 5); STAMP_(11)
        if o[0] == 'K':
            _, T, t = o
            I("buffer_load_dwordx4 v[%d:%d], v6, s[48:51], s%d offen offset:%d%s" % (KR + 32 * T + 4 * t, KR + 32 * T + 4 * t + 3, 64 + T, 512 * (t // 2) + 256 * (t % 2), cfg.nt_kv))
            if si == cfg.kflag_slot and not cfg.t3 and not cfg.wo_late:
                set_flag_add(4, FO(F_K), 5)
            if si == last_k: STAMP_(12)
        elif o[0] == 'V':
            _, T, j = o
            if T >= 1: assert tiles_done > T - 1, "V tile overwrites K tile not yet consumed"
            r = vreg[T] + 4 * j
            I("buffer_load_dwordx4 v[%d:%d], v7, s[52:55], s%d offen offset:%d%s" % (r, r + 3, 64 + T, 512 * j, cfg.nt_kv))
        else:
            i = o[1]
            if i >= 21: assert si > qpos, "wo chunk overlays x before q flag"
            if i % 4 == 0:
                I("s_add_u32 m0, s13, %d" % (i * 1024))
                I("s_mov_b32 s14, %d" % (i * 1024))
            I("buffer_load_dwordx4 v8, s[56:59], s14 offen offset:%d%s lds" % ((i % 4) * 1024, cfg.nt_wo))
        ops.append(o)
    assert tiles_done == 4
    if cfg.wo_late and cfg.wo_slot >= len(sched): set_flag_add(4, FO(F_K), 5)
    STAMP_(6)
    dstT = {0: TMP, 1: VB, 2: KR, 3: KR + 32}
    def pv_perm(T):
        C("transpose V tile %d" % T)
        wait_op(('V', T, 7))
        R = vreg[T]; Dd = dstT[T]
        for jp in range(8):
            sel = "s68" if jp % 2 == 0 else "s69"
            for i in range(4):
                I("v_perm_b32 v%d, v%d, v%d, %s" % (Dd + 4 * jp + i, R + 4 * (2 * i + 1) + jp // 2, R + 4 * (2 * i) + jp // 2, sel))
    def pv_mfma(T):
        for q in range(8):
            c = "0" if T == 0 else "v[%d:%d]" % (QA + 4 * q, QA + 4 * q + 3)
            I("v_mfma_f32_16x16x32_bf16 v[%d:%d], v[%d:%d], v[%d:%d], %s" % (QA + 4 * q, QA + 4 * q + 3, PF + 4 * T, PF + 4 * T + 3, dstT[T] + 4 * q, dstT[T] + 4 * q + 3, c))
    for T in range(3): pv_perm(T)
    I("ds_read_b32 v13, v4 offset:%d" % FO(F_P))
    I("s_waitcnt lgkmcnt(0)")
    I("v_readfirstlane_b32 s46, v13")
    I("s_lshr_b32 s47, s46, 7")
    if cfg.hack_nop: I("s_mov_b32 s47, 1")
    I("s_cmp_lg_u32 s47, 0")
    I("s_cbranch_scc1 L_p_early")
    pv_perm(3)
    C("wait p")
    wait_flag(4, FO(F_P), 128, 13)
    L("L_p_early")
    for T in range(4):
        I("ds_read_b128 v[%d:%d], v11 offset:%d" % (PF + 4 * T, PF + 4 * T + 3, 512 * T))
    STAMP_(7)
    for T in range(3):
        I("s_waitcnt lgkmcnt(%d)" % (3 - T))
        pv_mfma(T)
    I("s_cmp_lg_u32 s47, 0")
    I("s_cbranch_scc0 L_p_late")
    pv_perm(3)
    L("L_p_late")
    I("s_waitcnt lgkmcnt(0)")
    pv_mfma(3)
    STAMP_(8)
    C("u-sum, pack, write OA")
    OS = 64
    for h in range(2):
        for jp in range(8):
            I("v_add_f32_dpp v%d, v%d, v%d row_ror:8 row_mask:0xf bank_mask:0xf" % (OS + 8 * h + jp, QA + 4 * jp + 2 * h + 1, QA + 4 * jp + 2 * h))
    I("s_mov_b64 exec, 0xff")
    for h in range(2):
        I("ds_write_b128 v12, v[%d:%d] offset:%d" % (OS + 8 * h, OS + 8 * h + 3, 256 * h))
        I("ds_write_b128 v12, v[%d:%d] offset:%d" % (OS + 8 * h + 4, OS + 8 * h + 7, 256 * h + 16))
    I("s_mov_b64 exec, -1")
    I("s_waitcnt lgkmcnt(0)")
    I("s_barrier")
    STAMP_(9)
    stamps_out()
    I("s_endpgm")

    SEC("svc")
    L("L_service")
    if cfg.prio: I("s_setprio %d" % cfg.prio)
    I("s_mov_b32 s14, 0x00ff00ff\ns_mov_b32 s15, 0x00ff00ff")
    I("v_cmp_gt_u32 vcc, 8, v2")
    I("v_lshrrev_b32 v6, 2, v2\nv_lshl_add_u32 v6, v3, 3, v6")
    I("v_and_b32 v7, 3, v2\nv_lshlrev_b32 v7, 3, v7")
    I("v_mul_u32_u24 v8, 896, v6\nv_add_u32 v8, v8, v7")
    I("v_lshl_add_u32 v6, v6, 5, v7")
    I("s_cmp_eq_u32 s3, 7\ns_cbranch_scc1 L_s3")
    I("s_cmp_eq_u32 s3, 6\ns_cbranch_scc1 L_s2_pre")
    I("s_cmp_eq_u32 s3, 5\ns_cbranch_scc1 L_s1")

    XF = 64; AF = 128
    L("L_s0")
    C("S0: wq tile DMA (even idx), gate_w, b2")
    I("v_lshrrev_b32 v9, 2, v0\nv_and_b32 v10, 3, v0\nv_lshlrev_b32 v10, 4, v10")
    I("v_lshl_add_u32 v11, v9, 13, v10")
    tq_calc("s11")
    I("s_lshl_b32 s10, s8, 10\ns_lshl_b32 s11, s11, 6\ns_add_u32 s10, s10, s11")
    I("s_sub_u32 s11, %d, s10" % (448 * 8192))
    I("s_mov_b32 s12, 0\ns_mov_b32 m0, %d" % WQT)
    start_wait()
    if cfg.dbg_start: STAMP_(12)
    I("s_bitcmp1_b32 s9, 0\ns_cbranch_scc1 L_s0_noq1")
    srd_add(48, 22, 23, "s10", "s11")
    if cfg.slow_win: I("s_cmp_ge_u32 s9, 28\ns_cbranch_scc1 L_s0_noq1")
    dma_loop(28, 11, 48, 0x20000, cfg.nt_w)
    L("L_s0_noq1")
    start_ws()
    if cfg.dbg_start: STAMP_(13)
    start_bar()
    I("s_branch L_s0_main"); SEC("s0main"); L("L_s0_main")
    if cfg.slow_win:
        C("the two column tiles whose rows share one memory channel are fetched with few loads in flight")
        I("s_bitcmp1_b32 s9, 0\ns_cbranch_scc1 L_s0_noslow\ns_cmp_ge_u32 s9, 28\ns_cbranch_scc0 L_s0_noslow")
        tq_calc("s11")
        I("s_lshl_b32 s10, s8, 10\ns_lshl_b32 s11, s11, 6\ns_add_u32 s10, s10, s11")
        I("s_sub_u32 s11, %d, s10" % (448 * 8192))
        srd_add(48, 22, 23, "s10", "s11")
        I("s_mov_b32 s12, 0\ns_mov_b32 m0, %d" % WQT)
        dma_loop(28, 11, 48, 0x20000, cfg.nt_w, win=cfg.slow_win)
        L("L_s0_noslow")
    I("v_mov_b32 v13, %d" % OOB)
    wait_flag(4, FO(F_X), 1, 26)
    I("v_and_b32 v12, 7, v2\nv_mul_u32_u24 v12, 896, v12\nv_lshl_add_u32 v12, v3, 4, v12\nv_add_u32 v12, %d, v12" % XL)
    for t in range(14):
        I("ds_read_b128 v[%d:%d], v12 offset:%d" % (XF + 4 * t, XF + 4 * t + 3, 64 * t))
    I("s_mul_i32 s10, s4, 896\ns_add_u32 s10, s10, %d" % XL)
    I("v_min_u32 v14, 55, v0\nv_lshlrev_b32 v14, 4, v14\nv_add_u32 v14, s10, v14")
    I("ds_read_b128 v[32:35], v14")
    I("s_waitcnt vmcnt(0) lgkmcnt(0)")
    STAMP_(2)
    srd(52, 36, 37, "896")
    I("v_lshlrev_b32 v14, 4, v0\nv_cmp_gt_u32 vcc, 56, v0\nv_cndmask_b32 v14, v13, v14, vcc")
    I("buffer_load_dwordx4 v[36:39], v14, s[52:55], 0 offen")
    srd(56, 34, 35, "896")
    I("v_and_b32 v15, 7, v0\nv_lshlrev_b32 v15, 2, v15\ns_lshl_b32 s10, s7, 5")
    I("buffer_load_dword v52, v15, s[56:59], s10 offen")
    I("s_mul_i32 s44, s44, 1664525\ns_add_u32 s44, s44, 1013904223")
    I("s_bitcmp1_b32 s9, 0\ns_cbranch_scc1 L_s0_noq2")
    I("v_lshrrev_b32 v15, 2, v2\nv_lshl_add_u32 v15, v3, 3, v15\nv_lshlrev_b32 v15, 6, v15\nv_add_u32 v15, v15, v7\nv_add_u32 v15, %d, v15" % WQT)
    for t in range(14):
        for ct in range(2):
            r = AF + 8 * t + 4 * ct
            I("ds_read_b64_tr_b16 v[%d:%d], v15 offset:%d" % (r, r + 1, 2048 * t + 32 * ct))
            I("ds_read_b64_tr_b16 v[%d:%d], v15 offset:%d" % (r + 2, r + 3, 2048 * t + 32 * ct + 256))
    I("s_waitcnt lgkmcnt(0)")
    for t in range(14):
        for ct in range(2):
            d = 16 + 4 * ct
            c = "0" if t == 0 else "v[%d:%d]" % (d, d + 3)
            r = AF + 8 * t + 4 * ct
            I("v_mfma_f32_16x16x32_bf16 v[%d:%d], v[%d:%d], v[%d:%d], %s" % (d, d + 3, r, r + 3, XF + 4 * t, XF + 4 * t + 3, c))
    I("v_lshlrev_b32 v14, 6, v2\nv_lshl_add_u32 v14, v3, 3, v14\nv_add_u32 v14, %d, v14" % OG)
    I("v_cvt_pk_bf16_f32 v56, v16, v17\nv_cvt_pk_bf16_f32 v57, v18, v19\nv_cvt_pk_bf16_f32 v58, v20, v21\nv_cvt_pk_bf16_f32 v59, v22, v23")
    I("ds_write_b64 v14, v[56:57]\nds_write_b64 v14, v[58:59] offset:32")
    I("v_lshlrev_b32 v14, 3, v0\nv_add_u32 v14, %d, v14" % OG)
    I("ds_read_b64 v[60:61], v14")
    I("v_lshrrev_b32 v14, 3, v0\nv_lshlrev_b32 v14, 11, v14\nv_and_b32 v15, 7, v0\nv_lshl_add_u32 v14, v15, 4, v14")
    tq_calc("s11")
    I("s_lshl_b32 s10, s8, 14\ns_lshl_b32 s11, s11, 7\ns_add_u32 s10, s10, s11\ns_add_u32 s10, s10, %d" % QBUF)
    I("v_mov_b32 v57, s44\nv_mov_b32 v59, s44")
    I("s_waitcnt lgkmcnt(0)")
    I("v_mov_b32 v56, v60\nv_mov_b32 v58, v61")
    I("buffer_store_dwordx4 v[56:59], v14, s[60:63], s10 offen @STAq@")
    if cfg.qh_cond: sk_ = if_not_local(26)
    I("s_add_u32 s11, s10, %d" % DUP)
    I("buffer_store_dwordx4 v[56:59], v14, s[60:63], s11 offen @ST@")
    if cfg.qh_cond: L(sk_)
    L("L_s0_noq2")
    STAMP_(3)
    C("gate (lanes >= 56 have gate_w = 0)")
    I("s_waitcnt vmcnt(1)" if False else "s_waitcnt vmcnt(0)")
    for q in range(4):
        I("v_lshlrev_b32 v%d, 16, v%d\nv_and_b32 v%d, 0xffff0000, v%d" % (24 + 2 * q, 32 + q, 25 + 2 * q, 32 + q))
        I("v_lshlrev_b32 v%d, 16, v%d\nv_and_b32 v%d, 0xffff0000, v%d" % (40 + 2 * q, 36 + q, 41 + 2 * q, 36 + q))
    for k in range(8): I("v_mul_f32 v%d, v%d, v%d" % (24 + k, 24 + k, 40 + k))
    for q in range(4): rnd_pair(24 + 2 * q, 25 + 2 * q, 24 + 2 * q, 25 + 2 * q, 32)
    I("v_add_f32 v24, v24, v25\nv_add_f32 v26, v26, v27\nv_add_f32 v28, v28, v29\nv_add_f32 v30, v30, v31")
    I("v_add_f32 v24, v24, v26\nv_add_f32 v28, v28, v30\nv_add_f32 v24, v24, v28")
    wave_reduce("v_add_f32", 24, 25)
    rnd_pair(24, 25, 24, 24, 26)
    I("v_mul_f32 v24, 0x%08x, v24" % f2u(-1.4426950408889634))
    I("v_exp_f32 v24, v24\nv_add_f32 v24, 1.0, v24\nv_rcp_f32 v24, v24")
    rnd_pair(50, 25, 24, 24, 26)
    I("v_sub_f32 v24, 1.0, v50")
    rnd_pair(51, 25, 24, 24, 26)
    STAMP_(4)
    C("q gather")
    wait_flag(4, FO(F_T1), 256, 26)
    I("s_lshl_b32 s10, s5, 3\ns_add_u32 s10, s10, s4\ns_lshl_b32 s10, s10, 11\ns_add_u32 s10, s10, %d" % QBUF)
    I("v_lshlrev_b32 v14, 4, v0")
    STAMP_(5)
    def iss():
        I("buffer_load_dwordx4 v[16:19], v14, s[60:63], s10 offen @LD@")
        I("buffer_load_dwordx4 v[20:23], v14, s[60:63], s10 offen offset:1024 @LD@")
    poll(iss, [17, 19, 21, 23], 26, 27, dual=(['s10'] if 'q' in lh else None))
    if cfg.stamps:
        I("s_sub_u32 s86, %d, s45\ns_mov_b32 s87, 0" % (cfg.maxpoll + 1))
    I("v_lshlrev_b32 v15, 3, v0\nv_add_u32 v15, %d, v15" % QL)
    I("ds_write2_b32 v15, v16, v18 offset0:0 offset1:1")
    I("ds_write2_b32 v15, v20, v22 offset0:128 offset1:129")
    set_flag_add(4, FO(F_Q), 5)
    STAMP_(6)
    if cfg.wo_by == 'S0':
        wo_tile('L_s0_wo')
        L('L_s0_wo')
        set_flag_add(4, FO(F_WO), 5)
    if not cfg.mlp_late:
        C("MLP partial gather (owners)")
        I("s_cmp_ge_u32 s7, 28\ns_cbranch_scc1 L_s0_nomlp")
        wait_flag(4, FO(F_K if cfg.t3 else F_T2), 256, 26)
        I("s_mul_i32 s10, s4, 28\ns_add_u32 s10, s10, s7\ns_lshl_b32 s10, s10, 11\ns_add_u32 s10, s10, %d" % MBUF)
        I("v_lshlrev_b32 v14, 4, v0")
        def iss():
            I("buffer_load_dwordx4 v[16:19], v14, s[60:63], s10 offen @LD@")
            I("buffer_load_dwordx4 v[20:23], v14, s[60:63], s10 offen offset:1024 @LD@")
        poll(iss, [17, 19, 21, 23], 26, 27)
        I("v_add_f32 v16, v16, v20\nv_add_f32 v18, v18, v22")
        red8(16, 24); red8(18, 25)
        rnd_pair(16, 18, 16, 18, 26)
        I("v_lshlrev_b32 v24, 16, v52\nv_and_b32 v25, 0xffff0000, v52")
        I("v_add_f32 v16, v16, v24\nv_add_f32 v18, v18, v25")
        rnd_pair(16, 18, 16, 18, 26)
        I("v_mul_f32 v16, v16, v51\nv_mul_f32 v18, v18, v51")
        rnd_pair(53, 54, 16, 18, 26)
    if not cfg.mlp_late: L("L_s0_nomlp")
    STAMP_(7)
    I("s_branch L_outproj")

    SEC("s1start")
    L("L_s1")
    code_prefetch()
    start_sync()
    if cfg.local:
        C("publish this workgroup's die id")
    if cfg.local:
        I("s_getreg_b32 s67, hwreg(HW_REG_XCC_ID)")
    if cfg.local:
        I("v_mov_b32 v13, %d\nv_mov_b32 v18, 0\nv_cmp_eq_u32 vcc, 0, v0\nv_cndmask_b32 v18, v13, v18, vcc" % OOB)
    if cfg.local:
        I("s_lshl_b32 s10, s8, 9\ns_lshl_b32 s11, s9, 3\ns_add_u32 s11, s11, s10\ns_add_u32 s11, s11, %d" % XBUF)
    I("s_waitcnt lgkmcnt(0)")
    I("s_mul_i32 s44, s44, 1664525\ns_add_u32 s44, s44, 1013904223")
    if cfg.local:
        I("v_mov_b32 v16, s67\nv_mov_b32 v17, s44")
    if cfg.local:
        I("buffer_store_dwordx2 v[16:17], v18, s[60:63], s11 offen @ST@")
    if cfg.late_win:
        C("the first workgroup of each die group announces its start")
        I("s_cmp_eq_u32 s9, 0\ns_cbranch_scc0 L_s1_nolead")
        I("v_mov_b32 v13, %d\nv_mov_b32 v18, 0\nv_cmp_eq_u32 vcc, 0, v0\nv_cndmask_b32 v18, v13, v18, vcc" % OOB)
        I("s_lshl_b32 s11, s8, 7\ns_add_u32 s11, s11, %d\nv_mov_b32 v16, s44\nv_mov_b32 v17, s44" % TBUF)
        I("buffer_store_dwordx2 v[16:17], v18, s[60:63], s11 offen @ST@")
        L("L_s1_nolead")
    start_bar()
    I("s_branch L_s1_main"); SEC("s1main"); L("L_s1_main")
    if cfg.late_win:
        C("a workgroup that already sees several other groups' announcements started late and gets a wider load window")
        I("v_mov_b32 v13, %d\nv_lshlrev_b32 v19, 7, v0\nv_cmp_gt_u32 vcc, 8, v0\nv_cndmask_b32 v19, v13, v19, vcc" % OOB)
        I("s_mov_b32 s11, %d" % TBUF)
        I("buffer_load_dwordx2 v[20:21], v19, s[60:63], s11 offen @LD@")
        I("s_waitcnt vmcnt(0)")
        I("v_cmp_eq_u32 vcc, s44, v21")
        I("s_and_b32 s10, vcc_lo, 0xff\ns_bcnt1_i32_b32 s10, s10\ns_cmp_ge_u32 s10, %d\ns_cbranch_scc0 L_s1_early" % cfg.late_cnt)
        set_flag_add(4, FO(F_LATE), 5)
        L("L_s1_early")
        if cfg.stamps: I("s_mov_b32 s86, s10\ns_mov_b32 s87, 0")
    if cfg.die_by == 'S1':
        die_check("a")
        STAMP_(7)
    I("s_cmp_ge_u32 s9, 28\ns_cbranch_scc1 L_s1_none")
    C("M2: w2 tile [112 rows x 32 columns]; s12 = k range (0..15), s13 = column tile (0..13)")
    I("s_cmp_ge_u32 s9, 14\ns_cselect_b32 s12, 1, 0\ns_mul_i32 s13, s12, 14\ns_sub_u32 s13, s9, s13\ns_lshl_b32 s11, s8, 1\ns_add_u32 s12, s12, s11")
    I("s_mov_b32 s68, s12\ns_mov_b32 s69, s13")
    I("s_mul_i32 s10, s12, %d\ns_lshl_b32 s11, s13, 6\ns_add_u32 s10, s10, s11" % (112 * 896))
    I("s_sub_u32 s11, %d, s10" % (1792 * 896))
    def w2_issue():
        I("s_mul_i32 s10, s68, %d\ns_lshl_b32 s11, s69, 6\ns_add_u32 s10, s10, s11" % (112 * 896))
        I("s_sub_u32 s11, %d, s10" % (1792 * 896))
        srd_add(48, 32, 33, "s10", "s11")
        I("v_lshrrev_b32 v9, 2, v0\nv_and_b32 v10, 3, v0\nv_lshlrev_b32 v10, 4, v10")
        I("v_mul_u32_u24 v11, 896, v9\nv_add_u32 v11, v11, v10")
        I("s_mov_b32 s12, 0\ns_mov_b32 m0, %d" % W2T)
        for i in range(7):
            I("buffer_load_dwordx4 v11, s[48:51], s12 offen%s lds" % cfg.nt_w)
            if i < 6: I("s_add_u32 m0, m0, 1024\ns_add_u32 s12, s12, %d" % (16 * 896))
    def w2_frags():
        I("v_lshrrev_b32 v15, 2, v2\nv_lshl_add_u32 v15, v3, 3, v15\nv_lshlrev_b32 v15, 6, v15\nv_add_u32 v15, v15, v7\nv_add_u32 v15, %d, v15" % W2T)
        I("v_and_b32 v12, 1, v3\nv_lshrrev_b32 v11, 2, v2\nv_lshl_add_u32 v11, v12, 3, v11\nv_lshlrev_b32 v11, 6, v11\nv_add_u32 v11, v11, v7\nv_add_u32 v11, %d, v11" % W2T)
        for t in range(4):
            for ct in range(2):
                r = 160 + 8 * t + 4 * ct
                a_ = 15 if t < 3 else 11
                I("ds_read_b64_tr_b16 v[%d:%d], v%d offset:%d" % (r, r + 1, a_, 2048 * t + 32 * ct))
                I("ds_read_b64_tr_b16 v[%d:%d], v%d offset:%d" % (r + 2, r + 3, a_, 2048 * t + 32 * ct + 256))
        I("s_waitcnt lgkmcnt(0)")
    if not cfg.mlp_late:
        w2_issue()
        I("s_waitcnt vmcnt(0) lgkmcnt(0)")
        w2_frags()
    STAMP_(2)
    wait_flag(4, FO(eval(cfg.h_trig)), 256, 26)
    STAMP_(3)
    I("v_mov_b32 v13, %d" % OOB)
    I("v_lshrrev_b32 v9, 3, v0\nv_and_b32 v10, 7, v0\nv_mul_u32_u24 v14, 7168, v9\nv_lshl_add_u32 v14, v10, 4, v14")
    I("v_cmp_gt_u32 vcc, 4, v10\nv_cndmask_b32 v12, v13, v14, vcc")
    I("s_mul_i32 s10, s68, 448\ns_add_u32 s10, s10, %d" % HBUF)
    I("s_mov_b32 s14, 0x0f0f0f0f\ns_mov_b32 s15, 0x0f0f0f0f")
    def iss():
        for i in range(3):
            r = 64 + 4 * i
            I("buffer_load_dwordx4 v[%d:%d], v14, s[60:63], s10 offen offset:%d @LD@" % (r, r + 3, 128 * i))
        I("buffer_load_dwordx4 v[76:79], v12, s[60:63], s10 offen offset:384 @LD@")
    lp = lab("pl"); dn = lab("pld")
    I("s_mov_b32 s45, %d" % cfg.maxpoll)
    dual_init(['s10'] if 'h' in lh else None)
    L(lp)
    iss()
    I("s_waitcnt vmcnt(0)")
    I("v_mov_b32 v28, s44")
    I("v_cndmask_b32 v77, v28, v77, s[14:15]\nv_cndmask_b32 v79, v28, v79, s[14:15]")
    check_tags([65, 67, 69, 71, 73, 75, 77, 79], 26, 27)
    I("s_cbranch_scc1 %s" % dn)
    if cfg.backoff: I("s_sleep %d" % cfg.backoff)
    I("s_sub_u32 s45, s45, 1")
    dual_next(['s10'] if 'h' in lh else None)
    I("s_cmp_lg_u32 s45, 0\ns_cbranch_scc1 %s" % lp)
    L(dn)
    STAMP_(4)
    I("v_mul_u32_u24 v15, 272, v9\nv_lshl_add_u32 v15, v10, 3, v15\nv_add_u32 v15, %d, v15" % HL)
    for i in range(4):
        I("ds_write2_b32 v15, v%d, v%d offset0:%d offset1:%d" % (64 + 4 * i, 64 + 4 * i + 2, 16 * i, 16 * i + 1))
    I("v_and_b32 v15, 7, v2\nv_mul_u32_u24 v15, 272, v15\nv_lshl_add_u32 v15, v3, 4, v15\nv_add_u32 v15, %d, v15" % HL)
    I("s_waitcnt lgkmcnt(0)")
    for t in range(4):
        I("ds_read_b128 v[%d:%d], v15 offset:%d" % (128 + 4 * t, 128 + 4 * t + 3, 64 * t))
    I("s_waitcnt lgkmcnt(0)")
    def m2_compute():
        for t in range(4):
            for ct in range(2):
                d = 16 + 4 * ct
                c = "0" if t == 0 else "v[%d:%d]" % (d, d + 3)
                r = 160 + 8 * t + 4 * ct
                I("v_mfma_f32_16x16x32_bf16 v[%d:%d], v[%d:%d], v[%d:%d], %s" % (d, d + 3, 128 + 4 * t, 128 + 4 * t + 3, r, r + 3, c))
        I("v_and_b32 v29, 1, v3\nv_mul_u32_u24 v29, %d, v29\nv_lshrrev_b32 v16 + 0, 1, v3" .replace("v16 + 0", "v28") % (4 * 28 * 2048))
        I("v_lshl_add_u32 v29, v28, 11, v29\nv_lshl_add_u32 v29, v2, 3, v29")
        I("s_lshl_b32 s10, s69, 12\ns_lshl_b32 s11, s68, 7\ns_add_u32 s10, s10, s11\ns_add_u32 s10, s10, %d" % MBUF)
        I("s_mov_b32 s48, 0\ns_mov_b32 s49, -1")
        for r in range(4):
            I("v_mov_b32 v%d, s44" % (33 + 2 * r))
            I("v_cndmask_b32 v%d, v%d, v%d, s[48:49]" % (32 + 2 * r, 16 + r, 20 + r))
        for r in range(4):
            I("s_add_u32 s11, s10, %d" % (r * 28 * 2048))
            I("buffer_store_dwordx2 v[%d:%d], v29, s[60:63], s11 offen @ST@" % (32 + 2 * r, 33 + 2 * r))
    if not cfg.mlp_late: m2_compute()
    STAMP_(5)
    L("L_s1_none")
    if cfg.wo_by == 'S1' and not cfg.wo_late:
        wo_tile('L_s1_wo')
        L('L_s1_wo')
        set_flag_add(4, FO(F_WO), 5)
        STAMP_(6)
    if cfg.wo_late == 'S1':
        C("the wo tile is fetched shortly before the V stream ends; its arrival is signalled after the barrier")
        _t, _w = cfg.wo_trig, cfg.wo_win
        cfg.wo_trig = 'F_K'; cfg.wo_win = 16
        wo_tile('L_s1_wo', wait=False)
        L('L_s1_wo')
        cfg.wo_trig, cfg.wo_win = _t, _w
        if cfg.mlp_late:
            I("s_cmp_ge_u32 s9, 28\ns_cbranch_scc1 L_s1_now2")
            w2_issue()
            L("L_s1_now2")
        STAMP_(6)
    I("s_branch L_outproj")

    SEC("s3start")
    L("L_s3")
    C("wave 7: x -> LDS, then the wo tile (128 rows x 64 columns; batch b < 7 takes column block b)")
    I("v_lshlrev_b32 v9, 4, v0\ns_mov_b32 m0, %d\ns_mov_b32 s12, 0" % XL)
    start_sync()
    srd(48, 16, 17, "7168")
    if cfg.x_late: start_bar()
    for i in range(7):
        if i == 4: I("s_mov_b32 m0, %d\ns_mov_b32 s12, 4096" % (XL + 4096))
        I("buffer_load_dwordx4 v9, s[48:51], s12 offen offset:%d lds" % ((i % 4) * 1024))
    if not cfg.x_late: start_bar()
    I("s_branch L_s3_main"); SEC("s3main"); L("L_s3_main")
    I("s_waitcnt vmcnt(0)")
    set_flag_add(4, FO(F_X), 5)
    STAMP_(2)
    I("s_waitcnt lgkmcnt(0)")
    I("s_mul_i32 s44, s44, 1664525\ns_add_u32 s44, s44, 1013904223")
    if cfg.wo_by == 'S3': wo_tile('L_s3_fin')
    L("L_s3_fin")
    if cfg.wo_by == 'S3': set_flag_add(4, FO(F_WO), 5)
    I("s_branch L_softmax")
    SEC("s2start")
    L("L_s2_pre")
    C("wave 6: zero flags, w1 tile")
    I("v_lshlrev_b32 v9, 2, v0\nv_add_u32 v9, %d, v9\nv_mov_b32 v10, 0" % FLG)
    I("s_mov_b64 exec, 0xffff\nds_write_b32 v9, v10\ns_mov_b64 exec, -1")
    I("v_lshrrev_b32 v9, 1, v0\nv_and_b32 v10, 1, v0\nv_lshlrev_b32 v10, 4, v10")
    I("v_mul_u32_u24 v14, 3584, v9\nv_add_u32 v14, v14, v10")
    I("v_lshlrev_b32 v15, 3, v3")
    I("s_lshr_b32 s10, s9, 1\ns_mul_i32 s11, s8, 14\ns_add_u32 s10, s10, s11")
    I("s_mov_b32 s69, s10")
    I("s_lshl_b32 s10, s10, 5\ns_sub_u32 s11, %d, s10" % (448 * 3584))
    I("s_mov_b32 s12, 0\ns_mov_b32 m0, %d" % W1T)
    start_wait()
    I("s_bitcmp0_b32 s9, 0\ns_cbranch_scc1 L_s2_nom1\ns_cmp_ge_u32 s9, 28\ns_cbranch_scc1 L_s2_nom1")
    srd_add(56, 28, 29, "s10", "s11")
    dma_loop(14, 14, 56, 32 * 3584, cfg.nt_w)
    srd(64, 30, 31, "3584")
    I("buffer_load_dwordx2 v[24:25], v15, s[64:67], s10 offen")
    L("L_s2_nom1")
    start_ws()
    start_bar()
    I("s_branch L_s2_main"); SEC("s2main"); L("L_s2_main")
    I("s_waitcnt lgkmcnt(0)")
    I("s_mul_i32 s44, s44, 1664525\ns_add_u32 s44, s44, 1013904223")
    I("s_bitcmp0_b32 s9, 0\ns_cbranch_scc1 L_softmax\ns_cmp_ge_u32 s9, 28\ns_cbranch_scc1 L_softmax")
    wait_flag(4, FO(F_X), 1, 26)
    C("LayerNorm (wave 6, M1 workgroups)")
    I("v_lshrrev_b32 v9, 3, v0\nv_and_b32 v10, 7, v0\nv_lshlrev_b32 v10, 4, v10")
    I("v_mul_u32_u24 v11, 896, v9\nv_add_u32 v11, v11, v10\nv_add_u32 v11, %d, v11" % XL)
    for i in range(7):
        I("ds_read_b128 v[%d:%d], v11 offset:%d" % (64 + 4 * i, 64 + 4 * i + 3, 128 * i))
    I("v_mul_u32_u24 v12, 912, v9\nv_add_u32 v12, v12, v10\nv_add_u32 v12, %d, v12" % YL)
    I("s_waitcnt lgkmcnt(0)")
    set_flag_add(4, FO(F_Y), 5)
    F = 128
    for k in range(28):
        I("v_lshlrev_b32 v%d, 16, v%d\nv_and_b32 v%d, 0xffff0000, v%d" % (F + 2 * k, 64 + k, F + 2 * k + 1, 64 + k))
    I("v_pk_add_f32 v[16:17], v[%d:%d], v[%d:%d]" % (F, F + 1, F + 2, F + 3))
    for k in range(2, 28):
        I("v_pk_add_f32 v[16:17], v[16:17], v[%d:%d]" % (F + 2 * k, F + 2 * k + 1))
    I("v_add_f32 v16, v16, v17")
    def red_p(v):
        for mod in ("quad_perm:[1,0,3,2]", "quad_perm:[2,3,0,1]", "row_half_mirror"):
            I("v_add_f32_dpp v%d, v%d, v%d %s row_mask:0xf bank_mask:0xf" % (v, v, v, mod))
    red_p(16)
    I("v_mul_f32 v16, 0x%08x, v16" % f2u(1.0 / 448))
    rnd_pair(18, 19, 16, 16, 17)
    I("v_sub_f32 v20, v16, v18")
    I("v_sub_f32 v18, 0, v18\nv_mov_b32 v19, v18")
    for k in range(28):
        I("v_pk_add_f32 v[%d:%d], v[%d:%d], v[18:19]" % (F + 2 * k, F + 2 * k + 1, F + 2 * k, F + 2 * k + 1))
    I("v_pk_mul_f32 v[16:17], v[%d:%d], v[%d:%d]" % (F, F + 1, F, F + 1))
    for k in range(1, 28):
        I("v_pk_fma_f32 v[16:17], v[%d:%d], v[%d:%d], v[16:17]" % (F + 2 * k, F + 2 * k + 1, F + 2 * k, F + 2 * k + 1))
    I("v_add_f32 v16, v16, v17")
    red_p(16)
    I("v_mul_f32 v16, 0x%08x, v16" % f2u(1.0 / 448))
    I("v_fma_f32 v16, -v20, v20, v16\nv_max_f32 v16, 0, v16")
    rnd_pair(16, 17, 16, 16, 21)
    I("v_add_f32 v16, 0x%08x, v16" % f2u(1e-5))
    rnd_pair(16, 17, 16, 16, 21)
    I("v_sqrt_f32 v16, v16")
    rnd_pair(16, 17, 16, 16, 21)
    I("v_rcp_f32 v16, v16")
    I("v_mov_b32 v17, v16")
    for k in range(28):
        I("v_pk_mul_f32 v[%d:%d], v[%d:%d], v[16:17]" % (F + 2 * k, F + 2 * k + 1, F + 2 * k, F + 2 * k + 1))
    for k in range(28):
        I("v_cvt_pk_bf16_f32 v%d, v%d, v%d" % (64 + k, F + 2 * k, F + 2 * k + 1))
    for i in range(7):
        I("ds_write_b128 v12, v[%d:%d] offset:%d" % (64 + 4 * i, 64 + 4 * i + 3, 128 * i))
    STAMP_(2)
    C("M1: h tile")
    I("s_waitcnt vmcnt(0) lgkmcnt(0)")
    I("v_mov_b32 v13, %d" % OOB)
    I("v_and_b32 v15, 7, v2\nv_mul_u32_u24 v15, 912, v15\nv_lshl_add_u32 v15, v3, 4, v15\nv_add_u32 v15, %d, v15" % YL)
    for t in range(14):
        I("ds_read_b128 v[%d:%d], v15 offset:%d" % (XF + 4 * t, XF + 4 * t + 3, 64 * t))
    I("v_add_u32 v15, %d, v6" % W1T)
    for t in range(14):
        I("ds_read_b64_tr_b16 v[%d:%d], v15 offset:%d" % (AF + 4 * t, AF + 4 * t + 1, 1024 * t))
        I("ds_read_b64_tr_b16 v[%d:%d], v15 offset:%d" % (AF + 4 * t + 2, AF + 4 * t + 3, 1024 * t + 128))
    I("s_waitcnt lgkmcnt(0)")
    for t in range(14):
        c = "0" if t == 0 else "v[16:19]"
        I("v_mfma_f32_16x16x32_bf16 v[16:19], v[%d:%d], v[%d:%d], %s" % (AF + 4 * t, AF + 4 * t + 3, XF + 4 * t, XF + 4 * t + 3, c))
    rnd_pair(16, 17, 16, 17, 26)
    rnd_pair(18, 19, 18, 19, 27)
    I("v_lshlrev_b32 v28, 16, v24\nv_and_b32 v29, 0xffff0000, v24\nv_lshlrev_b32 v30, 16, v25\nv_and_b32 v31, 0xffff0000, v25")
    for r in range(4): I("v_add_f32 v%d, v%d, v%d" % (16 + r, 16 + r, 28 + r))
    rnd_pair(16, 17, 16, 17, 26)
    rnd_pair(18, 19, 18, 19, 27)
    k0 = -2.0 * 0.7978845608028654 * 1.4426950408889634
    k1 = k0 * 0.044715
    I("s_mov_b32 s10, 0x%08x\ns_mov_b32 s11, 0x%08x" % (f2u(k0), f2u(k1)))
    I("v_mov_b32 v32, s10")
    for r in range(4):
        I("v_mul_f32 v%d, v%d, v%d" % (28 + r, 16 + r, 16 + r))
        I("v_fma_f32 v%d, v%d, s11, v32" % (28 + r, 28 + r))
        I("v_mul_f32 v%d, v%d, v%d" % (28 + r, 28 + r, 16 + r))
    for r in range(4): I("v_exp_f32 v%d, v%d" % (28 + r, 28 + r))
    for r in range(4): I("v_add_f32 v%d, 1.0, v%d" % (28 + r, 28 + r))
    for r in range(4): I("v_rcp_f32 v%d, v%d" % (28 + r, 28 + r))
    for r in range(4): I("v_mul_f32 v%d, v%d, v%d" % (16 + r, 16 + r, 28 + r))
    I("v_cvt_pk_bf16_f32 v20, v16, v17\nv_cvt_pk_bf16_f32 v21, v18, v19")
    I("v_lshlrev_b32 v14, 5, v2\nv_lshl_add_u32 v14, v3, 3, v14\nv_add_u32 v14, %d, v14" % SG)
    I("ds_write_b64 v14, v[20:21]")
    I("v_lshlrev_b32 v14, 3, v0\nv_add_u32 v14, %d, v14" % SG)
    I("ds_read_b64 v[24:25], v14")
    I("v_lshrrev_b32 v14, 2, v0\nv_mul_u32_u24 v14, 7168, v14\nv_and_b32 v15, 3, v0\nv_lshl_add_u32 v14, v15, 4, v14\nv_cmp_gt_u32 vcc, 32, v0\nv_cndmask_b32 v14, v13, v14, vcc")
    I("s_lshl_b32 s10, s69, 6\ns_add_u32 s10, s10, %d" % HBUF)
    I("v_mov_b32 v21, s44\nv_mov_b32 v23, s44")
    I("s_waitcnt lgkmcnt(0)")
    I("v_mov_b32 v20, v24\nv_mov_b32 v22, v25")
    I("buffer_store_dwordx4 v[20:23], v14, s[60:63], s10 offen @STAh@")
    if cfg.qh_cond: sk_ = if_not_local(26)
    I("s_add_u32 s11, s10, %d" % DUP)
    I("buffer_store_dwordx4 v[20:23], v14, s[60:63], s11 offen @ST@")
    if cfg.qh_cond: L(sk_)
    STAMP_(6)
    L("L_softmax")
    C("softmax for head (wave-6); wave 6 gathers the scores and hands the raw words to wave 7 through LDS")
    I("v_lshlrev_b32 v15, 4, v0\nv_add_u32 v15, %d, v15" % SG)
    I("s_cmp_eq_u32 s3, 6\ns_cbranch_scc0 L_sm_w7")
    wait_flag(4, FO(F_T2), 256, 26)
    STAMP_(3)
    I("s_lshl_b32 s10, s4, 3\ns_add_u32 s10, s10, s5\ns_lshl_b32 s10, s10, 13\ns_add_u32 s10, s10, %d\ns_add_u32 s11, s10, 4096" % SBUF)
    I("v_lshlrev_b32 v14, 4, v0")
    def iss():
        for i in range(8):
            I("buffer_load_dwordx4 v[%d:%d], v14, s[60:63], s%d offen offset:%d @LD@" % (64 + 4 * i, 64 + 4 * i + 3, 10 + i // 4, (i % 4) * 1024))
    tags = []
    for k in range(8): tags += [64 + 4 * k + 1, 64 + 4 * k + 3]
    poll(iss, tags, 26, 27, after_first=lambda: (STAMP_(7), set_flag_add(4, FO(F_SP), 5)), dual=(['s10', 's11'] if 's' in lh else None))
    if cfg.stamps:
        I("s_sub_u32 s86, %d, s45\ns_mov_b32 s87, 0" % (cfg.maxpoll + 1))
    for i in range(8):
        I("v_mov_b32 v%d, v%d\nv_mov_b32 v%d, v%d" % (96 + 2 * i, 64 + 4 * i, 96 + 2 * i + 1, 64 + 4 * i + 2))
    for q in range(4):
        I("ds_write_b128 v15, v[%d:%d] offset:%d" % (96 + 4 * q, 96 + 4 * q + 3, 1024 * q))
    set_flag_add(4, FO(F_G), 5)
    I("s_branch L_sm_go")
    L("L_sm_w7")
    if cfg.local:
        C("wave 7 checks whether the hand-off group sits on one die")
        wait_flag(4, FO(F_T1), 256, 26)
        if cfg.die_by == 'S3': die_check("a")
    if 's' in lh:
        C("write-through copy of this workgroup's scores (unless the group is on one die)")
        skw7 = if_not_local(26)
        wait_flag(4, FO(F_S), 256, 26)
        I("v_lshlrev_b32 v9, 2, v0\nv_add_u32 v9, %d, v9" % SL)
        for w in range(4): I("ds_read_b32 v%d, v9 offset:%d" % (32 + 2 * w, 256 * w))
        I("v_lshlrev_b32 v10, 11, v3\nv_lshl_add_u32 v10, v2, 3, v10")
        I("s_lshl_b32 s10, s4, 3\ns_add_u32 s10, s10, s5\ns_lshl_b32 s10, s10, 13\ns_lshl_b32 s11, s6, 9\ns_add_u32 s10, s10, s11\ns_add_u32 s10, s10, %d" % (SBUF + DUP))
        for w in range(4): I("v_mov_b32 v%d, s44" % (33 + 2 * w))
        I("s_waitcnt lgkmcnt(0)")
        for w in range(4):
            I("buffer_store_dwordx2 v[%d:%d], v10, s[60:63], s10 offen offset:%d @ST@" % (32 + 2 * w, 33 + 2 * w, 128 * w))
        L(skw7)
    wait_flag(4, FO(F_G), 1, 26)
    for q in range(4):
        I("ds_read_b128 v[%d:%d], v15 offset:%d" % (96 + 4 * q, 96 + 4 * q + 3, 1024 * q))
    I("s_waitcnt lgkmcnt(0)")
    L("L_sm_go")
    STAMP_(4)
    I("s_mov_b32 s12, 0x01000c0c\ns_cmp_eq_u32 s3, 6\ns_cselect_b32 s12, s12, 0x03020c0c")
    F = 128
    for i in range(16):
        I("v_perm_b32 v%d, v%d, v%d, s12" % (F + i, 96 + i, 96 + i))
    I("v_max3_f32 v16, v%d, v%d, v%d" % (F, F + 1, F + 2))
    for k in range(3, 15, 2): I("v_max3_f32 v16, v16, v%d, v%d" % (F + k, F + k + 1))
    I("v_max_f32 v16, v16, v%d" % (F + 15))
    wave_reduce("v_max_f32", 16, 17)
    cexp = 1.4426950408889634 / 16.0
    I("s_mov_b32 s13, 0x%08x" % f2u(cexp))
    I("v_mul_f32 v16, s13, v16\nv_sub_f32 v16, 0, v16")
    for k in range(16): I("v_fma_f32 v%d, v%d, s13, v16" % (F + k, F + k))
    for k in range(16): I("v_exp_f32 v%d, v%d" % (F + k, F + k))
    I("v_add_f32 v17, v%d, v%d" % (F, F + 1))
    I("v_add_f32 v18, v%d, v%d" % (F + 2, F + 3))
    for k in range(4, 16, 2):
        I("v_add_f32 v17, v17, v%d\nv_add_f32 v18, v18, v%d" % (F + k, F + k + 1))
    I("v_add_f32 v17, v17, v18")
    wave_reduce("v_add_f32", 17, 18)
    I("v_rcp_f32 v17, v17")
    for k in range(16): I("v_mul_f32 v%d, v%d, v17" % (F + k, F + k))
    for i in range(8): I("v_cvt_pk_bf16_f32 v%d, v%d, v%d" % (64 + i, F + 2 * i, F + 2 * i + 1))
    I("s_sub_u32 s12, s3, 6\ns_lshl_b32 s12, s12, 11\ns_add_u32 s12, s12, %d" % PL)
    I("v_lshlrev_b32 v15, 2, v0\nv_add_u32 v15, s12, v15")
    for i in range(8): I("ds_write_b32 v15, v%d offset:%d" % (64 + i, 256 * i))
    set_flag_add(4, FO(F_P), 5)
    STAMP_(5)

    L("L_outproj")
    BF = 128
    I("s_cmp_eq_u32 s3, 5\ns_cbranch_scc1 L_s1_tail")
    if cfg.wo_late is True: I("s_cmp_eq_u32 s3, 7\ns_cbranch_scc1 L_s3_tail")
    I("s_cmp_ge_u32 s3, 6\ns_cbranch_scc1 L_s23_end")
    def wo_preload(cnt="s45"):
        C("wave 4: preload wo fragments for four 16-column tiles")
        wait_flag(4, FO(F_WO), 1, 28, cnt=cnt)
        for t in range(4):
            for tt in range(4):
                r = BF + 4 * (t * 4 + tt)
                I("ds_read_b64_tr_b16 v[%d:%d], v8 offset:%d" % (r, r + 1, t * 4096 + tt * 32))
                I("ds_read_b64_tr_b16 v[%d:%d], v8 offset:%d" % (r + 2, r + 3, t * 4096 + tt * 32 + 512))
    I("v_lshrrev_b32 v8, 2, v2\nv_lshl_add_u32 v8, v3, 3, v8\nv_lshlrev_b32 v8, 7, v8\nv_add_u32 v8, v8, v7")
    if WOT: I("v_add_u32 v8, %d, v8" % WOT)
    if not cfg.wo_late: wo_preload()
    I("v_mov_b32 v13, %d" % OOB)
    I("v_lshlrev_b32 v10, 4, v0")
    I("s_lshl_b32 s10, s7, 12\ns_add_u32 s10, s10, %d" % OBUF)
    I("s_lshl_b32 s11, s4, 9\nv_add_u32 v11, s11, v10\nv_cmp_gt_u32 vcc, 32, v0\nv_cndmask_b32 v11, v13, v11, vcc")
    I("v_and_b32 v12, 31, v0\nv_lshlrev_b32 v12, 4, v12\nv_add_u32 v12, %d, v12" % OA)
    I("v_lshrrev_b32 v9, 5, v0\nv_mul_u32_u24 v9, 272, v9\nv_and_b32 v15, 31, v0\nv_lshl_add_u32 v9, v15, 3, v9\nv_add_u32 v9, %d, v9" % OG)
    I("v_and_b32 v15, 7, v2\nv_mul_u32_u24 v15, 272, v15\nv_lshl_add_u32 v15, v3, 4, v15\nv_add_u32 v15, %d, v15" % OG)
    I("v_and_b32 v14, 1, v3\nv_mul_u32_u24 v14, %d, v14\nv_lshrrev_b32 v16, 1, v3\nv_lshl_add_u32 v14, v16, 12, v14\nv_lshl_add_u32 v14, v2, 3, v14" % (4 * 28 * 4096))
    I("s_lshl_b32 s11, s4, 14\ns_lshl_b32 s13, s7, 7\ns_add_u32 s11, s11, s13\ns_add_u32 s11, s11, %d" % PBUF)
    I("s_mov_b32 s48, 0\ns_mov_b32 s49, -1")
    for k in range(8): I("v_mov_b32 v%d, s44" % (193 + 2 * k))
    I("v_mov_b32 v57, s44\nv_mov_b32 v59, s44")
    if cfg.mlp_late: I("v_mov_b32 v60, v50\nv_mov_b32 v61, v51\nv_mov_b32 v62, v52\nv_mov_b32 v63, 0\nv_lshlrev_b32 v16, 4, v0\nv_add_u32 v16, %d, v16" % FIN)
    else: I("v_mov_b32 v60, v50\nv_mov_b32 v61, v53\nv_mov_b32 v62, v54\nv_mov_b32 v63, 0\nv_lshlrev_b32 v16, 4, v0\nv_add_u32 v16, %d, v16" % FIN)
    I("s_mov_b64 exec, 0xff\nds_write_b128 v16, v[60:63]\ns_mov_b64 exec, -1")
    if 'o' in lh: dual_pre(26)
    I("s_waitcnt lgkmcnt(0)")
    STAMP_(9)
    I("s_barrier")
    STAMP_(10)
    C("reduce the four o partials, round, publish")
    for w in range(4):
        I("ds_read_b128 v[%d:%d], v12 offset:%d" % (64 + 4 * w, 64 + 4 * w + 3, 512 * w))
    I("s_waitcnt lgkmcnt(2)")
    I("v_pk_add_f32 v[64:65], v[64:65], v[68:69]\nv_pk_add_f32 v[66:67], v[66:67], v[70:71]")
    I("s_waitcnt lgkmcnt(0)")
    I("v_pk_add_f32 v[72:73], v[72:73], v[76:77]\nv_pk_add_f32 v[74:75], v[74:75], v[78:79]")
    I("v_pk_add_f32 v[64:65], v[64:65], v[72:73]\nv_pk_add_f32 v[66:67], v[66:67], v[74:75]")
    I("v_cvt_pk_bf16_f32 v56, v64, v65\nv_cvt_pk_bf16_f32 v58, v66, v67")
    I("buffer_store_dwordx4 v[56:59], v11, s[60:63], s10 offen @STAo@")
    STAMP_(11)
    I("s_cmp_eq_u32 s4, 7\ns_cbranch_scc1 L_noproj")
    def iss():
        for k in range(4):
            I("buffer_load_dwordx4 v[%d:%d], v10, s[60:63], s10 offen offset:%d @LD@" % (64 + 4 * k, 64 + 4 * k + 3, 1024 * k))
    tags = []
    for k in range(4): tags += [64 + 4 * k + 1, 64 + 4 * k + 3]
    poll(iss, tags, 26, 27, backoff=cfg.tail_backoff, dual=(['s10'] if 'o' in lh else None), dual_pre_done=True, after_first=((lambda: wo_preload('s40')) if cfg.wo_late else None))
    if not cfg.dbg_start: STAMP_(12)
    for k in range(4):
        I("ds_write2_b32 v9, v%d, v%d offset0:%d offset1:%d" % (64 + 4 * k, 64 + 4 * k + 2, 136 * k, 136 * k + 1) if 136 * k + 1 < 256 else
          "v_add_u32 v9, %d, v9\nds_write2_b32 v9, v%d, v%d offset0:%d offset1:%d" % (544 * 2 if k == 2 else 0, 64 + 4 * k, 64 + 4 * k + 2, 136 * (k - 2), 136 * (k - 2) + 1) if k == 2 else
          "ds_write2_b32 v9, v%d, v%d offset0:%d offset1:%d" % (64 + 4 * k, 64 + 4 * k + 2, 136 * (k - 2), 136 * (k - 2) + 1))
    I("s_waitcnt lgkmcnt(0)")
    for t in range(4):
        I("ds_read_b128 v[%d:%d], v15 offset:%d" % (96 + 4 * t, 96 + 4 * t + 3, 64 * t))
    for t in range(4):
        I("s_waitcnt lgkmcnt(%d)" % (3 - t))
        for tt in range(4):
            r = BF + 4 * (t * 4 + tt); d = 16 + 4 * tt
            c = "0" if t == 0 else "v[%d:%d]" % (d, d + 3)
            I("v_mfma_f32_16x16x32_bf16 v[%d:%d], v[%d:%d], v[%d:%d], %s" % (d, d + 3, 96 + 4 * t, 96 + 4 * t + 3, r, r + 3, c))
    for p in range(2):
        for r in range(4):
            k = p * 4 + r
            I("v_cndmask_b32 v%d, v%d, v%d, s[48:49]" % (192 + 2 * k, 16 + 8 * p + r, 16 + 8 * p + 4 + r))
        for r in range(4):
            k = p * 4 + r
            I("s_add_u32 s13, s11, %d" % (r * 28 * 4096 + p * 2 * 4096))
            I("buffer_store_dwordx2 v[%d:%d], v14, s[60:63], s13 offen @ST@" % (192 + 2 * k, 193 + 2 * k))
    L("L_noproj")
    set_flag_add(4, FO(F_PUB), 5)
    if not cfg.dbg_start: STAMP_(13)
    I("s_branch L_sdone")
    L("L_s1_tail")
    I("v_mov_b32 v13, %d" % OOB)
    if 'o' in lh:
        I("v_lshlrev_b32 v10, 4, v0\ns_lshl_b32 s10, s7, 12\ns_add_u32 s10, s10, %d" % (OBUF + DUP))
        I("s_lshl_b32 s11, s4, 9\nv_add_u32 v11, s11, v10\nv_cmp_gt_u32 vcc, 32, v0\nv_cndmask_b32 v11, v13, v11, vcc")
        I("v_and_b32 v12, 31, v0\nv_lshlrev_b32 v12, 4, v12\nv_add_u32 v12, %d, v12" % OA)
        I("v_mov_b32 v57, s44\nv_mov_b32 v59, s44")
    I("s_mul_i32 s12, s4, 28\ns_add_u32 s12, s12, s7\ns_lshl_b32 s12, s12, 12\ns_add_u32 s12, s12, %d" % PBUF)
    I("v_lshlrev_b32 v14, 4, v0")
    I("v_and_b32 v15, 7, v0\nv_lshlrev_b32 v15, 4, v15\nv_add_u32 v15, %d, v15" % FIN)
    srd(48, 38, 39, "7168")
    I("v_lshlrev_b32 v9, 2, v0\nv_cmp_gt_u32 vcc, 8, v0\nv_cndmask_b32 v9, v13, v9, vcc")
    I("s_mul_i32 s13, s4, 896\ns_lshl_b32 s14, s7, 5\ns_add_u32 s13, s13, s14")
    I("s_waitcnt lgkmcnt(0)" if cfg.wo_late == 'S1' else "s_waitcnt vmcnt(0) lgkmcnt(0)")
    I("s_barrier")
    if cfg.wo_late == 'S1' and not cfg.mlp_late:
        I("s_waitcnt vmcnt(0)")
        set_flag_add(4, FO(F_WO), 5)
    if cfg.mlp_late:
        I("s_cmp_ge_u32 s9, 28\ns_cbranch_scc1 L_s1_nom2")
        I("s_waitcnt vmcnt(7)")
        set_flag_add(4, FO(F_WO), 5)
        C("MLP second GEMM tile")
        I("s_mov_b32 s20, s10\ns_mov_b32 s21, s11\ns_mov_b32 s22, s12\ns_mov_b32 s23, s13")
        I("s_waitcnt vmcnt(0)")
        I("v_mov_b32 v30, v15\nv_mov_b32 v31, v11\nv_mov_b32 v27, v12")
        w2_frags()
        m2_compute()
        I("v_mov_b32 v15, v30\nv_mov_b32 v11, v31\nv_mov_b32 v12, v27")
        I("s_mov_b32 s10, s20\ns_mov_b32 s11, s21\ns_mov_b32 s12, s22\ns_mov_b32 s13, s23")
        srd(48, 38, 39, "7168")
        I("s_branch L_s1_m2done")
        L("L_s1_nom2")
        I("s_waitcnt vmcnt(0)")
        set_flag_add(4, FO(F_WO), 5)
        L("L_s1_m2done")
    if 'o' in lh:
        C("write-through copy of o (unless the group is on one die)")
        sk_ = if_not_local(26)
        for w in range(4):
            I("ds_read_b128 v[%d:%d], v12 offset:%d" % (64 + 4 * w, 64 + 4 * w + 3, 512 * w))
        I("s_waitcnt lgkmcnt(0)")
        I("v_pk_add_f32 v[64:65], v[64:65], v[68:69]\nv_pk_add_f32 v[66:67], v[66:67], v[70:71]")
        I("v_pk_add_f32 v[72:73], v[72:73], v[76:77]\nv_pk_add_f32 v[74:75], v[74:75], v[78:79]")
        I("v_pk_add_f32 v[64:65], v[64:65], v[72:73]\nv_pk_add_f32 v[66:67], v[66:67], v[74:75]")
        I("v_cvt_pk_bf16_f32 v56, v64, v65\nv_cvt_pk_bf16_f32 v58, v66, v67")
        I("buffer_store_dwordx4 v[56:59], v11, s[60:63], s10 offen @ST@")
        I("s_waitcnt vmcnt(0)")
        L(sk_)
    I("s_cmp_ge_u32 s7, 28\ns_cbranch_scc1 L_sdone")
    I("ds_read_b128 v[48:51], v15")
    if cfg.pub_wait: wait_flag(4, FO(F_PUB), 1, 26)
    if not cfg.fin_mask:
        C("final gather: two register sets polled alternately")
        def iss(base):
            for i in range(4):
                I("buffer_load_dwordx4 v[%d:%d], v14, s[60:63], s12 offen offset:%d @LD@" % (base + 4 * i, base + 4 * i + 3, 1024 * i))
        I("s_mov_b32 s45, %d" % cfg.maxpoll)
        iss(64)
        if cfg.stagger: I("s_sleep %d" % cfg.stagger)
        L("L_fin_loop")
        iss(80)
        I("s_waitcnt vmcnt(4)")
        check_tags([65, 67, 69, 71, 73, 75, 77, 79], 26, 27)
        I("s_cbranch_scc1 L_fin_ok")
        iss(64)
        I("s_waitcnt vmcnt(4)")
        check_tags([81, 83, 85, 87, 89, 91, 93, 95], 26, 27)
        I("s_cbranch_scc1 L_fin_ok1")
        I("s_sub_u32 s45, s45, 1\ns_cmp_lg_u32 s45, 0\ns_cbranch_scc1 L_fin_loop")
        I("s_branch L_fin_ok")
        L("L_fin_ok1")
        I("v_add_f32 v16, v80, v84\nv_add_f32 v18, v82, v86\nv_add_f32 v17, v88, v92\nv_add_f32 v19, v90, v94")
        I("s_branch L_fin_sum")
        L("L_fin_ok")
        I("v_add_f32 v16, v64, v68\nv_add_f32 v18, v66, v70\nv_add_f32 v17, v72, v76\nv_add_f32 v19, v74, v78")
    else:
        C("final gather: after the first pass only the lanes whose granules are still missing are read again")
        nl = 6 if cfg.mlp_late else 4
        def ld(i):
            if i < 4: I("buffer_load_dwordx4 v[%d:%d], v14, s[60:63], s12 offen offset:%d @LD@" % (64 + 4 * i, 64 + 4 * i + 3, 1024 * i))
            else: I("buffer_load_dwordx4 v[%d:%d], v14, s[60:63], s15 offen offset:%d @LD@" % (64 + 4 * i, 64 + 4 * i + 3, 1024 * (i - 4)))
        if cfg.mlp_late:
            I("s_mul_i32 s15, s4, 28\ns_add_u32 s15, s15, s7\ns_lshl_b32 s15, s15, 11\ns_add_u32 s15, s15, %d" % MBUF)
        I("s_mov_b32 s45, %d" % cfg.maxpoll)
        for i in range(nl): ld(i)
        L("L_fin_loop")
        I("s_waitcnt vmcnt(0)")
        mk = lambda i: 16 + 4 * i if i < 4 else 32 + 4 * (i - 4)
        for i in range(nl):
            I("v_cmp_ne_u32 s[%d:%d], s44, v%d" % (mk(i), mk(i) + 1, 65 + 4 * i))
            I("v_cmp_ne_u32 s[%d:%d], s44, v%d" % (mk(i) + 2, mk(i) + 3, 67 + 4 * i))
        for i in range(nl):
            I("s_or_b64 s[%d:%d], s[%d:%d], s[%d:%d]" % (mk(i), mk(i) + 1, mk(i), mk(i) + 1, mk(i) + 2, mk(i) + 3))
        I("s_or_b64 s[18:19], s[16:17], s[20:21]\ns_or_b64 s[22:23], s[24:25], s[28:29]")
        if cfg.mlp_late: I("s_or_b64 s[34:35], s[32:33], s[36:37]\ns_or_b64 s[18:19], s[18:19], s[34:35]")
        I("s_or_b64 s[18:19], s[18:19], s[22:23]")
        I("s_cbranch_scc0 L_fin_ok")
        for i in range(nl):
            sk = lab("fm")
            I("s_mov_b64 exec, s[%d:%d]" % (mk(i), mk(i) + 1))
            I("s_cbranch_execz %s" % sk)
            ld(i)
            L(sk)
        I("s_mov_b64 exec, -1")
        if cfg.fin_sleep: I("s_sleep %d" % cfg.fin_sleep)
        I("s_sub_u32 s45, s45, 1\ns_cmp_lg_u32 s45, 0\ns_cbranch_scc1 L_fin_loop")
        I("s_waitcnt vmcnt(0)")
        L("L_fin_ok")
        I("v_add_f32 v16, v64, v68\nv_add_f32 v18, v66, v70\nv_add_f32 v17, v72, v76\nv_add_f32 v19, v74, v78")
        if cfg.mlp_late: I("v_add_f32 v20, v80, v84\nv_add_f32 v22, v82, v86")
    L("L_fin_sum")
    STAMP_(14)
    I("v_add_f32 v16, v16, v17\nv_add_f32 v18, v18, v19")
    red8(16, 24); red8(18, 25)
    if cfg.mlp_late: red8(20, 24); red8(22, 25)
    rnd_pair(16, 18, 16, 18, 26)
    I("s_waitcnt lgkmcnt(0)")
    if cfg.mlp_late:
        rnd_pair(20, 22, 20, 22, 26)
        I("v_lshlrev_b32 v24, 16, v50\nv_and_b32 v25, 0xffff0000, v50")
        I("v_add_f32 v20, v20, v24\nv_add_f32 v22, v22, v25")
        rnd_pair(20, 22, 20, 22, 26)
        I("v_mul_f32 v20, v20, v49\nv_mul_f32 v22, v22, v49")
        rnd_pair(20, 22, 20, 22, 26)
    I("v_mul_f32 v16, v16, v48\nv_mul_f32 v18, v18, v48")
    rnd_pair(16, 18, 16, 18, 26)
    if cfg.mlp_late: I("v_add_f32 v16, v16, v20\nv_add_f32 v18, v18, v22")
    else: I("v_add_f32 v16, v16, v49\nv_add_f32 v18, v18, v50")
    I("v_cvt_pk_bf16_f32 v16, v16, v18")
    I("buffer_store_dword v16, v9, s[48:51], s13 offen%s" % cfg.out_fl)
    C("epoch update by workgroup 0")
    I("s_cmp_eq_u32 s2, 0\ns_cbranch_scc0 L_sdone")
    I("v_mov_b32 v16, s44\nv_mov_b32 v14, %d\nv_cmp_eq_u32 vcc, 0, v0\nv_cndmask_b32 v14, v13, v14, vcc" % EPOCH)
    I("buffer_store_dword v16, v14, s[60:63], 0 offen @ST@")
    I("s_branch L_sdone")
    if cfg.wo_late is True:
        L("L_s3_tail")
        C("wave 7: the wo tile is fetched once the V loads have all been issued")
        cfg.wo_trig = 'F_K'; cfg.wo_win = 16
        wo_tile('L_s3_wo', wait=False)
        L('L_s3_wo')
        I("s_barrier")
        I("s_waitcnt vmcnt(0)")
        set_flag_add(4, FO(F_WO), 5)
        I("s_branch L_sdone")
    L("L_s23_end")
    I("s_barrier")
    L("L_sdone")
    STAMP_(15)
    stamps_out()
    L("L_end")
    I("s_endpgm")

    secs = {}; order_seen = []; cur = "entry"; secs[cur] = []; order_seen.append(cur)
    for ln in e.lines:
        if ln.startswith(";@SEC "):
            cur = ln[6:].strip(); secs[cur] = []; order_seen.append(cur)
        else: secs[cur].append(ln)
    first = ["entry", "svc", "s3start", "s2start", "s1start"]
    rest = [x for x in order_seen if x not in first]
    e.lines = []
    for x in first + rest: e.lines += secs[x]
    if cfg.noB:
        def dropB(l):
            if '@ST@' not in l: return False
            if 'q' in cfg.noB and ('v[56:59], v14' in l): return True
            if 'h' in cfg.noB and 'v[20:23], v14' in l: return True
            if 's' in cfg.noB and 'v10, s[60:63], s10 offen offset' in l: return True
            if 'o' in cfg.noB and 'v[56:59], v11' in l: return True
            return False
        e.lines = [l for l in e.lines if not dropB(l)]
    e.lines = [l.replace('@LD@', cfg.ldf).replace('@STAq@', cfg.stl if 'q' in lh else cfg.stf).replace('@STAh@', cfg.stl if 'h' in lh else cfg.stf).replace('@STAs@', cfg.stl if 's' in lh else cfg.stf).replace('@STAo@', cfg.stl if 'o' in lh else cfg.stf).replace('@ST@', cfg.stf).rstrip() for l in e.lines]
    body = e.finalize()
    hdr = open('gated_mix__sliding_block_cached__mixer_channel_mlp__decode.s.ref').read().split('\n')
    head = [l for l in hdr if l.startswith(';') and '@launch' not in l and 'Override launch' not in l]
    txt = "\n".join(head) + "\n" + DOC + "; @launch grid=(256,1,1) block=(512,1,1) lds=%d\n" % LDS_SIZE
    txt += '.amdgcn_target "amdgcn-amd-amdhsa--gfx950"\n.text\n.globl %s\n.p2align 8\n.type %s,@function\n%s:\n' % (NAME, NAME, NAME)
    txt += body
    txt += '.section .rodata,"a"\n.p2align 6\n.amdhsa_kernel %s\n' % NAME
    txt += "  .amdhsa_next_free_vgpr 256\n  .amdhsa_next_free_sgpr 102\n  .amdhsa_accum_offset 256\n  .amdhsa_group_segment_fixed_size 0\n  .amdhsa_kernarg_size 112\n  .amdhsa_user_sgpr_count 2\n  .amdhsa_user_sgpr_kernarg_segment_ptr 1\n  .amdhsa_system_sgpr_workgroup_id_x 1\n.end_amdhsa_kernel\n"
    return txt

if __name__ == "__main__":
    cfg = Cfg()
    out = sys.argv[1] if len(sys.argv) > 1 else "gated_mix__sliding_block_cached__mixer_channel_mlp__decode.s"
    for a in sys.argv[2:]:
        k, v = a.split("=")
        setattr(cfg, k, eval(v))
    open(out, "w").write(gen(cfg))
    print("written", out)
```
